```python
import torch

def _softmax(x, axis=-1):
    return torch.softmax(x, dim=axis)
def _gelu(x):
    return torch.nn.functional.gelu(x, approximate="tanh")
def _silu(x):
    return torch.nn.functional.silu(x)
def _sigmoid(x):
    return torch.sigmoid(x)
def _layernorm(x, axis=-1, eps=1e-5):
    m = x.mean(dim=axis, keepdim=True)
    v = x.var(dim=axis, keepdim=True, unbiased=False)
    return (x - m) / torch.sqrt(v + eps)
def _scatter_add(tgt, idx, src, axis=0):
    return tgt.clone().index_add_(axis, idx, src)
def _segment_sum(src, seg, n):
    out = torch.zeros((n,) + src.shape[1:], dtype=src.dtype)
    return out.index_add_(0, seg, src)
def _pad(x, pw):
    flat = tuple(v for pair in reversed(pw) for v in pair)
    return torch.nn.functional.pad(x, flat)

kernel_name = 'gated_mix__mha_block_cached__sliding_block_cached__decode'

def setup_inputs():

    _w = (lambda a: (lambda t: t.to(torch.bfloat16) if t.is_floating_point() else t)(torch.as_tensor(a)))
    def _A_setup():
        B, Sq, D = 4, 1, 512
        H, Sk, Dh = 32, 4096, 128
        return {
            "x": _w((lambda *s: torch.randn(*s, dtype=torch.bfloat16) * 0.05)(B, Sq, D)),
            "k_cache": _w((lambda *s: torch.randn(*s, dtype=torch.bfloat16) * 6.4)(B, H, Sk, Dh)),
            "v_cache": _w((lambda *s: torch.randn(*s, dtype=torch.bfloat16) * 0.05)(B, H, Sk, Dh)),
            "wq": _w((lambda *s: torch.randn(*s, dtype=torch.bfloat16) * 6.4)(D, H * Dh) * (D ** -0.5)),
            "wo": _w((lambda *s: torch.randn(*s, dtype=torch.bfloat16) * 0.05)(H * Dh, D) * ((H * Dh) ** -0.5)),
        }
    _A_in = _A_setup()

    def _B_setup():
        B, Sq, D = 4, 1, 512
        Hq, Hkv, Sk, Dh = 32, 32, 4096, 128
        assert Hq % Hkv == 0, (Hq, Hkv)
        return {
            "x": _w((lambda *s: torch.randn(*s, dtype=torch.bfloat16) * 0.05)(B, Sq, D)),
            "k_cache": _w((lambda *s: torch.randn(*s, dtype=torch.bfloat16) * 6.4)(B, Hkv, Sk, Dh)),
            "v_cache": _w((lambda *s: torch.randn(*s, dtype=torch.bfloat16) * 0.05)(B, Hkv, Sk, Dh)),
            "wq": _w((lambda *s: torch.randn(*s, dtype=torch.bfloat16) * 6.4)(D, Hq * Dh) * (D ** -0.5)),
            "wo": _w((lambda *s: torch.randn(*s, dtype=torch.bfloat16) * 0.05)(Hq * Dh, D) * ((Hq * Dh) ** -0.5)),
        }
    _B_in = _B_setup()

    return {
        "A_x": _A_in["x"],
        "A_k_cache": _A_in["k_cache"],
        "A_v_cache": _A_in["v_cache"],
        "A_wq": _A_in["wq"],
        "A_wo": _A_in["wo"],
        "B_x": _B_in["x"],
        "B_k_cache": _B_in["k_cache"],
        "B_v_cache": _B_in["v_cache"],
        "B_wq": _B_in["wq"],
        "B_wo": _B_in["wo"],
        "gate_w": _w((lambda *s: torch.randn(*s, dtype=torch.bfloat16) * 0.1)(512) * 16.0),
    }

def reference(A_x, A_k_cache, A_v_cache, A_wq, A_wo, B_x, B_k_cache, B_v_cache, B_wq, B_wo, gate_w):
    def _A_ref(x, k_cache, v_cache, wq, wo):
        B, Sq, D = x.shape
        H, Dh = 32, 128
        q = (lambda x, *d: x.permute(*d))((x @ wq).reshape(B, Sq, H, Dh), 0, 2, 1, 3)
        scores = torch.einsum("bhqd,bhkd->bhqk", q, k_cache) * (Dh ** -0.5)
        p = _softmax(scores, axis=-1)
        o = torch.einsum("bhqk,bhkd->bhqd", p, v_cache)
        return (lambda x, *d: x.permute(*d))(o, 0, 2, 1, 3).reshape(B, Sq, H * Dh) @ wo

    def _B_ref(x, k_cache, v_cache, wq, wo):
        B, Sq, D = x.shape
        Hq, Dh = 32, 128
        Hkv, Sk = k_cache.shape[1], k_cache.shape[2]
        W = min(4096, max(256, Sk // 4))
        rep = Hq // Hkv
        q = (lambda x, *d: x.permute(*d))((x @ wq).reshape(B, Sq, Hq, Dh), 0, 2, 1, 3)
        k = (lambda x, n, axis: torch.repeat_interleave(x, n, dim=axis))(k_cache[:, :, Sk - W:, :], rep, axis=1)
        v = (lambda x, n, axis: torch.repeat_interleave(x, n, dim=axis))(v_cache[:, :, Sk - W:, :], rep, axis=1)
        scores = torch.einsum("bhqd,bhkd->bhqk", q, k) * (Dh ** -0.5)
        p = _softmax(scores, axis=-1)
        o = torch.einsum("bhqk,bhkd->bhqd", p, v)
        return (lambda x, *d: x.permute(*d))(o, 0, 2, 1, 3).reshape(B, Sq, Hq * Dh) @ wo

    x = A_x
    g = _sigmoid((x * gate_w).sum(-1, keepdims=True))
    a = _A_ref(x, A_k_cache, A_v_cache, A_wq, A_wo)
    b = _B_ref(x, B_k_cache, B_v_cache, B_wq, B_wo)
    return g * a + (1 - g) * b
```

```python
import sys
out = sys.argv[1]
WPOL = sys.argv[2] if len(sys.argv) > 2 else "nt"
WPOL = "" if WPOL == "none" else WPOL
KPOL = "nt"
NW = 8
L = []
def A(s): L.append(s)

HEADER = open("gated_mix__mha_block_cached__sliding_block_cached__decode.s.ref").read().split("\n")
for line in HEADER:
    if line.startswith(";") and "@launch" not in line and "Override" not in line and "grid=ceil" not in line:
        A(line)
LDS_BYTES = 16384
A(f"; @launch kernel=attn_kernel grid=(256,1,1) block=(512,1,1) lds={LDS_BYTES}")
A("; @launch kernel=final_kernel grid=(128,1,1) block=(64,1,1) lds=0")
A('.amdgcn_target "amdgcn-amd-amdhsa--gfx950"\n.text')

LOG2E = 0x3fb8aa3b
SCALE = 0x3db504f3

class Fifo:
    def __init__(self): self.q = []
    def issue(self, tag): self.q.append(tag)
    def wait(self, tag):
        if tag not in self.q: return
        idx = self.q.index(tag)
        n = len(self.q) - 1 - idx
        assert n <= 63
        A(f"  s_waitcnt vmcnt({n})")
        self.q = self.q[idx + 1:]
F = Fifo()

vLANE, vKOFF, vLOFF, vWQOFF, vWOOFF = 1, 2, 3, 4, 5
vMASK = 6
vXX = 10
vN, vG = 11, 12
vLOG2E, vSCALE = 13, 14
vT = 15
vQB, vQA = 16, 32
vD = 48
vS = 64
vP = 68
vAOP = 72
vACC = 80
vTMP = 84
RING = 128
def slot(i): return f"v[{RING+4*i}:{RING+4*i+3}]"
def vr(b, n=4): return f"v[{b}:{b+n-1}]"

sW = 3
sX, sAK, sAV, sAWQ, sAWO = 8, 10, 12, 14, 16
sBK, sBV, sBWQ, sBWO = 20, 22, 24, 26
sWS = 28
sKB, sVB, sKA, sVA, sWQB, sWQA, sWOB, sWOA = 30, 32, 34, 36, 38, 40, 42, 44
sM1, sM2, sM3 = 46, 48, 50
sC0 = 52
sU = 60
sH, sB, sHALF, sBH = 62, 63, 64, 65
sT0, sT1, sT2, sT3 = 66, 67, 68, 69
sMX, sL = 70, 71
sYB = 72
sMLB = 74

LQ = 0
LO = 8192
LML = 16384 - 256
LDS_BYTES_NEEDED = 8192 + 8192 + 256

A(".globl attn_kernel\n.p2align 8\n.type attn_kernel,@function\nattn_kernel:")
A("  s_cmp_ge_u32 s2, 256\n  s_cbranch_scc1 L_end1")
A("  s_load_dwordx8 s[8:15], s[0:1], 0")
A("  s_load_dwordx2 s[16:17], s[0:1], 32")
A("  s_load_dwordx8 s[20:27], s[0:1], 48")
A("  s_load_dwordx2 s[28:29], s[0:1], 104")
A(f"  v_lshrrev_b32 v{vT}, 6, v0")
A(f"  v_and_b32 v{vLANE}, 63, v0")
A(f"  v_readfirstlane_b32 s{sW}, v{vT}")
A(f"  v_and_b32 v{vN}, 15, v{vLANE}")
A(f"  v_lshrrev_b32 v{vG}, 4, v{vLANE}")
A(f"  v_bfe_u32 v{vT}, v{vLANE}, 2, 2")
A(f"  v_lshlrev_b32 v{vKOFF}, 8, v{vT}")
A(f"  v_lshl_add_u32 v{vKOFF}, v{vG}, 6, v{vKOFF}")
A(f"  v_and_b32 v{vT}, 3, v{vLANE}")
A(f"  v_lshl_add_u32 v{vKOFF}, v{vT}, 4, v{vKOFF}")
A(f"  v_lshlrev_b32 v{vLOFF}, 4, v{vLANE}")
A(f"  v_lshlrev_b32 v{vWQOFF}, 13, v{vG}")
A(f"  v_lshl_add_u32 v{vWQOFF}, v{vN}, 4, v{vWQOFF}")
A(f"  v_lshrrev_b32 v{vT}, 3, v{vN}")
A(f"  v_lshl_add_u32 v{vT}, v{vT}, 2, v{vG}")
A(f"  v_lshlrev_b32 v{vWOOFF}, 10, v{vT}")
A(f"  v_and_b32 v{vT}, 7, v{vN}")
A(f"  v_lshl_add_u32 v{vWOOFF}, v{vT}, 4, v{vWOOFF}")
A(f"  s_and_b32 s{sH}, s2, 31")
A(f"  s_bfe_u32 s{sB}, s2, 0x20005")
A(f"  s_lshr_b32 s{sHALF}, s2, 7")
A(f"  s_and_b32 s{sBH}, s2, 127")
A(f"  s_lshl_b32 s{sT0}, s{sBH}, 20")
A(f"  s_lshl_b32 s{sT1}, s{sW}, 13")
A(f"  s_add_u32 s{sT0}, s{sT0}, s{sT1}")
A(f"  s_add_u32 s{sT0}, s{sT0}, 4096")
A(f"  s_lshl_b32 s{sT1}, s{sHALF}, 19")
A(f"  s_add_u32 s{sT1}, s{sT1}, s{sT0}        ; A off")
A(f"  s_lshl_b32 s{sT2}, s{sHALF}, 17")
A(f"  s_add_u32 s{sT2}, s{sT2}, s{sT0}")
A(f"  s_add_u32 s{sT2}, s{sT2}, {3072*256}    ; B off")
A("  s_waitcnt lgkmcnt(0)")
def add64(d, base, off):
    A(f"  s_add_u32 s{d}, s{base}, s{off}\n  s_addc_u32 s{d+1}, s{base+1}, 0")
add64(sKB, sBK, sT2); add64(sVB, sBV, sT2); add64(sKA, sAK, sT1); add64(sVA, sAV, sT1)
A(f"  s_lshl_b32 s{sT0}, s{sW}, 19\n  s_lshl_b32 s{sT1}, s{sH}, 8\n  s_add_u32 s{sT0}, s{sT0}, s{sT1}")
add64(sWQB, sBWQ, sT0); add64(sWQA, sAWQ, sT0)
A(f"  s_lshl_b32 s{sT0}, s{sH}, 17\n  s_lshl_b32 s{sT1}, s{sW}, 7\n  s_add_u32 s{sT0}, s{sT0}, s{sT1}")
add64(sWOB, sBWO, sT0); add64(sWOA, sAWO, sT0)

class Seg:
    def __init__(self, name, sbase, kind):
        self.name, self.sbase, self.kind, self.n = name, sbase, kind, 0
    def load(self, sl):
        j = self.n; self.n += 1
        tag = (self.name, j)
        if self.kind in ("k", "v"):
            voff = vKOFF if self.kind == "k" else vLOFF
            i = j % 8
            A(f"  global_load_dwordx4 {slot(sl)}, v{voff}, s[{self.sbase}:{self.sbase+1}] offset:{-4096+1024*i} {KPOL}")
            if i == 7:
                A(f"  s_add_u32 s{self.sbase}, s{self.sbase}, 0x10000\n  s_addc_u32 s{self.sbase+1}, s{self.sbase+1}, 0")
        else:
            voff = vWQOFF if self.kind == "wq" else vWOOFF
            step = 32768 if self.kind == "wq" else 8192
            A(f"  global_load_dwordx4 {slot(sl)}, v{voff}, s[{self.sbase}:{self.sbase+1}] {WPOL}")
            A(f"  s_add_u32 s{self.sbase}, s{self.sbase}, {step}\n  s_addc_u32 s{self.sbase+1}, s{self.sbase+1}, 0")
        F.issue(tag)
        return tag
KB, VB, KA, VA = Seg("KB", sKB, "k"), Seg("VB", sVB, "v"), Seg("KA", sKA, "k"), Seg("VA", sVA, "v")
WQB, WQA, WOB, WOA = Seg("WQB", sWQB, "wq"), Seg("WQA", sWQA, "wq"), Seg("WOB", sWOB, "wo"), Seg("WOA", sWOA, "wo")
tags = {}

def fill(half, seg):
    for i in range(16):
        tags[half * 16 + i] = seg.load(half * 16 + i)

A(f"  s_lshl_b32 s{sT0}, s{sB}, 10\n  s_lshl_b32 s{sT1}, s{sW}, 7\n  s_add_u32 s{sT0}, s{sT0}, s{sT1}")
A(f"  v_lshl_add_u32 v{vT}, v{vN}, 2, v{vG}")
A(f"  v_lshlrev_b32 v{vT}, 1, v{vT}")
A(f"  v_add_u32 v{vT}, s{sT0}, v{vT}")
A(f"  global_load_ushort v{vXX}, v{vT}, s[{sX}:{sX+1}]")
F.issue("x")
fill(0, KB)
fill(1, WQB)
A(f"  v_mov_b32 v{vLOG2E}, {LOG2E:#x}\n  v_mov_b32 v{vSCALE}, {SCALE:#x}")
A(f"  v_and_b32 v{vT}, 1, v{vN}\n  v_lshlrev_b32 v{vT}, 4, v{vT}")
A(f"  v_mov_b32 v{vTMP}, 0xffff\n  v_lshlrev_b32 v{vTMP}, v{vT}, v{vTMP}   ; halfmask")
A(f"  v_bfe_u32 v{vT}, v{vN}, 1, 2          ; (n&7)>>1")
for w in range(4):
    A(f"  v_cmp_eq_u32 vcc, {w}, v{vT}")
    A("  s_nop 1")
    A(f"  v_cndmask_b32 v{vMASK+w}, 0, v{vTMP}, vcc")
for t, s in ((1, sM1), (2, sM2), (3, sM3)):
    m = 0x11111111 << t
    A(f"  s_mov_b32 s{s}, {m:#x}\n  s_mov_b32 s{s+1}, {m:#x}")
for i in range(4):
    m = 0x000f000f << (4 * i)
    A(f"  s_mov_b32 s{sC0+2*i}, {m:#x}\n  s_mov_b32 s{sC0+2*i+1}, {m:#x}")
A(f"  s_mov_b32 s{sU}, 0xff00ff00\n  s_mov_b32 s{sU+1}, 0xff00ff00")
A(f"  s_lshl_b32 s{sT0}, s{sBH}, 1\n  s_add_u32 s{sT0}, s{sT0}, s{sHALF}\n  s_lshl_b32 s{sT0}, s{sT0}, 12")
A(f"  s_lshl_b32 s{sT1}, s{sW}, 8\n  s_add_u32 s{sT0}, s{sT0}, s{sT1}")
add64(sYB, sWS, sT0)
A(f"  s_lshl_b32 s{sT0}, s{sBH}, 5\n  s_lshl_b32 s{sT1}, s{sHALF}, 3\n  s_add_u32 s{sT0}, s{sT0}, s{sT1}\n  s_add_u32 s{sT0}, s{sT0}, 0x100000")
add64(sMLB, sWS, sT0)
F.wait("x")
A(f"  v_lshl_or_b32 v{vXX}, v{vXX}, 16, v{vXX}")

DPPM = "row_mask:0xf bank_mask:0xf"
def build_aop(dst, wreg, bc, two=None):
    if two is None:
        for w in range(4):
            A(f"  v_and_b32_dpp v{dst+w}, v{wreg}, v{vMASK+w} row_newbcast:{bc} {DPPM}")
    else:
        A(f"  v_mov_b32_dpp v{vTMP+40}, v{wreg} row_newbcast:{bc} {DPPM}")
        A(f"  v_mov_b32_dpp v{vTMP+41}, v{two} row_newbcast:{bc} {DPPM}")
        A(f"  v_cndmask_b32 v{vTMP+40}, v{vTMP+40}, v{vTMP+41}, s[{sU}:{sU+1}]")
        for w in range(4):
            A(f"  v_and_b32 v{dst+w}, v{vTMP+40}, v{vMASK+w}")

def consume_diag(half, wfn, acc, refill, first_zero):
    A("  s_nop 1")
    build_aop(vAOP, *wfn(0))
    for i in range(16):
        sl = half * 16 + i
        if i < 15:
            build_aop(vAOP + 4 * ((i + 1) & 1), *wfn(i + 1))
        else:
            A("  s_nop 0")
        F.wait(tags[sl])
        c = "0" if (first_zero and i == 0) else vr(acc)
        A(f"  v_mfma_f32_16x16x32_bf16 {vr(acc)}, {vr(vAOP + 4 * (i & 1))}, {slot(sl)}, {c}")
        if refill is not None:
            tags[sl] = refill.load(sl)

def consume_qk(half, q, sdst, refill):
    for j in range(16):
        sl = half * 16 + j
        t, i = j >> 2, j & 3
        F.wait(tags[sl])
        c = "0" if i == 0 else vr(vD + 4 * t)
        A(f"  v_mfma_f32_16x16x32_bf16 {vr(vD+4*t)}, {slot(sl)}, {vr(q+4*i)}, {c}")
        if refill is not None:
            tags[sl] = refill.load(sl)
    A("  s_nop 7")
    for t in range(4):
        d = vTMP + t
        A(f"  v_mov_b32_dpp v{d}, v{vD+4*t} quad_perm:[0,0,0,0] {DPPM}")
        for s in range(1, 4):
            A(f"  v_add_f32_dpp v{d}, v{vD+4*t+s}, v{d} quad_perm:[{s},{s},{s},{s}] {DPPM}")
    A(f"  v_cndmask_b32 v{sdst}, v{vTMP}, v{vTMP+1}, s[{sM1}:{sM1+1}]")
    A(f"  v_cndmask_b32 v{sdst}, v{sdst}, v{vTMP+2}, s[{sM2}:{sM2+1}]")
    A(f"  v_cndmask_b32 v{sdst}, v{sdst}, v{vTMP+3}, s[{sM3}:{sM3+1}]")

def wave_reduce(op, v, sdst):
    for c in ("row_ror:8", "row_ror:4", "row_ror:2", "row_ror:1"):
        A("  s_nop 1")
        A(f"  {op}_dpp v{v}, v{v}, v{v} {c} {DPPM}")
    A("  s_nop 1")
    A(f"  {op}_dpp v{v}, v{v}, v{v} row_bcast:15 row_mask:0xa bank_mask:0xf")
    A("  s_nop 1")
    A(f"  {op}_dpp v{v}, v{v}, v{v} row_bcast:31 row_mask:0xc bank_mask:0xf")
    A("  s_nop 0")
    A(f"  v_readlane_b32 s{sdst}, v{v}, 63")
    A("  s_nop 1")

def round_bf16(regs):
    for r in regs:
        A(f"  v_cvt_pk_bf16_f32 v{r}, v{r}, v{r}")
        A(f"  v_and_b32 v{r}, 0xffff0000, v{r}")

def softmax(nb):
    S = [vS + k for k in range(nb)]
    round_bf16(S)
    for r in S: A(f"  v_mul_f32 v{r}, v{r}, v{vSCALE}")
    round_bf16(S)
    for r in S: A(f"  v_mul_f32 v{r}, v{r}, v{vLOG2E}")
    t = vTMP
    A(f"  v_mov_b32 v{t}, v{S[0]}")
    for r in S[1:]: A(f"  v_max_f32 v{t}, v{t}, v{r}")
    wave_reduce("v_max_f32", t, sMX)
    for r in S:
        A(f"  v_subrev_f32 v{r}, s{sMX}, v{r}")
    for r in S:
        A(f"  v_exp_f32 v{r}, v{r}")
    A("  s_nop 0")
    for k, r in enumerate(S):
        A(f"  v_cvt_pk_bf16_f32 v{vP+k}, v{r}, v{r}")
    A(f"  v_mov_b32 v{t}, v{S[0]}")
    for r in S[1:]: A(f"  v_add_f32 v{t}, v{t}, v{r}")
    wave_reduce("v_add_f32", t, sL)

def pv_wfn(preg):
    def f(j):
        t, i = j >> 2, j & 3
        return (preg, i * 4 + t, None)
    return f

def store_partial_lds(base, mlbase):
    A(f"  v_and_b32 v{vTMP}, 1, v{vG}")
    A(f"  v_lshlrev_b32 v{vTMP}, 4, v{vTMP}")
    A(f"  v_lshl_add_u32 v{vTMP}, v{vN}, 5, v{vTMP}")
    A(f"  s_lshl_b32 s{sT0}, s{sW}, 9")
    A(f"  v_add_u32 v{vTMP}, s{sT0}, v{vTMP}")
    if mlbase is not None:
        A(f"  s_lshl_b32 s{sT0}, s{sW}, 3")
        A(f"  v_mov_b32 v{vTMP+1}, s{sT0}")
        A(f"  v_mov_b32 v{vTMP+2}, s{sMX}")
        A(f"  v_mov_b32 v{vTMP+3}, s{sL}")
        A(f"  ds_write_b64 v{vTMP+1}, v[{vTMP+2}:{vTMP+3}] offset:{mlbase}")
        A("  s_nop 3")
    else:
        A("  s_nop 7")
    A(f"  ds_write_b128 v{vTMP}, {vr(vACC)} offset:{base}")

def build_q(base, qdst):
    a = vTMP
    A(f"  v_and_b32 v{a}, 3, v{vN}")
    A(f"  v_lshl_add_u32 v{a}, v{vG}, 2, v{a}")
    A(f"  v_lshlrev_b32 v{a}, 5, v{a}")
    acc = vTMP + 4
    buf = vTMP + 12
    for grp in range(2):
        for k in range(4):
            w = grp * 4 + k
            A(f"  ds_read_b128 {vr(buf+8*k)}, v{a} offset:{base + w*512}")
            A(f"  ds_read_b128 {vr(buf+8*k+4)}, v{a} offset:{base + w*512 + 16}")
        A("  s_waitcnt lgkmcnt(0)")
        for k in range(4):
            for e in range(8):
                if grp == 0 and k == 0:
                    A(f"  v_mov_b32 v{acc+e}, v{buf+e}")
                else:
                    A(f"  v_add_f32 v{acc+e}, v{acc+e}, v{buf+8*k+e}")
    for e in range(4):
        A(f"  v_cvt_pk_bf16_f32 v{buf+e}, v{acc+2*e}, v{acc+2*e+1}")
    for i in range(4):
        for e in range(4):
            A(f"  v_cndmask_b32 v{qdst+4*i+e}, 0, v{buf+e}, s[{sC0+2*i}:{sC0+2*i+1}]")

def combine(base, mlbase, p1, p2):
    ml = vTMP
    ov = vTMP + 16
    a = vTMP + 32
    A(f"  v_mov_b32 v{a}, 0")
    for k in range(4):
        A(f"  ds_read_b128 {vr(ml+4*k)}, v{a} offset:{mlbase + 16*k}")
    A(f"  v_lshl_add_u32 v{a+1}, v{vN}, 3, v{vG}")
    A(f"  v_lshlrev_b32 v{a+1}, 2, v{a+1}")
    for w in range(8):
        A(f"  ds_read2_b32 v[{ov+2*w}:{ov+2*w+1}], v{a+1} offset0:{(base + w*512)//4 % 256 if False else 0} offset1:4" if False else
          f"  ds_read_b32 v{ov+2*w}, v{a+1} offset:{base + w*512}\n  ds_read_b32 v{ov+2*w+1}, v{a+1} offset:{base + w*512 + 16}")
    A("  s_waitcnt lgkmcnt(0)")
    M, Lr = vTMP + 36, vTMP + 37
    A(f"  v_max3_f32 v{M}, v{ml}, v{ml+2}, v{ml+4}")
    A(f"  v_max3_f32 v{M}, v{M}, v{ml+6}, v{ml+8}")
    A(f"  v_max3_f32 v{M}, v{M}, v{ml+10}, v{ml+12}")
    A(f"  v_max_f32 v{M}, v{M}, v{ml+14}")
    for w in range(8):
        A(f"  v_sub_f32 v{ml+2*w}, v{ml+2*w}, v{M}")
    for w in range(8):
        A(f"  v_exp_f32 v{ml+2*w}, v{ml+2*w}")
    A("  s_nop 0")
    A(f"  v_mul_f32 v{Lr}, v{ml}, v{ml+1}")
    for w in range(1, 8):
        A(f"  v_fmac_f32 v{Lr}, v{ml+2*w}, v{ml+2*w+1}")
    A(f"  v_rcp_f32 v{a}, v{Lr}")
    A(f"  v_mul_f32 v{a+1}, v{ml}, v{ov}")
    A(f"  v_mul_f32 v{a+2}, v{ml}, v{ov+1}")
    for w in range(1, 8):
        A(f"  v_fmac_f32 v{a+1}, v{ml+2*w}, v{ov+2*w}")
        A(f"  v_fmac_f32 v{a+2}, v{ml+2*w}, v{ov+2*w+1}")
    A(f"  v_mul_f32 v{a+1}, v{a+1}, v{a}")
    A(f"  v_mul_f32 v{a+2}, v{a+2}, v{a}")
    A(f"  v_cvt_pk_bf16_f32 v{p1}, v{a+1}, v{a+1}")
    A(f"  v_cvt_pk_bf16_f32 v{p2}, v{a+2}, v{a+2}")

def publish(branch):
    M, Lr = vTMP + 36, vTMP + 37
    A("  s_nop 7")
    for b in range(4):
        A(f"  v_mov_b32 v{vTMP+b}, 0")
    A("  s_nop 1")
    for b in range(4):
        A(f"  v_permlane32_swap_b32 v{vACC+b}, v{vTMP+b}")
    A("  s_nop 1")
    for b in range(4):
        A(f"  v_add_f32_dpp v{vTMP+4+b}, v{vTMP+b}, v{vACC+b} row_shl:8 {DPPM}")
    A(f"  v_lshlrev_b32 v{vTMP+8}, 5, v{vN}")
    A(f"  v_lshl_add_u32 v{vTMP+8}, v{vG}, 4, v{vTMP+8}")
    A("  s_mov_b64 s[76:77], exec")
    A("  s_mov_b32 exec_lo, 0x00ff00ff\n  s_mov_b32 exec_hi, 0")
    A(f"  global_store_dwordx4 v{vTMP+8}, {vr(vTMP+4)}, s[{sYB}:{sYB+1}] offset:{branch*2048}")
    F.issue(("st", branch, 0))
    A("  s_mov_b32 exec_lo, 1")
    A(f"  v_mov_b32 v{vTMP+9}, 0")
    A(f"  s_cmp_lg_u32 s{sW}, 0\n  s_cbranch_scc1 L_noml{branch}")
    A(f"  global_store_dwordx2 v{vTMP+9}, v[{M}:{Lr}], s[{sMLB}:{sMLB+1}] offset:{branch*16}")
    A(f"L_noml{branch}:")
    A("  s_mov_b64 exec, s[76:77]")

LQB, LQA = 0, 4096
LOB, LOA = 8192, 12288
LMLB, LMLA = 16384, 16384 + 64

consume_diag(1, lambda i: (vXX, i, None), vACC, WQA, True)
store_partial_lds(LQB, None)
consume_diag(1, lambda i: (vXX, i, None), vACC, VB, True)
store_partial_lds(LQA, None)
A("  s_waitcnt lgkmcnt(0)\n  s_barrier")
build_q(LQB, vQB)
build_q(LQA, vQA)
A("  s_nop 1")
consume_qk(0, vQB, vS, KA)
softmax(1)
consume_diag(1, pv_wfn(vP), vACC, KA, True)
store_partial_lds(LOB, LMLB)
consume_qk(0, vQA, vS + 0, WOB)
consume_qk(1, vQA, vS + 1, KA)
A("  s_waitcnt lgkmcnt(0)\n  s_barrier")
combine(LOB, LMLB, vP, vP + 1)
consume_diag(0, lambda i: (vP, i, vP + 1), vACC, KA, True)
publish(1)
consume_qk(1, vQA, vS + 2, VA)
consume_qk(0, vQA, vS + 3, VA)
softmax(4)
consume_diag(1, pv_wfn(vP + 0), vACC, VA, True)
consume_diag(0, pv_wfn(vP + 1), vACC, VA, False)
consume_diag(1, pv_wfn(vP + 2), vACC, WOA, False)
consume_diag(0, pv_wfn(vP + 3), vACC, None, False)
store_partial_lds(LOA, LMLA)
A("  s_waitcnt lgkmcnt(0)\n  s_barrier")
combine(LOA, LMLA, vP, vP + 1)
consume_diag(1, lambda i: (vP, i, vP + 1), vACC, None, True)
publish(0)
A("L_end1:\n  s_endpgm")

A(".globl final_kernel\n.p2align 8\n.type final_kernel,@function\nfinal_kernel:")
A("  s_cmp_ge_u32 s2, 128\n  s_cbranch_scc1 L_end2")
A("  s_load_dwordx2 s[4:5], s[0:1], 0      ; x")
A("  s_load_dwordx4 s[8:11], s[0:1], 80")
A("  s_load_dwordx2 s[12:13], s[0:1], 104  ; ws")
A("  s_lshr_b32 s14, s2, 5   ; b\n  s_and_b32 s15, s2, 31   ; cb")
A("  v_and_b32 v1, 3, v0      ; c4\n  v_lshrrev_b32 v2, 2, v0   ; sg")
A("  s_lshl_b32 s16, s14, 18\n  s_lshl_b32 s17, s15, 6\n  s_add_u32 s16, s16, s17")
A("  v_lshlrev_b32 v3, 14, v2\n  v_lshl_add_u32 v3, v1, 4, v3\n  v_add_u32 v3, s16, v3")
A("  v_add_u32 v4, 0x2000, v3")
A("  s_lshl_b32 s16, s14, 10\n  s_add_u32 s16, s16, 0x100000")
A("  v_lshlrev_b32 v5, 6, v2\n  v_add_u32 v5, s16, v5")
A("  v_lshlrev_b32 v6, 4, v0\n  s_lshl_b32 s16, s14, 10\n  v_add_u32 v7, s16, v6")
A("  s_waitcnt lgkmcnt(0)")
A("  global_load_dwordx4 v[8:11], v7, s[4:5]")
A("  global_load_dwordx4 v[12:15], v6, s[8:9]")
for k in range(4):
    A(f"  global_load_dwordx4 v[{16+4*k}:{19+4*k}], v5, s[12:13] offset:{16*k}")
for hh in range(2):
    for half in range(2):
        for br in range(2):
            r = 32 + 4 * (hh * 4 + half * 2 + br)
            off = half * 4096 + br * 2048
            if off < 4096:
                A(f"  global_load_dwordx4 v[{r}:{r+3}], v{3+hh}, s[12:13] offset:{off}")
            else:
                A(f"  v_add_u32 v{64}, 0x1000, v{3+hh}")
                A(f"  global_load_dwordx4 v[{r}:{r+3}], v64, s[12:13] offset:{off-4096}")
A("  s_waitcnt vmcnt(12)")
A("  v_mov_b32 v70, 0")
for e in range(4):
    A(f"  v_lshlrev_b32 v65, 16, v{8+e}\n  v_lshlrev_b32 v66, 16, v{12+e}\n  v_mul_f32 v65, v65, v66")
    A(f"  v_and_b32 v67, 0xffff0000, v{8+e}\n  v_and_b32 v68, 0xffff0000, v{12+e}\n  v_mul_f32 v67, v67, v68")
    A("  v_cvt_pk_bf16_f32 v65, v65, v67")
    A("  v_lshlrev_b32 v66, 16, v65\n  v_and_b32 v67, 0xffff0000, v65")
    A("  v_add_f32 v70, v70, v66\n  v_add_f32 v70, v70, v67")
wave_reduce("v_add_f32", 70, 20)
A("  v_mov_b32 v70, s20")
A("  v_cvt_pk_bf16_f32 v70, v70, v70\n  v_and_b32 v70, 0xffff0000, v70")
A(f"  v_mul_f32 v70, {LOG2E:#x}, v70")
A("  v_exp_f32 v70, -v70")
A("  s_nop 0\n  v_add_f32 v70, 1.0, v70\n  v_rcp_f32 v70, v70\n  s_nop 0")
A("  v_cvt_pk_bf16_f32 v70, v70, v70\n  v_and_b32 v70, 0xffff0000, v70     ; g")
A("  v_sub_f32 v71, 1.0, v70\n  v_cvt_pk_bf16_f32 v71, v71, v71\n  v_and_b32 v71, 0xffff0000, v71   ; 1-g")
A("  s_waitcnt vmcnt(8)")
for k in range(4):
    r = 16 + 4 * k
    A(f"  v_max_f32 v65, v{r}, v{r+2}")
    A(f"  v_sub_f32 v{r}, v{r}, v65\n  v_sub_f32 v{r+2}, v{r+2}, v65")
    A(f"  v_exp_f32 v{r}, v{r}\n  v_exp_f32 v{r+2}, v{r+2}\n  s_nop 0")
    A(f"  v_mul_f32 v{r}, v{r}, v{r+1}\n  v_mul_f32 v{r+2}, v{r+2}, v{r+3}")
    A(f"  v_add_f32 v65, v{r}, v{r+2}\n  v_rcp_f32 v65, v65\n  s_nop 0")
    A(f"  v_mul_f32 v{r}, v{r}, v65\n  v_mul_f32 v{r+2}, v{r+2}, v65")
A("  s_waitcnt vmcnt(0)")
for br in range(2):
    first = True
    for hh in range(2):
        for half in range(2):
            r = 32 + 4 * (hh * 4 + half * 2 + br)
            al = 16 + 4 * (hh * 2 + br) + 2 * half
            for e in range(4):
                if first: A(f"  v_mul_f32 v{72+4*br+e}, v{al}, v{r+e}")
                else: A(f"  v_fmac_f32 v{72+4*br+e}, v{al}, v{r+e}")
            first = False
for c in ("row_ror:4", "row_ror:8"):
    A("  s_nop 1")
    for e in range(8):
        A(f"  v_add_f32_dpp v{72+e}, v{72+e}, v{72+e} {c} {DPPM}")
for sw in ("v_permlane16_swap_b32", "v_permlane32_swap_b32"):
    for e in range(8):
        A(f"  v_mov_b32 v{80+e}, v{72+e}")
    A("  s_nop 1")
    for e in range(8):
        A(f"  {sw} v{72+e}, v{80+e}")
    A("  s_nop 1")
    for e in range(8):
        A(f"  v_add_f32 v{72+e}, v{72+e}, v{80+e}")
round_bf16(range(72, 80))
for e in range(4):
    A(f"  v_mul_f32 v{72+e}, v70, v{72+e}\n  v_mul_f32 v{76+e}, v71, v{76+e}")
round_bf16(range(72, 80))
for e in range(4):
    A(f"  v_add_f32 v{72+e}, v{72+e}, v{76+e}")
A("  v_cvt_pk_bf16_f32 v72, v72, v73\n  v_cvt_pk_bf16_f32 v73, v74, v75")
A("  s_lshl_b32 s16, s14, 10\n  s_lshl_b32 s17, s15, 5\n  s_add_u32 s16, s16, s17")
A("  v_lshlrev_b32 v1, 3, v1\n  v_add_u32 v1, s16, v1")
A("  s_mov_b64 exec, 15")
A("  global_store_dwordx2 v1, v[72:73], s[10:11]")
A("L_end2:\n  s_endpgm")

A('.section .rodata,"a"')
for name, nv, ns in (("attn_kernel", 256, 80), ("final_kernel", 88, 32)):
    A(f""".p2align 6
.amdhsa_kernel {name}
  .amdhsa_next_free_vgpr {nv}
  .amdhsa_next_free_sgpr {ns}
  .amdhsa_accum_offset {(nv+3)//4*4}
  .amdhsa_group_segment_fixed_size 0
  .amdhsa_kernarg_size 112
  .amdhsa_user_sgpr_count 2
  .amdhsa_user_sgpr_kernarg_segment_ptr 1
  .amdhsa_system_sgpr_workgroup_id_x 1
.end_amdhsa_kernel""")
txt = "\n".join(L) + "\n"
txt = txt.replace(f"lds={LDS_BYTES}", "lds=16640")
open(out, "w").write(txt)
```

```python
import sys
out = sys.argv[1]
WPOL = sys.argv[2] if len(sys.argv) > 2 else "nt"
WPOL = "" if WPOL == "none" else WPOL
KPOL = "nt"
STAMP = len(sys.argv) > 3 and sys.argv[3] == "stamp"
NW = 8
L = []
def A(s): L.append(s)

HEADER = open("gated_mix__mha_block_cached__sliding_block_cached__decode.s.ref").read().split("\n")
for line in HEADER:
    if line.startswith(";") and "@launch" not in line and "Override" not in line and "grid=ceil" not in line:
        A(line)
LDS_BYTES = 16384
A(f"; @launch kernel=attn_kernel grid=(256,1,1) block=(512,1,1) lds={LDS_BYTES}")
A("; @launch kernel=final_kernel grid=(128,1,1) block=(64,1,1) lds=0")
A('.amdgcn_target "amdgcn-amd-amdhsa--gfx950"\n.text')

LOG2E = 0x3fb8aa3b
SCALE = 0x3db504f3

class Fifo:
    def __init__(self): self.q = []
    def issue(self, tag): self.q.append(tag)
    def wait(self, tag):
        if tag not in self.q: return
        idx = self.q.index(tag)
        n = len(self.q) - 1 - idx
        assert n <= 63
        A(f"  s_waitcnt vmcnt({n})")
        self.q = self.q[idx + 1:]
F = Fifo()

vLANE, vKOFF, vLOFF, vWQOFF, vWOOFF = 1, 2, 3, 4, 5
vMASK = 6
vXX = 10
vN, vG = 11, 12
vLOG2E, vSCALE = 13, 14
vT = 15
vQB, vQA = 16, 32
vD = 48
vS = 64
vP = 68
vAOP = 72
vACC = 80
vTMP = 84
RING = 128
def slot(i): return f"v[{RING+4*i}:{RING+4*i+3}]"
def vr(b, n=4): return f"v[{b}:{b+n-1}]"

sW = 3
sX, sAK, sAV, sAWQ, sAWO = 8, 10, 12, 14, 16
sBK, sBV, sBWQ, sBWO = 20, 22, 24, 26
sWS = 28
sKB, sVB, sKA, sVA, sWQB, sWQA, sWOB, sWOA = 30, 32, 34, 36, 38, 40, 42, 44
sM1, sM2, sM3 = 46, 48, 50
sC0 = 52
sU = 60
sH, sB, sHALF, sBH = 62, 63, 64, 65
sT0, sT1, sT2, sT3 = 66, 67, 68, 69
sMX, sL = 70, 71
sYB = 72
sMLB = 74

LQ = 0
LO = 8192
LML = 16384 - 256
LDS_BYTES_NEEDED = 8192 + 8192 + 256

A(".globl attn_kernel\n.p2align 8\n.type attn_kernel,@function\nattn_kernel:")
A("  s_cmp_ge_u32 s2, 256\n  s_cbranch_scc1 L_end1")
if STAMP: A("  s_memrealtime s[84:85]")
A("  s_load_dwordx8 s[8:15], s[0:1], 0")
A("  s_load_dwordx2 s[16:17], s[0:1], 32")
A("  s_load_dwordx8 s[20:27], s[0:1], 48")
A("  s_load_dwordx2 s[28:29], s[0:1], 104")
A("  s_load_dwordx2 s[78:79], s[0:1], 96")
A(f"  v_lshrrev_b32 v{vT}, 6, v0")
A(f"  v_and_b32 v{vLANE}, 63, v0")
A(f"  v_readfirstlane_b32 s{sW}, v{vT}")
A(f"  v_and_b32 v{vN}, 15, v{vLANE}")
A(f"  v_lshrrev_b32 v{vG}, 4, v{vLANE}")
A(f"  v_bfe_u32 v{vT}, v{vLANE}, 2, 2")
A(f"  v_lshlrev_b32 v{vKOFF}, 8, v{vT}")
A(f"  v_lshl_add_u32 v{vKOFF}, v{vG}, 6, v{vKOFF}")
A(f"  v_and_b32 v{vT}, 3, v{vLANE}")
A(f"  v_lshl_add_u32 v{vKOFF}, v{vT}, 4, v{vKOFF}")
A(f"  v_lshlrev_b32 v{vLOFF}, 4, v{vLANE}")
A(f"  v_lshlrev_b32 v{vWQOFF}, 13, v{vG}")
A(f"  v_lshl_add_u32 v{vWQOFF}, v{vN}, 4, v{vWQOFF}")
A(f"  v_lshrrev_b32 v{vT}, 3, v{vN}")
A(f"  v_lshl_add_u32 v{vT}, v{vT}, 2, v{vG}")
A(f"  v_lshlrev_b32 v{vWOOFF}, 10, v{vT}")
A(f"  v_and_b32 v{vT}, 7, v{vN}")
A(f"  v_lshl_add_u32 v{vWOOFF}, v{vT}, 4, v{vWOOFF}")
A(f"  s_and_b32 s{sH}, s2, 31")
A(f"  s_bfe_u32 s{sB}, s2, 0x20005")
A(f"  s_lshr_b32 s{sHALF}, s2, 7")
A(f"  s_and_b32 s{sBH}, s2, 127")
A(f"  s_lshl_b32 s{sT0}, s{sBH}, 20")
A(f"  s_lshl_b32 s{sT1}, s{sW}, 13")
A(f"  s_add_u32 s{sT0}, s{sT0}, s{sT1}")
A(f"  s_add_u32 s{sT0}, s{sT0}, 4096")
A(f"  s_lshl_b32 s{sT1}, s{sHALF}, 19")
A(f"  s_add_u32 s{sT1}, s{sT1}, s{sT0}        ; A off")
A(f"  s_lshl_b32 s{sT2}, s{sHALF}, 17")
A(f"  s_add_u32 s{sT2}, s{sT2}, s{sT0}")
A(f"  s_add_u32 s{sT2}, s{sT2}, {3072*256}    ; B off")
A("  s_waitcnt lgkmcnt(0)")
def add64(d, base, off):
    A(f"  s_add_u32 s{d}, s{base}, s{off}\n  s_addc_u32 s{d+1}, s{base+1}, 0")
add64(sKB, sBK, sT2); add64(sVB, sBV, sT2); add64(sKA, sAK, sT1); add64(sVA, sAV, sT1)
A(f"  s_lshl_b32 s{sT0}, s{sW}, 19\n  s_lshl_b32 s{sT1}, s{sH}, 8\n  s_add_u32 s{sT0}, s{sT0}, s{sT1}")
add64(sWQB, sBWQ, sT0); add64(sWQA, sAWQ, sT0)
A(f"  s_lshl_b32 s{sT0}, s{sH}, 17\n  s_lshl_b32 s{sT1}, s{sW}, 7\n  s_add_u32 s{sT0}, s{sT0}, s{sT1}")
add64(sWOB, sBWO, sT0); add64(sWOA, sAWO, sT0)

class Seg:
    def __init__(self, name, sbase, kind):
        self.name, self.sbase, self.kind, self.n = name, sbase, kind, 0
    def load(self, sl):
        j = self.n; self.n += 1
        tag = (self.name, j)
        if self.kind in ("k", "v"):
            voff = vKOFF if self.kind == "k" else vLOFF
            i = j % 8
            A(f"  global_load_dwordx4 {slot(sl)}, v{voff}, s[{self.sbase}:{self.sbase+1}] offset:{-4096+1024*i} {KPOL}")
            if i == 7:
                A(f"  s_add_u32 s{self.sbase}, s{self.sbase}, 0x10000\n  s_addc_u32 s{self.sbase+1}, s{self.sbase+1}, 0")
        else:
            voff = vWQOFF if self.kind == "wq" else vWOOFF
            step = 32768 if self.kind == "wq" else 8192
            A(f"  global_load_dwordx4 {slot(sl)}, v{voff}, s[{self.sbase}:{self.sbase+1}] {WPOL}")
            A(f"  s_add_u32 s{self.sbase}, s{self.sbase}, {step}\n  s_addc_u32 s{self.sbase+1}, s{self.sbase+1}, 0")
        F.issue(tag)
        return tag
KB, VB, KA, VA = Seg("KB", sKB, "k"), Seg("VB", sVB, "v"), Seg("KA", sKA, "k"), Seg("VA", sVA, "v")
WQB, WQA, WOB, WOA = Seg("WQB", sWQB, "wq"), Seg("WQA", sWQA, "wq"), Seg("WOB", sWOB, "wo"), Seg("WOA", sWOA, "wo")
tags = {}

def fill(half, seg):
    for i in range(16):
        tags[half * 16 + i] = seg.load(half * 16 + i)

A(f"  s_lshl_b32 s{sT0}, s{sB}, 10\n  s_lshl_b32 s{sT1}, s{sW}, 7\n  s_add_u32 s{sT0}, s{sT0}, s{sT1}")
A(f"  v_lshl_add_u32 v{vT}, v{vN}, 2, v{vG}")
A(f"  v_lshlrev_b32 v{vT}, 1, v{vT}")
A(f"  v_add_u32 v{vT}, s{sT0}, v{vT}")
A(f"  global_load_ushort v{vXX}, v{vT}, s[{sX}:{sX+1}]")
F.issue("x")
fill(0, KB)
fill(1, WQB)
A(f"  v_mov_b32 v{vLOG2E}, {LOG2E:#x}\n  v_mov_b32 v{vSCALE}, {SCALE:#x}")
A(f"  v_and_b32 v{vT}, 1, v{vN}\n  v_lshlrev_b32 v{vT}, 4, v{vT}")
A(f"  v_mov_b32 v{vTMP}, 0xffff\n  v_lshlrev_b32 v{vTMP}, v{vT}, v{vTMP}   ; halfmask")
A(f"  v_bfe_u32 v{vT}, v{vN}, 1, 2          ; (n&7)>>1")
for w in range(4):
    A(f"  v_cmp_eq_u32 vcc, {w}, v{vT}")
    A("  s_nop 1")
    A(f"  v_cndmask_b32 v{vMASK+w}, 0, v{vTMP}, vcc")
for t, s in ((1, sM1), (2, sM2), (3, sM3)):
    m = 0x11111111 << t
    A(f"  s_mov_b32 s{s}, {m:#x}\n  s_mov_b32 s{s+1}, {m:#x}")
for i in range(4):
    m = 0x000f000f << (4 * i)
    A(f"  s_mov_b32 s{sC0+2*i}, {m:#x}\n  s_mov_b32 s{sC0+2*i+1}, {m:#x}")
A(f"  s_mov_b32 s{sU}, 0xff00ff00\n  s_mov_b32 s{sU+1}, 0xff00ff00")
A(f"  s_lshl_b32 s{sT0}, s{sBH}, 1\n  s_add_u32 s{sT0}, s{sT0}, s{sHALF}\n  s_lshl_b32 s{sT0}, s{sT0}, 12")
A(f"  s_lshl_b32 s{sT1}, s{sW}, 8\n  s_add_u32 s{sT0}, s{sT0}, s{sT1}")
add64(sYB, sWS, sT0)
A(f"  s_lshl_b32 s{sT0}, s{sBH}, 5\n  s_lshl_b32 s{sT1}, s{sHALF}, 3\n  s_add_u32 s{sT0}, s{sT0}, s{sT1}\n  s_add_u32 s{sT0}, s{sT0}, 0x100000")
add64(sMLB, sWS, sT0)
F.wait("x")
A(f"  v_lshl_or_b32 v{vXX}, v{vXX}, 16, v{vXX}")

DPPM = "row_mask:0xf bank_mask:0xf"
def stamp(k, drain=False):
    if not STAMP: return
    A(f"  s_cmp_lg_u32 s{sW}, 0\n  s_cbranch_scc1 L_st{k}")
    if drain: A("  s_waitcnt vmcnt(0)")
    A("  s_memrealtime s[80:81]\n  s_waitcnt lgkmcnt(0)")
    if k == 0: A("  s_mov_b32 s80, s84")
    A("  s_mov_b64 s[82:83], exec\n  s_mov_b64 exec, 1")
    A(f"  v_mov_b32 v126, s80\n  v_not_b32 v127, v126\n  v_mov_b32 v125, {8*k}")
    A("  global_atomic_umax v125, v126, s[78:79]\n  global_atomic_umax v125, v127, s[78:79] offset:4")
    A("  s_mov_b64 exec, s[82:83]")
    A(f"L_st{k}:")
def build_aop(dst, wreg, bc, two=None):
    if two is None:
        for w in range(4):
            A(f"  v_and_b32_dpp v{dst+w}, v{wreg}, v{vMASK+w} row_newbcast:{bc} {DPPM}")
    else:
        A(f"  v_mov_b32_dpp v{vTMP+40}, v{wreg} row_newbcast:{bc} {DPPM}")
        A(f"  v_mov_b32_dpp v{vTMP+41}, v{two} row_newbcast:{bc} {DPPM}")
        A(f"  v_cndmask_b32 v{vTMP+40}, v{vTMP+40}, v{vTMP+41}, s[{sU}:{sU+1}]")
        for w in range(4):
            A(f"  v_and_b32 v{dst+w}, v{vTMP+40}, v{vMASK+w}")

def consume_diag(half, wfn, acc, refill, first_zero):
    A("  s_nop 1")
    build_aop(vAOP, *wfn(0))
    for i in range(16):
        sl = half * 16 + i
        if i < 15:
            build_aop(vAOP + 4 * ((i + 1) & 1), *wfn(i + 1))
        else:
            A("  s_nop 0")
        F.wait(tags[sl])
        c = "0" if (first_zero and i == 0) else vr(acc)
        A(f"  v_mfma_f32_16x16x32_bf16 {vr(acc)}, {vr(vAOP + 4 * (i & 1))}, {slot(sl)}, {c}")
        if refill is not None:
            tags[sl] = refill.load(sl)

def consume_qk(half, q, sdst, refill):
    for j in range(16):
        sl = half * 16 + j
        t, i = j >> 2, j & 3
        F.wait(tags[sl])
        c = "0" if i == 0 else vr(vD + 4 * t)
        A(f"  v_mfma_f32_16x16x32_bf16 {vr(vD+4*t)}, {slot(sl)}, {vr(q+4*i)}, {c}")
        if refill is not None:
            tags[sl] = refill.load(sl)
    A("  s_nop 7")
    for t in range(4):
        d = vTMP + t
        A(f"  v_mov_b32_dpp v{d}, v{vD+4*t} quad_perm:[0,0,0,0] {DPPM}")
        for s in range(1, 4):
            A(f"  v_add_f32_dpp v{d}, v{vD+4*t+s}, v{d} quad_perm:[{s},{s},{s},{s}] {DPPM}")
    A(f"  v_cndmask_b32 v{sdst}, v{vTMP}, v{vTMP+1}, s[{sM1}:{sM1+1}]")
    A(f"  v_cndmask_b32 v{sdst}, v{sdst}, v{vTMP+2}, s[{sM2}:{sM2+1}]")
    A(f"  v_cndmask_b32 v{sdst}, v{sdst}, v{vTMP+3}, s[{sM3}:{sM3+1}]")

def wave_reduce(op, v, sdst):
    for c in ("row_ror:8", "row_ror:4", "row_ror:2", "row_ror:1"):
        A("  s_nop 1")
        A(f"  {op}_dpp v{v}, v{v}, v{v} {c} {DPPM}")
    A("  s_nop 1")
    A(f"  {op}_dpp v{v}, v{v}, v{v} row_bcast:15 row_mask:0xa bank_mask:0xf")
    A("  s_nop 1")
    A(f"  {op}_dpp v{v}, v{v}, v{v} row_bcast:31 row_mask:0xc bank_mask:0xf")
    A("  s_nop 0")
    A(f"  v_readlane_b32 s{sdst}, v{v}, 63")
    A("  s_nop 1")

def round_bf16(regs):
    for r in regs:
        A(f"  v_cvt_pk_bf16_f32 v{r}, v{r}, v{r}")
        A(f"  v_and_b32 v{r}, 0xffff0000, v{r}")

def softmax(nb):
    S = [vS + k for k in range(nb)]
    round_bf16(S)
    for r in S: A(f"  v_mul_f32 v{r}, v{r}, v{vSCALE}")
    round_bf16(S)
    for r in S: A(f"  v_mul_f32 v{r}, v{r}, v{vLOG2E}")
    t = vTMP
    A(f"  v_mov_b32 v{t}, v{S[0]}")
    for r in S[1:]: A(f"  v_max_f32 v{t}, v{t}, v{r}")
    wave_reduce("v_max_f32", t, sMX)
    for r in S:
        A(f"  v_subrev_f32 v{r}, s{sMX}, v{r}")
    for r in S:
        A(f"  v_exp_f32 v{r}, v{r}")
    A("  s_nop 0")
    for k, r in enumerate(S):
        A(f"  v_cvt_pk_bf16_f32 v{vP+k}, v{r}, v{r}")
    A(f"  v_mov_b32 v{t}, v{S[0]}")
    for r in S[1:]: A(f"  v_add_f32 v{t}, v{t}, v{r}")
    wave_reduce("v_add_f32", t, sL)

def pv_wfn(preg):
    def f(j):
        t, i = j >> 2, j & 3
        return (preg, i * 4 + t, None)
    return f

def store_partial_lds(base, mlbase):
    A(f"  v_and_b32 v{vTMP}, 1, v{vG}")
    A(f"  v_lshlrev_b32 v{vTMP}, 4, v{vTMP}")
    A(f"  v_lshl_add_u32 v{vTMP}, v{vN}, 5, v{vTMP}")
    A(f"  s_lshl_b32 s{sT0}, s{sW}, 9")
    A(f"  v_add_u32 v{vTMP}, s{sT0}, v{vTMP}")
    if mlbase is not None:
        A(f"  s_lshl_b32 s{sT0}, s{sW}, 3")
        A(f"  v_mov_b32 v{vTMP+1}, s{sT0}")
        A(f"  v_mov_b32 v{vTMP+2}, s{sMX}")
        A(f"  v_mov_b32 v{vTMP+3}, s{sL}")
        A(f"  ds_write_b64 v{vTMP+1}, v[{vTMP+2}:{vTMP+3}] offset:{mlbase}")
        A("  s_nop 3")
    else:
        A("  s_nop 7")
    A(f"  ds_write_b128 v{vTMP}, {vr(vACC)} offset:{base}")

def build_q(base, qdst):
    a = vTMP
    A(f"  v_and_b32 v{a}, 3, v{vN}")
    A(f"  v_lshl_add_u32 v{a}, v{vG}, 2, v{a}")
    A(f"  v_lshlrev_b32 v{a}, 5, v{a}")
    acc = vTMP + 4
    buf = vTMP + 12
    for grp in range(2):
        for k in range(4):
            w = grp * 4 + k
            A(f"  ds_read_b128 {vr(buf+8*k)}, v{a} offset:{base + w*512}")
            A(f"  ds_read_b128 {vr(buf+8*k+4)}, v{a} offset:{base + w*512 + 16}")
        A("  s_waitcnt lgkmcnt(0)")
        for k in range(4):
            for e in range(8):
                if grp == 0 and k == 0:
                    A(f"  v_mov_b32 v{acc+e}, v{buf+e}")
                else:
                    A(f"  v_add_f32 v{acc+e}, v{acc+e}, v{buf+8*k+e}")
    for e in range(4):
        A(f"  v_cvt_pk_bf16_f32 v{buf+e}, v{acc+2*e}, v{acc+2*e+1}")
    for i in range(4):
        for e in range(4):
            A(f"  v_cndmask_b32 v{qdst+4*i+e}, 0, v{buf+e}, s[{sC0+2*i}:{sC0+2*i+1}]")

def combine(base, mlbase, p1, p2):
    ml = vTMP
    ov = vTMP + 16
    a = vTMP + 32
    A(f"  v_mov_b32 v{a}, 0")
    for k in range(4):
        A(f"  ds_read_b128 {vr(ml+4*k)}, v{a} offset:{mlbase + 16*k}")
    A(f"  v_lshl_add_u32 v{a+1}, v{vN}, 3, v{vG}")
    A(f"  v_lshlrev_b32 v{a+1}, 2, v{a+1}")
    for w in range(8):
        A(f"  ds_read2_b32 v[{ov+2*w}:{ov+2*w+1}], v{a+1} offset0:{(base + w*512)//4 % 256 if False else 0} offset1:4" if False else
          f"  ds_read_b32 v{ov+2*w}, v{a+1} offset:{base + w*512}\n  ds_read_b32 v{ov+2*w+1}, v{a+1} offset:{base + w*512 + 16}")
    A("  s_waitcnt lgkmcnt(0)")
    M, Lr = vTMP + 36, vTMP + 37
    A(f"  v_max3_f32 v{M}, v{ml}, v{ml+2}, v{ml+4}")
    A(f"  v_max3_f32 v{M}, v{M}, v{ml+6}, v{ml+8}")
    A(f"  v_max3_f32 v{M}, v{M}, v{ml+10}, v{ml+12}")
    A(f"  v_max_f32 v{M}, v{M}, v{ml+14}")
    for w in range(8):
        A(f"  v_sub_f32 v{ml+2*w}, v{ml+2*w}, v{M}")
    for w in range(8):
        A(f"  v_exp_f32 v{ml+2*w}, v{ml+2*w}")
    A("  s_nop 0")
    A(f"  v_mul_f32 v{Lr}, v{ml}, v{ml+1}")
    for w in range(1, 8):
        A(f"  v_fmac_f32 v{Lr}, v{ml+2*w}, v{ml+2*w+1}")
    A(f"  v_rcp_f32 v{a}, v{Lr}")
    A(f"  v_mul_f32 v{a+1}, v{ml}, v{ov}")
    A(f"  v_mul_f32 v{a+2}, v{ml}, v{ov+1}")
    for w in range(1, 8):
        A(f"  v_fmac_f32 v{a+1}, v{ml+2*w}, v{ov+2*w}")
        A(f"  v_fmac_f32 v{a+2}, v{ml+2*w}, v{ov+2*w+1}")
    A(f"  v_mul_f32 v{a+1}, v{a+1}, v{a}")
    A(f"  v_mul_f32 v{a+2}, v{a+2}, v{a}")
    A(f"  v_cvt_pk_bf16_f32 v{p1}, v{a+1}, v{a+1}")
    A(f"  v_cvt_pk_bf16_f32 v{p2}, v{a+2}, v{a+2}")

def publish(branch):
    M, Lr = vTMP + 36, vTMP + 37
    A("  s_nop 7")
    for b in range(4):
        A(f"  v_mov_b32 v{vTMP+b}, 0")
    A("  s_nop 1")
    for b in range(4):
        A(f"  v_permlane32_swap_b32 v{vACC+b}, v{vTMP+b}")
    A("  s_nop 1")
    for b in range(4):
        A(f"  v_add_f32_dpp v{vTMP+4+b}, v{vTMP+b}, v{vACC+b} row_shl:8 {DPPM}")
    A(f"  v_lshlrev_b32 v{vTMP+8}, 5, v{vN}")
    A(f"  v_lshl_add_u32 v{vTMP+8}, v{vG}, 4, v{vTMP+8}")
    A("  s_mov_b64 s[76:77], exec")
    A("  s_mov_b32 exec_lo, 0x00ff00ff\n  s_mov_b32 exec_hi, 0")
    A(f"  global_store_dwordx4 v{vTMP+8}, {vr(vTMP+4)}, s[{sYB}:{sYB+1}] offset:{branch*2048}")
    F.issue(("st", branch, 0))
    A("  s_mov_b32 exec_lo, 1")
    A(f"  v_mov_b32 v{vTMP+9}, 0")
    A(f"  s_cmp_lg_u32 s{sW}, 0\n  s_cbranch_scc1 L_noml{branch}")
    A(f"  global_store_dwordx2 v{vTMP+9}, v[{M}:{Lr}], s[{sMLB}:{sMLB+1}] offset:{branch*16}")
    A(f"L_noml{branch}:")
    A("  s_mov_b64 exec, s[76:77]")

LQB, LQA = 0, 4096
LOB, LOA = 8192, 12288
LMLB, LMLA = 16384, 16384 + 64

stamp(0)
consume_diag(1, lambda i: (vXX, i, None), vACC, WQA, True)
store_partial_lds(LQB, None)
consume_diag(1, lambda i: (vXX, i, None), vACC, VB, True)
store_partial_lds(LQA, None)
A("  s_waitcnt lgkmcnt(0)\n  s_barrier")
stamp(1)
build_q(LQB, vQB)
build_q(LQA, vQA)
A("  s_nop 1")
consume_qk(0, vQB, vS, KA)
softmax(1)
consume_diag(1, pv_wfn(vP), vACC, KA, True)
store_partial_lds(LOB, LMLB)
stamp(2)
consume_qk(0, vQA, vS + 0, WOB)
consume_qk(1, vQA, vS + 1, KA)
A("  s_waitcnt lgkmcnt(0)\n  s_barrier")
combine(LOB, LMLB, vP, vP + 1)
consume_diag(0, lambda i: (vP, i, vP + 1), vACC, KA, True)
publish(1)
consume_qk(1, vQA, vS + 2, VA)
consume_qk(0, vQA, vS + 3, VA)
softmax(4)
stamp(3)
consume_diag(1, pv_wfn(vP + 0), vACC, VA, True)
consume_diag(0, pv_wfn(vP + 1), vACC, VA, False)
consume_diag(1, pv_wfn(vP + 2), vACC, WOA, False)
consume_diag(0, pv_wfn(vP + 3), vACC, None, False)
store_partial_lds(LOA, LMLA)
stamp(4)
A("  s_waitcnt lgkmcnt(0)\n  s_barrier")
combine(LOA, LMLA, vP, vP + 1)
consume_diag(1, lambda i: (vP, i, vP + 1), vACC, None, True)
publish(0)
stamp(5, True)
A("L_end1:\n  s_endpgm")

A(".globl final_kernel\n.p2align 8\n.type final_kernel,@function\nfinal_kernel:")
A("  s_cmp_ge_u32 s2, 128\n  s_cbranch_scc1 L_end2")
A("  s_load_dwordx2 s[4:5], s[0:1], 0      ; x")
A("  s_load_dwordx4 s[8:11], s[0:1], 80")
A("  s_load_dwordx2 s[12:13], s[0:1], 104  ; ws")
A("  s_lshr_b32 s14, s2, 5   ; b\n  s_and_b32 s15, s2, 31   ; cb")
A("  v_and_b32 v1, 3, v0      ; c4\n  v_lshrrev_b32 v2, 2, v0   ; sg")
A("  s_lshl_b32 s16, s14, 18\n  s_lshl_b32 s17, s15, 6\n  s_add_u32 s16, s16, s17")
A("  v_lshlrev_b32 v3, 14, v2\n  v_lshl_add_u32 v3, v1, 4, v3\n  v_add_u32 v3, s16, v3")
A("  v_add_u32 v4, 0x2000, v3")
A("  s_lshl_b32 s16, s14, 10\n  s_add_u32 s16, s16, 0x100000")
A("  v_lshlrev_b32 v5, 6, v2\n  v_add_u32 v5, s16, v5")
A("  v_lshlrev_b32 v6, 4, v0\n  s_lshl_b32 s16, s14, 10\n  v_add_u32 v7, s16, v6")
A("  s_waitcnt lgkmcnt(0)")
A("  global_load_dwordx4 v[8:11], v7, s[4:5]")
A("  global_load_dwordx4 v[12:15], v6, s[8:9]")
for k in range(4):
    A(f"  global_load_dwordx4 v[{16+4*k}:{19+4*k}], v5, s[12:13] offset:{16*k}")
for hh in range(2):
    for half in range(2):
        for br in range(2):
            r = 32 + 4 * (hh * 4 + half * 2 + br)
            off = half * 4096 + br * 2048
            if off < 4096:
                A(f"  global_load_dwordx4 v[{r}:{r+3}], v{3+hh}, s[12:13] offset:{off}")
            else:
                A(f"  v_add_u32 v{64}, 0x1000, v{3+hh}")
                A(f"  global_load_dwordx4 v[{r}:{r+3}], v64, s[12:13] offset:{off-4096}")
A("  s_waitcnt vmcnt(12)")
A("  v_mov_b32 v70, 0")
for e in range(4):
    A(f"  v_lshlrev_b32 v65, 16, v{8+e}\n  v_lshlrev_b32 v66, 16, v{12+e}\n  v_mul_f32 v65, v65, v66")
    A(f"  v_and_b32 v67, 0xffff0000, v{8+e}\n  v_and_b32 v68, 0xffff0000, v{12+e}\n  v_mul_f32 v67, v67, v68")
    A("  v_cvt_pk_bf16_f32 v65, v65, v67")
    A("  v_lshlrev_b32 v66, 16, v65\n  v_and_b32 v67, 0xffff0000, v65")
    A("  v_add_f32 v70, v70, v66\n  v_add_f32 v70, v70, v67")
wave_reduce("v_add_f32", 70, 20)
A("  v_mov_b32 v70, s20")
A("  v_cvt_pk_bf16_f32 v70, v70, v70\n  v_and_b32 v70, 0xffff0000, v70")
A(f"  v_mul_f32 v70, {LOG2E:#x}, v70")
A("  v_exp_f32 v70, -v70")
A("  s_nop 0\n  v_add_f32 v70, 1.0, v70\n  v_rcp_f32 v70, v70\n  s_nop 0")
A("  v_cvt_pk_bf16_f32 v70, v70, v70\n  v_and_b32 v70, 0xffff0000, v70     ; g")
A("  v_sub_f32 v71, 1.0, v70\n  v_cvt_pk_bf16_f32 v71, v71, v71\n  v_and_b32 v71, 0xffff0000, v71   ; 1-g")
A("  s_waitcnt vmcnt(8)")
for k in range(4):
    r = 16 + 4 * k
    A(f"  v_max_f32 v65, v{r}, v{r+2}")
    A(f"  v_sub_f32 v{r}, v{r}, v65\n  v_sub_f32 v{r+2}, v{r+2}, v65")
    A(f"  v_exp_f32 v{r}, v{r}\n  v_exp_f32 v{r+2}, v{r+2}\n  s_nop 0")
    A(f"  v_mul_f32 v{r}, v{r}, v{r+1}\n  v_mul_f32 v{r+2}, v{r+2}, v{r+3}")
    A(f"  v_add_f32 v65, v{r}, v{r+2}\n  v_rcp_f32 v65, v65\n  s_nop 0")
    A(f"  v_mul_f32 v{r}, v{r}, v65\n  v_mul_f32 v{r+2}, v{r+2}, v65")
A("  s_waitcnt vmcnt(0)")
for br in range(2):
    first = True
    for hh in range(2):
        for half in range(2):
            r = 32 + 4 * (hh * 4 + half * 2 + br)
            al = 16 + 4 * (hh * 2 + br) + 2 * half
            for e in range(4):
                if first: A(f"  v_mul_f32 v{72+4*br+e}, v{al}, v{r+e}")
                else: A(f"  v_fmac_f32 v{72+4*br+e}, v{al}, v{r+e}")
            first = False
for c in ("row_ror:4", "row_ror:8"):
    A("  s_nop 1")
    for e in range(8):
        A(f"  v_add_f32_dpp v{72+e}, v{72+e}, v{72+e} {c} {DPPM}")
for sw in ("v_permlane16_swap_b32", "v_permlane32_swap_b32"):
    for e in range(8):
        A(f"  v_mov_b32 v{80+e}, v{72+e}")
    A("  s_nop 1")
    for e in range(8):
        A(f"  {sw} v{72+e}, v{80+e}")
    A("  s_nop 1")
    for e in range(8):
        A(f"  v_add_f32 v{72+e}, v{72+e}, v{80+e}")
round_bf16(range(72, 80))
for e in range(4):
    A(f"  v_mul_f32 v{72+e}, v70, v{72+e}\n  v_mul_f32 v{76+e}, v71, v{76+e}")
round_bf16(range(72, 80))
for e in range(4):
    A(f"  v_add_f32 v{72+e}, v{72+e}, v{76+e}")
A("  v_cvt_pk_bf16_f32 v72, v72, v73\n  v_cvt_pk_bf16_f32 v73, v74, v75")
A("  s_lshl_b32 s16, s14, 10\n  s_lshl_b32 s17, s15, 5\n  s_add_u32 s16, s16, s17")
A("  v_lshlrev_b32 v1, 3, v1\n  v_add_u32 v1, s16, v1")
A("  s_mov_b64 exec, 15")
A("  global_store_dwordx2 v1, v[72:73], s[10:11]")
A("L_end2:\n  s_endpgm")

A('.section .rodata,"a"')
for name, nv, ns in (("attn_kernel", 256, 90), ("final_kernel", 88, 32)):
    A(f""".p2align 6
.amdhsa_kernel {name}
  .amdhsa_next_free_vgpr {nv}
  .amdhsa_next_free_sgpr {ns}
  .amdhsa_accum_offset {(nv+3)//4*4}
  .amdhsa_group_segment_fixed_size 0
  .amdhsa_kernarg_size 112
  .amdhsa_user_sgpr_count 2
  .amdhsa_user_sgpr_kernarg_segment_ptr 1
  .amdhsa_system_sgpr_workgroup_id_x 1
.end_amdhsa_kernel""")
txt = "\n".join(L) + "\n"
txt = txt.replace(f"lds={LDS_BYTES}", "lds=16640")
open(out, "w").write(txt)
```

```python
import sys
out = sys.argv[1]
WPOL = sys.argv[2] if len(sys.argv) > 2 else "nt"
WPOL = "" if WPOL == "none" else WPOL
KPOL = "nt"
STAMP = len(sys.argv) > 3 and sys.argv[3] == "stamp"
NW = 8
L = []
def A(s): L.append(s)

HEADER = open("gated_mix__mha_block_cached__sliding_block_cached__decode.s.ref").read().split("\n")
for line in HEADER:
    if line.startswith(";") and "@launch" not in line and "Override" not in line and "grid=ceil" not in line:
        A(line)
LDS_BYTES = 16384
A(f"; @launch kernel=attn_kernel grid=(256,1,1) block=(512,1,1) lds={LDS_BYTES}")
A("; @launch kernel=final_kernel grid=(128,1,1) block=(64,1,1) lds=0")
A('.amdgcn_target "amdgcn-amd-amdhsa--gfx950"\n.text')

LOG2E = 0x3fb8aa3b
SCALE = 0x3db504f3

class Fifo:
    def __init__(self): self.q = []
    def issue(self, tag): self.q.append(tag)
    def wait(self, tag):
        if tag not in self.q: return
        idx = self.q.index(tag)
        n = len(self.q) - 1 - idx
        assert n <= 63
        A(f"  s_waitcnt vmcnt({n})")
        self.q = self.q[idx + 1:]
F = Fifo()

vLANE, vKOFF, vLOFF, vWQOFF, vWOOFF = 1, 2, 3, 4, 5
vMASK = 6
vXX = 10
vN, vG = 11, 12
vLOG2E, vSCALE = 13, 14
vT = 15
vQB, vQA = 16, 32
vD = 48
vS = 64
vP = 68
vAOP = 72
vACC = 80
vTMP = 84
RING = 128
def slot(i): return f"v[{RING+4*i}:{RING+4*i+3}]"
def vr(b, n=4): return f"v[{b}:{b+n-1}]"

sW = 3
sX, sAK, sAV, sAWQ, sAWO = 8, 10, 12, 14, 16
sBK, sBV, sBWQ, sBWO = 20, 22, 24, 26
sWS = 28
sKB, sVB, sKA, sVA, sWQB, sWQA, sWOB, sWOA = 30, 32, 34, 36, 38, 40, 42, 44
sM1, sM2, sM3 = 46, 48, 50
sC0 = 52
sU = 60
sH, sB, sHALF, sBH = 62, 63, 64, 65
sT0, sT1, sT2, sT3 = 66, 67, 68, 69
sMX, sL = 70, 71
sYB = 72
sMLB = 74

LQ = 0
LO = 8192
LML = 16384 - 256
LDS_BYTES_NEEDED = 8192 + 8192 + 256

A(".globl attn_kernel\n.p2align 8\n.type attn_kernel,@function\nattn_kernel:")
A("  s_cmp_ge_u32 s2, 256\n  s_cbranch_scc1 L_end1")
if STAMP: A("  s_memrealtime s[84:85]")
A("  s_load_dwordx8 s[8:15], s[0:1], 0")
A("  s_load_dwordx2 s[16:17], s[0:1], 32")
A("  s_load_dwordx8 s[20:27], s[0:1], 48")
A("  s_load_dwordx2 s[28:29], s[0:1], 104")
A("  s_load_dwordx2 s[78:79], s[0:1], 96")
A(f"  v_lshrrev_b32 v{vT}, 6, v0")
A(f"  v_and_b32 v{vLANE}, 63, v0")
A(f"  v_readfirstlane_b32 s{sW}, v{vT}")
A(f"  v_and_b32 v{vN}, 15, v{vLANE}")
A(f"  v_lshrrev_b32 v{vG}, 4, v{vLANE}")
A(f"  v_bfe_u32 v{vT}, v{vLANE}, 2, 2")
A(f"  v_lshlrev_b32 v{vKOFF}, 8, v{vT}")
A(f"  v_lshl_add_u32 v{vKOFF}, v{vG}, 6, v{vKOFF}")
A(f"  v_and_b32 v{vT}, 3, v{vLANE}")
A(f"  v_lshl_add_u32 v{vKOFF}, v{vT}, 4, v{vKOFF}")
A(f"  v_lshlrev_b32 v{vLOFF}, 4, v{vLANE}")
A(f"  v_lshlrev_b32 v{vWQOFF}, 13, v{vG}")
A(f"  v_lshl_add_u32 v{vWQOFF}, v{vN}, 4, v{vWQOFF}")
A(f"  v_lshrrev_b32 v{vT}, 3, v{vN}")
A(f"  v_lshl_add_u32 v{vT}, v{vT}, 2, v{vG}")
A(f"  v_lshlrev_b32 v{vWOOFF}, 10, v{vT}")
A(f"  v_and_b32 v{vT}, 7, v{vN}")
A(f"  v_lshl_add_u32 v{vWOOFF}, v{vT}, 4, v{vWOOFF}")
A(f"  s_and_b32 s{sH}, s2, 31")
A(f"  s_bfe_u32 s{sB}, s2, 0x20005")
A(f"  s_lshr_b32 s{sHALF}, s2, 7")
A(f"  s_and_b32 s{sBH}, s2, 127")
A(f"  s_lshl_b32 s{sT0}, s{sBH}, 20")
A(f"  s_lshl_b32 s{sT1}, s{sW}, 13")
A(f"  s_add_u32 s{sT0}, s{sT0}, s{sT1}")
A(f"  s_add_u32 s{sT0}, s{sT0}, 4096")
A(f"  s_lshl_b32 s{sT1}, s{sHALF}, 19")
A(f"  s_add_u32 s{sT1}, s{sT1}, s{sT0}        ; A off")
A(f"  s_lshl_b32 s{sT2}, s{sHALF}, 17")
A(f"  s_add_u32 s{sT2}, s{sT2}, s{sT0}")
A(f"  s_add_u32 s{sT2}, s{sT2}, {3072*256}    ; B off")
A("  s_waitcnt lgkmcnt(0)")
def add64(d, base, off):
    A(f"  s_add_u32 s{d}, s{base}, s{off}\n  s_addc_u32 s{d+1}, s{base+1}, 0")
add64(sKB, sBK, sT2); add64(sVB, sBV, sT2); add64(sKA, sAK, sT1); add64(sVA, sAV, sT1)
A(f"  s_lshl_b32 s{sT0}, s{sW}, 19\n  s_lshl_b32 s{sT1}, s{sH}, 8\n  s_add_u32 s{sT0}, s{sT0}, s{sT1}")
add64(sWQB, sBWQ, sT0); add64(sWQA, sAWQ, sT0)
A(f"  s_lshl_b32 s{sT0}, s{sH}, 17\n  s_lshl_b32 s{sT1}, s{sW}, 7\n  s_add_u32 s{sT0}, s{sT0}, s{sT1}")
add64(sWOB, sBWO, sT0); add64(sWOA, sAWO, sT0)

class Seg:
    def __init__(self, name, sbase, kind):
        self.name, self.sbase, self.kind, self.n = name, sbase, kind, 0
    def load(self, sl):
        j = self.n; self.n += 1
        tag = (self.name, j)
        if self.kind in ("k", "v"):
            voff = vKOFF if self.kind == "k" else vLOFF
            i = j % 8
            A(f"  global_load_dwordx4 {slot(sl)}, v{voff}, s[{self.sbase}:{self.sbase+1}] offset:{-4096+1024*i} {KPOL}")
            if i == 7:
                A(f"  s_add_u32 s{self.sbase}, s{self.sbase}, 0x10000\n  s_addc_u32 s{self.sbase+1}, s{self.sbase+1}, 0")
        else:
            voff = vWQOFF if self.kind == "wq" else vWOOFF
            step = 32768 if self.kind == "wq" else 8192
            A(f"  global_load_dwordx4 {slot(sl)}, v{voff}, s[{self.sbase}:{self.sbase+1}] {WPOL}")
            A(f"  s_add_u32 s{self.sbase}, s{self.sbase}, {step}\n  s_addc_u32 s{self.sbase+1}, s{self.sbase+1}, 0")
        F.issue(tag)
        return tag
KB, VB, KA, VA = Seg("KB", sKB, "k"), Seg("VB", sVB, "v"), Seg("KA", sKA, "k"), Seg("VA", sVA, "v")
WQB, WQA, WOB, WOA = Seg("WQB", sWQB, "wq"), Seg("WQA", sWQA, "wq"), Seg("WOB", sWOB, "wo"), Seg("WOA", sWOA, "wo")
tags = {}

def fill(half, seg):
    for i in range(16):
        tags[half * 16 + i] = seg.load(half * 16 + i)

A(f"  s_lshl_b32 s{sT0}, s{sB}, 10\n  s_lshl_b32 s{sT1}, s{sW}, 7\n  s_add_u32 s{sT0}, s{sT0}, s{sT1}")
A(f"  v_lshl_add_u32 v{vT}, v{vN}, 2, v{vG}")
A(f"  v_lshlrev_b32 v{vT}, 1, v{vT}")
A(f"  v_add_u32 v{vT}, s{sT0}, v{vT}")
A(f"  global_load_ushort v{vXX}, v{vT}, s[{sX}:{sX+1}]")
F.issue("x")
fill(0, KB)
fill(1, WQB)
A(f"  v_mov_b32 v{vLOG2E}, {LOG2E:#x}\n  v_mov_b32 v{vSCALE}, {SCALE:#x}")
A(f"  v_and_b32 v{vT}, 1, v{vN}\n  v_lshlrev_b32 v{vT}, 4, v{vT}")
A(f"  v_mov_b32 v{vTMP}, 0xffff\n  v_lshlrev_b32 v{vTMP}, v{vT}, v{vTMP}   ; halfmask")
A(f"  v_bfe_u32 v{vT}, v{vN}, 1, 2          ; (n&7)>>1")
for w in range(4):
    A(f"  v_cmp_eq_u32 vcc, {w}, v{vT}")
    A("  s_nop 1")
    A(f"  v_cndmask_b32 v{vMASK+w}, 0, v{vTMP}, vcc")
for t, s in ((1, sM1), (2, sM2), (3, sM3)):
    m = 0x11111111 << t
    A(f"  s_mov_b32 s{s}, {m:#x}\n  s_mov_b32 s{s+1}, {m:#x}")
for i in range(4):
    m = 0x000f000f << (4 * i)
    A(f"  s_mov_b32 s{sC0+2*i}, {m:#x}\n  s_mov_b32 s{sC0+2*i+1}, {m:#x}")
A(f"  s_mov_b32 s{sU}, 0xff00ff00\n  s_mov_b32 s{sU+1}, 0xff00ff00")
A(f"  s_lshl_b32 s{sT0}, s{sBH}, 1\n  s_add_u32 s{sT0}, s{sT0}, s{sHALF}\n  s_lshl_b32 s{sT0}, s{sT0}, 12")
A(f"  s_lshl_b32 s{sT1}, s{sW}, 8\n  s_add_u32 s{sT0}, s{sT0}, s{sT1}")
add64(sYB, sWS, sT0)
A(f"  s_lshl_b32 s{sT0}, s{sBH}, 5\n  s_lshl_b32 s{sT1}, s{sHALF}, 3\n  s_add_u32 s{sT0}, s{sT0}, s{sT1}\n  s_add_u32 s{sT0}, s{sT0}, 0x100000")
add64(sMLB, sWS, sT0)
F.wait("x")
A(f"  v_lshl_or_b32 v{vXX}, v{vXX}, 16, v{vXX}")

DPPM = "row_mask:0xf bank_mask:0xf"
def stamp(k, drain=False):
    if not STAMP: return
    A(f"  s_cmp_lg_u32 s{sW}, 0\n  s_cbranch_scc1 L_st{k}")
    if drain: A("  s_waitcnt vmcnt(0)")
    A("  s_memrealtime s[80:81]\n  s_waitcnt lgkmcnt(0)")
    if k == 0: A("  s_mov_b32 s80, s84")
    A("  s_mov_b64 s[82:83], exec\n  s_mov_b64 exec, 1")
    A(f"  s_lshl_b32 s81, s2, 5\n  s_add_u32 s81, s81, {0x200000 + 4*k}")
    A(f"  v_mov_b32 v126, s80\n  v_mov_b32 v125, s81")
    A(f"  global_store_dword v125, v126, s[{sWS}:{sWS+1}]")
    A("  s_mov_b64 exec, s[82:83]")
    A(f"L_st{k}:")
def build_aop(dst, wreg, bc, two=None):
    if two is None:
        for w in range(4):
            A(f"  v_and_b32_dpp v{dst+w}, v{wreg}, v{vMASK+w} row_newbcast:{bc} {DPPM}")
    else:
        A(f"  v_mov_b32_dpp v{vTMP+40}, v{wreg} row_newbcast:{bc} {DPPM}")
        A(f"  v_mov_b32_dpp v{vTMP+41}, v{two} row_newbcast:{bc} {DPPM}")
        A(f"  v_cndmask_b32 v{vTMP+40}, v{vTMP+40}, v{vTMP+41}, s[{sU}:{sU+1}]")
        for w in range(4):
            A(f"  v_and_b32 v{dst+w}, v{vTMP+40}, v{vMASK+w}")

def consume_diag(half, wfn, acc, refill, first_zero):
    A("  s_nop 1")
    build_aop(vAOP, *wfn(0))
    for i in range(16):
        sl = half * 16 + i
        if i < 15:
            build_aop(vAOP + 4 * ((i + 1) & 1), *wfn(i + 1))
        else:
            A("  s_nop 0")
        F.wait(tags[sl])
        c = "0" if (first_zero and i == 0) else vr(acc)
        A(f"  v_mfma_f32_16x16x32_bf16 {vr(acc)}, {vr(vAOP + 4 * (i & 1))}, {slot(sl)}, {c}")
        if refill is not None:
            tags[sl] = refill.load(sl)

def consume_qk(half, q, sdst, refill):
    for j in range(16):
        sl = half * 16 + j
        t, i = j >> 2, j & 3
        F.wait(tags[sl])
        c = "0" if i == 0 else vr(vD + 4 * t)
        A(f"  v_mfma_f32_16x16x32_bf16 {vr(vD+4*t)}, {slot(sl)}, {vr(q+4*i)}, {c}")
        if refill is not None:
            tags[sl] = refill.load(sl)
    A("  s_nop 7")
    for t in range(4):
        d = vTMP + t
        A(f"  v_mov_b32_dpp v{d}, v{vD+4*t} quad_perm:[0,0,0,0] {DPPM}")
        for s in range(1, 4):
            A(f"  v_add_f32_dpp v{d}, v{vD+4*t+s}, v{d} quad_perm:[{s},{s},{s},{s}] {DPPM}")
    A(f"  v_cndmask_b32 v{sdst}, v{vTMP}, v{vTMP+1}, s[{sM1}:{sM1+1}]")
    A(f"  v_cndmask_b32 v{sdst}, v{sdst}, v{vTMP+2}, s[{sM2}:{sM2+1}]")
    A(f"  v_cndmask_b32 v{sdst}, v{sdst}, v{vTMP+3}, s[{sM3}:{sM3+1}]")

def wave_reduce(op, v, sdst):
    for c in ("row_ror:8", "row_ror:4", "row_ror:2", "row_ror:1"):
        A("  s_nop 1")
        A(f"  {op}_dpp v{v}, v{v}, v{v} {c} {DPPM}")
    A("  s_nop 1")
    A(f"  {op}_dpp v{v}, v{v}, v{v} row_bcast:15 row_mask:0xa bank_mask:0xf")
    A("  s_nop 1")
    A(f"  {op}_dpp v{v}, v{v}, v{v} row_bcast:31 row_mask:0xc bank_mask:0xf")
    A("  s_nop 0")
    A(f"  v_readlane_b32 s{sdst}, v{v}, 63")
    A("  s_nop 1")

def round_bf16(regs):
    for r in regs:
        A(f"  v_cvt_pk_bf16_f32 v{r}, v{r}, v{r}")
        A(f"  v_and_b32 v{r}, 0xffff0000, v{r}")

def softmax(nb):
    S = [vS + k for k in range(nb)]
    round_bf16(S)
    for r in S: A(f"  v_mul_f32 v{r}, v{r}, v{vSCALE}")
    round_bf16(S)
    for r in S: A(f"  v_mul_f32 v{r}, v{r}, v{vLOG2E}")
    t = vTMP
    A(f"  v_mov_b32 v{t}, v{S[0]}")
    for r in S[1:]: A(f"  v_max_f32 v{t}, v{t}, v{r}")
    wave_reduce("v_max_f32", t, sMX)
    for r in S:
        A(f"  v_subrev_f32 v{r}, s{sMX}, v{r}")
    for r in S:
        A(f"  v_exp_f32 v{r}, v{r}")
    A("  s_nop 0")
    for k, r in enumerate(S):
        A(f"  v_cvt_pk_bf16_f32 v{vP+k}, v{r}, v{r}")
    A(f"  v_mov_b32 v{t}, v{S[0]}")
    for r in S[1:]: A(f"  v_add_f32 v{t}, v{t}, v{r}")
    wave_reduce("v_add_f32", t, sL)

def pv_wfn(preg):
    def f(j):
        t, i = j >> 2, j & 3
        return (preg, i * 4 + t, None)
    return f

def store_partial_lds(base, mlbase):
    A(f"  v_and_b32 v{vTMP}, 1, v{vG}")
    A(f"  v_lshlrev_b32 v{vTMP}, 4, v{vTMP}")
    A(f"  v_lshl_add_u32 v{vTMP}, v{vN}, 5, v{vTMP}")
    A(f"  s_lshl_b32 s{sT0}, s{sW}, 9")
    A(f"  v_add_u32 v{vTMP}, s{sT0}, v{vTMP}")
    if mlbase is not None:
        A(f"  s_lshl_b32 s{sT0}, s{sW}, 3")
        A(f"  v_mov_b32 v{vTMP+1}, s{sT0}")
        A(f"  v_mov_b32 v{vTMP+2}, s{sMX}")
        A(f"  v_mov_b32 v{vTMP+3}, s{sL}")
        A(f"  ds_write_b64 v{vTMP+1}, v[{vTMP+2}:{vTMP+3}] offset:{mlbase}")
        A("  s_nop 3")
    else:
        A("  s_nop 7")
    A(f"  ds_write_b128 v{vTMP}, {vr(vACC)} offset:{base}")

def build_q(base, qdst):
    a = vTMP
    A(f"  v_and_b32 v{a}, 3, v{vN}")
    A(f"  v_lshl_add_u32 v{a}, v{vG}, 2, v{a}")
    A(f"  v_lshlrev_b32 v{a}, 5, v{a}")
    acc = vTMP + 4
    buf = vTMP + 12
    for grp in range(2):
        for k in range(4):
            w = grp * 4 + k
            A(f"  ds_read_b128 {vr(buf+8*k)}, v{a} offset:{base + w*512}")
            A(f"  ds_read_b128 {vr(buf+8*k+4)}, v{a} offset:{base + w*512 + 16}")
        A("  s_waitcnt lgkmcnt(0)")
        for k in range(4):
            for e in range(8):
                if grp == 0 and k == 0:
                    A(f"  v_mov_b32 v{acc+e}, v{buf+e}")
                else:
                    A(f"  v_add_f32 v{acc+e}, v{acc+e}, v{buf+8*k+e}")
    for e in range(4):
        A(f"  v_cvt_pk_bf16_f32 v{buf+e}, v{acc+2*e}, v{acc+2*e+1}")
    for i in range(4):
        for e in range(4):
            A(f"  v_cndmask_b32 v{qdst+4*i+e}, 0, v{buf+e}, s[{sC0+2*i}:{sC0+2*i+1}]")

def combine(base, mlbase, p1, p2):
    ml = vTMP
    ov = vTMP + 16
    a = vTMP + 32
    A(f"  v_mov_b32 v{a}, 0")
    for k in range(4):
        A(f"  ds_read_b128 {vr(ml+4*k)}, v{a} offset:{mlbase + 16*k}")
    A(f"  v_lshl_add_u32 v{a+1}, v{vN}, 3, v{vG}")
    A(f"  v_lshlrev_b32 v{a+1}, 2, v{a+1}")
    for w in range(8):
        A(f"  ds_read2_b32 v[{ov+2*w}:{ov+2*w+1}], v{a+1} offset0:{(base + w*512)//4 % 256 if False else 0} offset1:4" if False else
          f"  ds_read_b32 v{ov+2*w}, v{a+1} offset:{base + w*512}\n  ds_read_b32 v{ov+2*w+1}, v{a+1} offset:{base + w*512 + 16}")
    A("  s_waitcnt lgkmcnt(0)")
    M, Lr = vTMP + 36, vTMP + 37
    A(f"  v_max3_f32 v{M}, v{ml}, v{ml+2}, v{ml+4}")
    A(f"  v_max3_f32 v{M}, v{M}, v{ml+6}, v{ml+8}")
    A(f"  v_max3_f32 v{M}, v{M}, v{ml+10}, v{ml+12}")
    A(f"  v_max_f32 v{M}, v{M}, v{ml+14}")
    for w in range(8):
        A(f"  v_sub_f32 v{ml+2*w}, v{ml+2*w}, v{M}")
    for w in range(8):
        A(f"  v_exp_f32 v{ml+2*w}, v{ml+2*w}")
    A("  s_nop 0")
    A(f"  v_mul_f32 v{Lr}, v{ml}, v{ml+1}")
    for w in range(1, 8):
        A(f"  v_fmac_f32 v{Lr}, v{ml+2*w}, v{ml+2*w+1}")
    A(f"  v_rcp_f32 v{a}, v{Lr}")
    A(f"  v_mul_f32 v{a+1}, v{ml}, v{ov}")
    A(f"  v_mul_f32 v{a+2}, v{ml}, v{ov+1}")
    for w in range(1, 8):
        A(f"  v_fmac_f32 v{a+1}, v{ml+2*w}, v{ov+2*w}")
        A(f"  v_fmac_f32 v{a+2}, v{ml+2*w}, v{ov+2*w+1}")
    A(f"  v_mul_f32 v{a+1}, v{a+1}, v{a}")
    A(f"  v_mul_f32 v{a+2}, v{a+2}, v{a}")
    A(f"  v_cvt_pk_bf16_f32 v{p1}, v{a+1}, v{a+1}")
    A(f"  v_cvt_pk_bf16_f32 v{p2}, v{a+2}, v{a+2}")

def publish(branch):
    M, Lr = vTMP + 36, vTMP + 37
    A("  s_nop 7")
    for b in range(4):
        A(f"  v_mov_b32 v{vTMP+b}, 0")
    A("  s_nop 1")
    for b in range(4):
        A(f"  v_permlane32_swap_b32 v{vACC+b}, v{vTMP+b}")
    A("  s_nop 1")
    for b in range(4):
        A(f"  v_add_f32_dpp v{vTMP+4+b}, v{vTMP+b}, v{vACC+b} row_shl:8 {DPPM}")
    A(f"  v_lshlrev_b32 v{vTMP+8}, 5, v{vN}")
    A(f"  v_lshl_add_u32 v{vTMP+8}, v{vG}, 4, v{vTMP+8}")
    A("  s_mov_b64 s[76:77], exec")
    A("  s_mov_b32 exec_lo, 0x00ff00ff\n  s_mov_b32 exec_hi, 0")
    A(f"  global_store_dwordx4 v{vTMP+8}, {vr(vTMP+4)}, s[{sYB}:{sYB+1}] offset:{branch*2048}")
    F.issue(("st", branch, 0))
    A("  s_mov_b32 exec_lo, 1")
    A(f"  v_mov_b32 v{vTMP+9}, 0")
    A(f"  s_cmp_lg_u32 s{sW}, 0\n  s_cbranch_scc1 L_noml{branch}")
    A(f"  global_store_dwordx2 v{vTMP+9}, v[{M}:{Lr}], s[{sMLB}:{sMLB+1}] offset:{branch*16}")
    A(f"L_noml{branch}:")
    A("  s_mov_b64 exec, s[76:77]")

LQB, LQA = 0, 4096
LOB, LOA = 8192, 12288
LMLB, LMLA = 16384, 16384 + 64

stamp(0)
consume_diag(1, lambda i: (vXX, i, None), vACC, WQA, True)
store_partial_lds(LQB, None)
consume_diag(1, lambda i: (vXX, i, None), vACC, VB, True)
store_partial_lds(LQA, None)
A("  s_waitcnt lgkmcnt(0)\n  s_barrier")
stamp(1)
build_q(LQB, vQB)
build_q(LQA, vQA)
A("  s_nop 1")
consume_qk(0, vQB, vS, KA)
softmax(1)
consume_diag(1, pv_wfn(vP), vACC, KA, True)
store_partial_lds(LOB, LMLB)
stamp(2)
consume_qk(0, vQA, vS + 0, WOB)
consume_qk(1, vQA, vS + 1, KA)
A("  s_waitcnt lgkmcnt(0)\n  s_barrier")
combine(LOB, LMLB, vP, vP + 1)
consume_diag(0, lambda i: (vP, i, vP + 1), vACC, KA, True)
publish(1)
consume_qk(1, vQA, vS + 2, VA)
consume_qk(0, vQA, vS + 3, VA)
softmax(4)
stamp(3)
consume_diag(1, pv_wfn(vP + 0), vACC, VA, True)
consume_diag(0, pv_wfn(vP + 1), vACC, VA, False)
consume_diag(1, pv_wfn(vP + 2), vACC, WOA, False)
consume_diag(0, pv_wfn(vP + 3), vACC, None, False)
store_partial_lds(LOA, LMLA)
stamp(4)
A("  s_waitcnt lgkmcnt(0)\n  s_barrier")
combine(LOA, LMLA, vP, vP + 1)
consume_diag(1, lambda i: (vP, i, vP + 1), vACC, None, True)
publish(0)
stamp(5, True)
A("L_end1:\n  s_endpgm")

A(".globl final_kernel\n.p2align 8\n.type final_kernel,@function\nfinal_kernel:")
A("  s_cmp_ge_u32 s2, 128\n  s_cbranch_scc1 L_end2")
A("  s_load_dwordx2 s[4:5], s[0:1], 0      ; x")
A("  s_load_dwordx4 s[8:11], s[0:1], 80")
A("  s_load_dwordx2 s[12:13], s[0:1], 104  ; ws")
A("  s_lshr_b32 s14, s2, 5   ; b\n  s_and_b32 s15, s2, 31   ; cb")
A("  v_and_b32 v1, 3, v0      ; c4\n  v_lshrrev_b32 v2, 2, v0   ; sg")
A("  s_lshl_b32 s16, s14, 18\n  s_lshl_b32 s17, s15, 6\n  s_add_u32 s16, s16, s17")
A("  v_lshlrev_b32 v3, 14, v2\n  v_lshl_add_u32 v3, v1, 4, v3\n  v_add_u32 v3, s16, v3")
A("  v_add_u32 v4, 0x2000, v3")
A("  s_lshl_b32 s16, s14, 10\n  s_add_u32 s16, s16, 0x100000")
A("  v_lshlrev_b32 v5, 6, v2\n  v_add_u32 v5, s16, v5")
A("  v_lshlrev_b32 v6, 4, v0\n  s_lshl_b32 s16, s14, 10\n  v_add_u32 v7, s16, v6")
A("  s_waitcnt lgkmcnt(0)")
A("  global_load_dwordx4 v[8:11], v7, s[4:5]")
A("  global_load_dwordx4 v[12:15], v6, s[8:9]")
for k in range(4):
    A(f"  global_load_dwordx4 v[{16+4*k}:{19+4*k}], v5, s[12:13] offset:{16*k}")
for hh in range(2):
    for half in range(2):
        for br in range(2):
            r = 32 + 4 * (hh * 4 + half * 2 + br)
            off = half * 4096 + br * 2048
            if off < 4096:
                A(f"  global_load_dwordx4 v[{r}:{r+3}], v{3+hh}, s[12:13] offset:{off}")
            else:
                A(f"  v_add_u32 v{64}, 0x1000, v{3+hh}")
                A(f"  global_load_dwordx4 v[{r}:{r+3}], v64, s[12:13] offset:{off-4096}")
A("  s_waitcnt vmcnt(12)")
A("  v_mov_b32 v70, 0")
for e in range(4):
    A(f"  v_lshlrev_b32 v65, 16, v{8+e}\n  v_lshlrev_b32 v66, 16, v{12+e}\n  v_mul_f32 v65, v65, v66")
    A(f"  v_and_b32 v67, 0xffff0000, v{8+e}\n  v_and_b32 v68, 0xffff0000, v{12+e}\n  v_mul_f32 v67, v67, v68")
    A("  v_cvt_pk_bf16_f32 v65, v65, v67")
    A("  v_lshlrev_b32 v66, 16, v65\n  v_and_b32 v67, 0xffff0000, v65")
    A("  v_add_f32 v70, v70, v66\n  v_add_f32 v70, v70, v67")
wave_reduce("v_add_f32", 70, 20)
A("  v_mov_b32 v70, s20")
A("  v_cvt_pk_bf16_f32 v70, v70, v70\n  v_and_b32 v70, 0xffff0000, v70")
A(f"  v_mul_f32 v70, {LOG2E:#x}, v70")
A("  v_exp_f32 v70, -v70")
A("  s_nop 0\n  v_add_f32 v70, 1.0, v70\n  v_rcp_f32 v70, v70\n  s_nop 0")
A("  v_cvt_pk_bf16_f32 v70, v70, v70\n  v_and_b32 v70, 0xffff0000, v70     ; g")
A("  v_sub_f32 v71, 1.0, v70\n  v_cvt_pk_bf16_f32 v71, v71, v71\n  v_and_b32 v71, 0xffff0000, v71   ; 1-g")
A("  s_waitcnt vmcnt(8)")
for k in range(4):
    r = 16 + 4 * k
    A(f"  v_max_f32 v65, v{r}, v{r+2}")
    A(f"  v_sub_f32 v{r}, v{r}, v65\n  v_sub_f32 v{r+2}, v{r+2}, v65")
    A(f"  v_exp_f32 v{r}, v{r}\n  v_exp_f32 v{r+2}, v{r+2}\n  s_nop 0")
    A(f"  v_mul_f32 v{r}, v{r}, v{r+1}\n  v_mul_f32 v{r+2}, v{r+2}, v{r+3}")
    A(f"  v_add_f32 v65, v{r}, v{r+2}\n  v_rcp_f32 v65, v65\n  s_nop 0")
    A(f"  v_mul_f32 v{r}, v{r}, v65\n  v_mul_f32 v{r+2}, v{r+2}, v65")
A("  s_waitcnt vmcnt(0)")
for br in range(2):
    first = True
    for hh in range(2):
        for half in range(2):
            r = 32 + 4 * (hh * 4 + half * 2 + br)
            al = 16 + 4 * (hh * 2 + br) + 2 * half
            for e in range(4):
                if first: A(f"  v_mul_f32 v{72+4*br+e}, v{al}, v{r+e}")
                else: A(f"  v_fmac_f32 v{72+4*br+e}, v{al}, v{r+e}")
            first = False
for c in ("row_ror:4", "row_ror:8"):
    A("  s_nop 1")
    for e in range(8):
        A(f"  v_add_f32_dpp v{72+e}, v{72+e}, v{72+e} {c} {DPPM}")
for sw in ("v_permlane16_swap_b32", "v_permlane32_swap_b32"):
    for e in range(8):
        A(f"  v_mov_b32 v{80+e}, v{72+e}")
    A("  s_nop 1")
    for e in range(8):
        A(f"  {sw} v{72+e}, v{80+e}")
    A("  s_nop 1")
    for e in range(8):
        A(f"  v_add_f32 v{72+e}, v{72+e}, v{80+e}")
round_bf16(range(72, 80))
for e in range(4):
    A(f"  v_mul_f32 v{72+e}, v70, v{72+e}\n  v_mul_f32 v{76+e}, v71, v{76+e}")
round_bf16(range(72, 80))
for e in range(4):
    A(f"  v_add_f32 v{72+e}, v{72+e}, v{76+e}")
A("  v_cvt_pk_bf16_f32 v72, v72, v73\n  v_cvt_pk_bf16_f32 v73, v74, v75")
A("  s_lshl_b32 s16, s14, 10\n  s_lshl_b32 s17, s15, 5\n  s_add_u32 s16, s16, s17")
A("  v_lshlrev_b32 v1, 3, v1\n  v_add_u32 v1, s16, v1")
A("  s_mov_b64 exec, 15")
A("  global_store_dwordx2 v1, v[72:73], s[10:11]")
if STAMP:
    A("  s_mov_b64 exec, -1")
    A("  s_cmp_lg_u32 s2, 0\n  s_cbranch_scc1 L_end2")
    A("  s_load_dwordx2 s[22:23], s[0:1], 96")
    A("  v_lshlrev_b32 v1, 7, v0\n  v_add_u32 v1, 0x200000, v1")
    for k in range(8):
        A(f"  global_load_dwordx4 v[{8+4*k}:{11+4*k}], v1, s[12:13] offset:{16*k}")
    A("  s_waitcnt vmcnt(0) lgkmcnt(0)")
    for k in range(8):
        A(f"  v_min_u32 v40, v{8+k}, v{16+k}\n  v_min3_u32 v40, v40, v{24+k}, v{32+k}")
        A(f"  v_max_u32 v41, v{8+k}, v{16+k}\n  v_max3_u32 v41, v41, v{24+k}, v{32+k}")
        wave_reduce("v_min_u32", 40, 24)
        wave_reduce("v_max_u32", 41, 25)
        A(f"  v_mov_b32 v42, s24\n  v_mov_b32 v43, s25\n  v_mov_b32 v44, {8*k}")
        A("  s_mov_b64 exec, 1")
        A("  global_store_dwordx2 v44, v[42:43], s[22:23]")
        A("  s_mov_b64 exec, -1")
A("L_end2:\n  s_endpgm")

A('.section .rodata,"a"')
for name, nv, ns in (("attn_kernel", 256, 90), ("final_kernel", 88, 32)):
    A(f""".p2align 6
.amdhsa_kernel {name}
  .amdhsa_next_free_vgpr {nv}
  .amdhsa_next_free_sgpr {ns}
  .amdhsa_accum_offset {(nv+3)//4*4}
  .amdhsa_group_segment_fixed_size 0
  .amdhsa_kernarg_size 112
  .amdhsa_user_sgpr_count 2
  .amdhsa_user_sgpr_kernarg_segment_ptr 1
  .amdhsa_system_sgpr_workgroup_id_x 1
.end_amdhsa_kernel""")
txt = "\n".join(L) + "\n"
txt = txt.replace(f"lds={LDS_BYTES}", "lds=16640")
open(out, "w").write(txt)
```

```python
import sys
out = sys.argv[1]
opts = sys.argv[2:]
STAMP = "stamp" in opts or "qstamp" in opts
QST = "qstamp" in opts
NH = 1
WIN = 4
for o in opts:
    if o.startswith("win"): WIN = int(o[3:])
PRE = 2
for o in opts:
    if o.startswith("pre"): PRE = int(o[3:])
KPOL = "nt"
L = []
def A(s): L.append(s)
KN = "gated_mix__mha_block_cached__sliding_block_cached__decode_kernel"

for line in open("gated_mix__mha_block_cached__sliding_block_cached__decode.s.ref").read().split("\n"):
    if line.startswith(";") and "@launch" not in line:
        A(line)
LWO = 0
LQP = 131072
LQ = LQP + 16384
LO1 = LQ + 512
LML1 = LO1 + 9 * 512
LO2 = LML1 + 128
LML2 = LO2 + 9 * 512
LFLAG = LML2 + 128
LDS_BYTES = LFLAG + 64
assert LDS_BYTES <= 163840
if STAMP:
    A(f"; @launch kernel={KN} grid=(256,1,1) block=(512,1,1) lds={LDS_BYTES}")
    A("; @launch kernel=agg_kernel grid=(1,1,1) block=(64,1,1) lds=0")
else:
    A(f"; @launch grid=(256,1,1) block=(512,1,1) lds={LDS_BYTES}")
A('.amdgcn_target "amdgcn-amd-amdhsa--gfx950"\n.text')

LOG2E = 0x3fb8aa3b
SCALE = 0x3db504f3
WY, WQP, WPX, WST = 0, 0x80000, 0x100000, 0x200000
WFQ, WFP, WFF = 0x140000, 0x150000, 0x160000

class Fifo:
    def __init__(self): self.q = []
    def issue(self, tag): self.q.append(tag)
    def wait(self, tag):
        if tag not in self.q: return
        idx = self.q.index(tag)
        n = len(self.q) - 1 - idx
        assert n <= 63
        A(f"  s_waitcnt vmcnt({n})")
        self.q = self.q[idx + 1:]
    def copy(self):
        f = Fifo(); f.q = list(self.q); return f
F = Fifo()

vLANE, vKOFF, vLOFF, vWQOFF, vWOOFF = 1, 2, 3, 4, 5
vMASK = 6
vN, vG = 10, 11
vLOG2E, vSCALE = 12, 13
vT = 14
vGATE, vOMG = 15, 0
vQA, vQB = 16, 32
vD = 48
vS = 64
vP = 69
vAOP = 76
vACC = 84
vACC2 = 88
vTMP = 92
RING = 140
NSLOT = 16 * NH
NVGPR = RING + 4 * NSLOT
def slot(i): return f"v[{RING+4*i}:{RING+4*i+3}]"
def vr(b, n=4): return f"v[{b}:{b+n-1}]"

sW = 3
sX, sAK, sAV, sAWQ, sAWO = 8, 10, 12, 14, 16
sGW, sOUT = 4, 6
sBK, sBV, sBWQ, sBWO = 20, 22, 24, 26
sDBG, sWS = 28, 30
sKA, sVA, sKB, sVB, sWQ, sWO = 32, 34, 36, 38, 40, 42
sM1, sM2, sM3 = 44, 46, 48
sC0 = 50
sU = 58
sH, sB, sHALF, sBH = 60, 61, 62, 63
sT0, sT1, sT2, sT3 = 64, 65, 66, 67
sMX, sL = 68, 69
sEX = 70
sST = 72
sCNT = 78
sTAG = 79

DPPM = "row_mask:0xf bank_mask:0xf"
uid = [0]
def lab(p):
    uid[0] += 1
    return f"L_{p}{uid[0]}"

def qs(k):
    if QST: A(f"  s_memrealtime s[{80+2*k}:{81+2*k}]")
def qs_flush(n):
    if not QST: return
    A("  s_waitcnt lgkmcnt(0)")
    A(f"  s_mov_b64 exec, 1")
    A(f"  s_lshl_b32 s{sST+1}, s2, 5\n  s_add_u32 s{sST+1}, s{sST+1}, {WST}")
    A(f"  v_mov_b32 v{vTMP+47}, s{sST+1}")
    A(f"  v_mov_b32 v{vTMP+46}, s{sST+4}\n  global_store_dword v{vTMP+47}, v{vTMP+46}, s[{sWS}:{sWS+1}]")
    for k in range(n):
        A(f"  v_mov_b32 v{vTMP+46}, s{80+2*k}\n  global_store_dword v{vTMP+47}, v{vTMP+46}, s[{sWS}:{sWS+1}] offset:{4*(k+1)}")
    A(f"  s_mov_b64 exec, -1")
def stamp(k, drain=False):
    if not STAMP or QST: return
    l = lab("st")
    A(f"  s_cmp_lg_u32 s{sW}, 0\n  s_cbranch_scc1 {l}")
    if drain: A("  s_waitcnt vmcnt(0)")
    A(f"  s_memrealtime s[{sST}:{sST+1}]\n  s_waitcnt lgkmcnt(0)")
    if k == 0: A(f"  s_mov_b32 s{sST}, s{sST+4}")
    A(f"  s_mov_b64 s[{sST+2}:{sST+3}], exec\n  s_mov_b64 exec, 1")
    A(f"  s_lshl_b32 s{sST+1}, s2, 5\n  s_add_u32 s{sST+1}, s{sST+1}, {WST + 4*k}")
    A(f"  v_mov_b32 v{vTMP+46}, s{sST}\n  v_mov_b32 v{vTMP+47}, s{sST+1}")
    A(f"  global_store_dword v{vTMP+47}, v{vTMP+46}, s[{sWS}:{sWS+1}]")
    if k == 0:
        for kk in range(1, 8):
            A(f"  global_store_dword v{vTMP+47}, v{vTMP+46}, s[{sWS}:{sWS+1}] offset:{4*kk}")
    A(f"  s_mov_b64 exec, s[{sST+2}:{sST+3}]")
    A(f"{l}:")

A(f".globl {KN}\n.p2align 8\n.type {KN},@function\n{KN}:")
A("  s_cmp_ge_u32 s2, 256\n  s_cbranch_scc1 L_end")
if STAMP: A(f"  s_memrealtime s[{sST+4}:{sST+5}]")
A("  s_load_dwordx8 s[8:15], s[0:1], 0")
A("  s_load_dwordx2 s[16:17], s[0:1], 32")
A("  s_load_dwordx8 s[20:27], s[0:1], 48")
A("  s_load_dwordx4 s[4:7], s[0:1], 80")
A("  s_load_dwordx4 s[28:31], s[0:1], 96")
A(f"  v_lshrrev_b32 v{vT}, 6, v0")
A(f"  v_and_b32 v{vLANE}, 63, v0")
A(f"  v_readfirstlane_b32 s{sW}, v{vT}")
A(f"  v_and_b32 v{vN}, 15, v{vLANE}")
A(f"  v_lshrrev_b32 v{vG}, 4, v{vLANE}")
A(f"  v_bfe_u32 v{vT}, v{vLANE}, 2, 2")
A(f"  v_lshlrev_b32 v{vKOFF}, 8, v{vT}")
A(f"  v_lshl_add_u32 v{vKOFF}, v{vG}, 6, v{vKOFF}")
A(f"  v_and_b32 v{vT}, 3, v{vLANE}")
A(f"  v_lshl_add_u32 v{vKOFF}, v{vT}, 4, v{vKOFF}")
A(f"  v_lshlrev_b32 v{vLOFF}, 4, v{vLANE}")
A(f"  v_lshlrev_b32 v{vWQOFF}, 13, v{vG}")
A(f"  v_lshl_add_u32 v{vWQOFF}, v{vN}, 4, v{vWQOFF}")
A(f"  v_lshrrev_b32 v{vT}, 3, v{vN}")
A(f"  v_lshl_add_u32 v{vT}, v{vT}, 2, v{vG}")
A(f"  v_lshlrev_b32 v{vWOOFF}, 10, v{vT}")
A(f"  v_and_b32 v{vT}, 7, v{vN}")
A(f"  v_lshl_add_u32 v{vWOOFF}, v{vT}, 4, v{vWOOFF}")
A(f"  s_and_b32 s{sH}, s2, 7\n  s_lshl_b32 s{sH}, s{sH}, 2\n  s_bfe_u32 s{sT0}, s2, 0x20003\n  s_add_u32 s{sH}, s{sH}, s{sT0}")
A(f"  s_bfe_u32 s{sB}, s2, 0x20005")
A(f"  s_lshr_b32 s{sHALF}, s2, 7")
A(f"  s_lshl_b32 s{sBH}, s{sB}, 5\n  s_add_u32 s{sBH}, s{sBH}, s{sH}")
A(f"  s_lshl_b32 s{sT0}, s{sBH}, 20\n  s_lshl_b32 s{sT1}, s{sW}, 13\n  s_add_u32 s{sT0}, s{sT0}, s{sT1}\n  s_add_u32 s{sT0}, s{sT0}, 4096")
A(f"  s_mul_i32 s{sT1}, s{sHALF}, {2560*256}\n  s_add_u32 s{sT1}, s{sT1}, s{sT0}      ; A off")
A(f"  s_add_u32 s{sT2}, s{sT0}, {3072*256}    ; B off")
A(f"  s_lshl_b32 s{sT3}, s{sB}, 8\n  s_lshl_b32 s{sT0}, s{sW}, 5\n  s_add_u32 s{sT3}, s{sT3}, s{sT0}")
A(f"  v_lshrrev_b32 v{vT}, 3, v{vN}\n  v_lshlrev_b32 v{vT}, 10, v{vT}\n  v_lshl_add_u32 v{vT}, v{vG}, 1, v{vT}\n  v_add_u32 v{vT}, s{sT3}, v{vT}")
A("  s_waitcnt lgkmcnt(0)")
ltag = lab("tag")
A(f"  s_or_b32 s92, s{sB}, s{sHALF}\n  s_or_b32 s92, s92, s{sW}\n  s_cmp_lg_u32 s92, 0\n  s_cbranch_scc1 {ltag}")
A(f"  s_memrealtime s[92:93]\n  s_waitcnt lgkmcnt(0)\n  s_or_b32 s92, s92, 1")
A(f"  s_lshl_b32 s93, s{sH}, 2\n  v_mov_b32 v{vD}, s93\n  v_mov_b32 v{vD+1}, s92")
A(f"  s_mov_b64 exec, 1\n  global_store_dword v{vD}, v{vD+1}, s[{sDBG}:{sDBG+1}] sc1\n  s_mov_b64 exec, -1")
A(f"{ltag}:")
vXW = vTMP + 32
for p in range(2):
    for i in range(4):
        A(f"  global_load_ushort v{vXW+4*p+i}, v{vT}, s[{sX}:{sX+1}] offset:{2048*p + 8*i}")
        F.issue(("xw", p, i))
def add64(d, base, off):
    A(f"  s_add_u32 s{d}, s{base}, s{off}\n  s_addc_u32 s{d+1}, s{base+1}, 0")
A(f"  s_cmp_eq_u32 s{sHALF}, 0")
A(f"  s_cselect_b32 s{sWQ}, s{sAWQ}, s{sBWQ}\n  s_cselect_b32 s{sWQ+1}, s{sAWQ+1}, s{sBWQ+1}")
A(f"  s_cselect_b32 s{sWO}, s{sAWO}, s{sBWO}\n  s_cselect_b32 s{sWO+1}, s{sAWO+1}, s{sBWO+1}")
A(f"  s_lshl_b32 s{sT0}, s{sT3}, 12\n  s_lshl_b32 s{sT3}, s{sH}, 8\n  s_add_u32 s{sT0}, s{sT0}, s{sT3}")
add64(sWQ, sWQ, sT0)
vWQ = vTMP
for i in range(4):
    A(f"  global_load_dwordx4 {vr(vWQ+4*i)}, v{vWQOFF}, s[{sWQ}:{sWQ+1}] nt")
    F.issue(("wq", i))
    if i < 3: A(f"  s_add_u32 s{sWQ}, s{sWQ}, 0x8000\n  s_addc_u32 s{sWQ+1}, s{sWQ+1}, 0")
add64(sKA, sAK, sT1); add64(sVA, sAV, sT1); add64(sKB, sBK, sT2); add64(sVB, sBV, sT2)
A(f"  s_lshl_b32 s{sT0}, s{sH}, 17\n  s_lshl_b32 s{sT1}, s{sW}, 7\n  s_add_u32 s{sT0}, s{sT0}, s{sT1}")
add64(sWO, sWO, sT0)

class Seg:
    def __init__(self, name, sbase, kind):
        self.name, self.sbase, self.kind, self.n = name, sbase, kind, 0
    def load(self, sl):
        j = self.n; self.n += 1
        tag = (self.name, j)
        voff = vKOFF if self.kind == "k" else vLOFF
        i = j % 8
        A(f"  global_load_dwordx4 {slot(sl)}, v{voff}, s[{self.sbase}:{self.sbase+1}] offset:{-4096+1024*i} {KPOL}")
        if i == 7:
            A(f"  s_add_u32 s{self.sbase}, s{self.sbase}, 0x10000\n  s_addc_u32 s{self.sbase+1}, s{self.sbase+1}, 0")
        F.issue(tag)
        return tag

def prefetch_rest():
    A(f"  s_lshl_b32 s{sT0}, s{sW}, 14")
    for t in range(PRE, NSLOT):
        if WIN < 32: A(f"  s_waitcnt vmcnt({WIN-1})")
        tags[t] = KA.load(t)
    for i in range(16):
        A(f"  s_add_u32 m0, s{sT0}, {LWO + 1024*i}")
        if WIN < 32: A(f"  s_waitcnt vmcnt({WIN-1})")
        else: A("  s_nop 0")
        A(f"  global_load_lds_dwordx4 v{vWOOFF}, s[{sWO}:{sWO+1}] nt")
        F.issue(("dma", i))
        if i < 15: A(f"  s_add_u32 s{sWO}, s{sWO}, 0x2000\n  s_addc_u32 s{sWO+1}, s{sWO+1}, 0")

KA, VA, KB, VB = Seg("KA", sKA, "k"), Seg("VA", sVA, "v"), Seg("KB", sKB, "k"), Seg("VB", sVB, "v")
tags = {}
for t in range(PRE):
    tags[t] = KA.load(t)
A(f"  v_mov_b32 v{vLOG2E}, {LOG2E:#x}\n  v_mov_b32 v{vSCALE}, {SCALE:#x}")
A(f"  v_and_b32 v{vT}, 1, v{vN}\n  v_lshlrev_b32 v{vT}, 4, v{vT}")
A(f"  v_mov_b32 v{vD}, 0xffff\n  v_lshlrev_b32 v{vD}, v{vT}, v{vD}")
A(f"  v_bfe_u32 v{vT}, v{vN}, 1, 2")
for w in range(4):
    A(f"  v_cmp_eq_u32 vcc, {w}, v{vT}\n  s_nop 1\n  v_cndmask_b32 v{vMASK+w}, 0, v{vD}, vcc")
for t, s in ((1, sM1), (2, sM2), (3, sM3)):
    m = 0x11111111 << t
    A(f"  s_mov_b32 s{s}, {m:#x}\n  s_mov_b32 s{s+1}, {m:#x}")
for i in range(4):
    m = 0x000f000f << (4 * i)
    A(f"  s_mov_b32 s{sC0+2*i}, {m:#x}\n  s_mov_b32 s{sC0+2*i+1}, {m:#x}")
A(f"  s_mov_b32 s{sU}, 0xff00ff00\n  s_mov_b32 s{sU+1}, 0xff00ff00")
F.wait(("wq", 3))
qs(0)
for k in range(8):
    A(f"  v_lshl_or_b32 v{vXW+k}, v{vXW+k}, 16, v{vXW+k}")
for p in range(2):
    acc = vACC if p == 0 else vACC2
    for i in range(4):
        ao = vAOP + 4 * (i & 1)
        for w in range(4):
            A(f"  v_and_b32 v{ao+w}, v{vXW+4*p+i}, v{vMASK+w}")
        A("  s_nop 1")
        c = "0" if i == 0 else vr(acc)
        A(f"  v_mfma_f32_16x16x32_bf16 {vr(acc)}, {vr(ao)}, {vr(vWQ+4*i)}, {c}")
A(f"  v_lshrrev_b32 v{vT}, 1, v{vG}\n  v_lshlrev_b32 v{vT}, 9, v{vT}\n  v_lshl_add_u32 v{vT}, v{vN}, 5, v{vT}")
A(f"  v_and_b32 v{vD}, 1, v{vG}\n  v_lshl_add_u32 v{vT}, v{vD}, 4, v{vT}")
A(f"  s_lshl_b32 s{sT0}, s{sW}, 11\n  s_add_u32 s{sT0}, s{sT0}, {LQP}\n  v_add_u32 v{vT}, s{sT0}, v{vT}")
A("  s_nop 4")
A(f"  ds_write_b128 v{vT}, {vr(vACC)}\n  ds_write_b128 v{vT}, {vr(vACC2)} offset:1024")
A("  s_waitcnt lgkmcnt(0)\n  s_barrier")
lq = lab("qdone")
lpf = lab("pf")
A(f"  s_cmp_lg_u32 s{sW}, 0\n  s_cbranch_scc1 {lpf}")
qs(1)
A(f"  v_add_u32 v{vT}, {LQP}, v{vLOFF}")
for hh in range(2):
    for w in range(8):
        A(f"  ds_read_b128 {vr(vTMP+4*w)}, v{vT} offset:{w*2048 + hh*1024}")
    A("  s_waitcnt lgkmcnt(0)")
    d = vACC if hh == 0 else vACC2
    for e in range(4):
        A(f"  v_add_f32 v{d+e}, v{vTMP+e}, v{vTMP+4+e}")
        for w in range(2, 8):
            A(f"  v_add_f32 v{d+e}, v{d+e}, v{vTMP+4*w+e}")
A(f"  s_lshl_b32 s{sT0}, s{sH}, 1\n  s_add_u32 s{sT0}, s{sT0}, s{sHALF}\n  s_lshl_b32 s{sT0}, s{sT0}, 2\n  s_add_u32 s{sT0}, s{sT0}, s{sB}\n  s_lshl_b32 s{sT0}, s{sT0}, 11\n  s_add_u32 s{sT0}, s{sT0}, {WQP}")
A(f"  v_add_u32 v{vT}, s{sT0}, v{vLOFF}")
A(f"  global_store_dwordx4 v{vT}, {vr(vACC)}, s[{sWS}:{sWS+1}] sc1")
A(f"  global_store_dwordx4 v{vT}, {vr(vACC2)}, s[{sWS}:{sWS+1}] offset:1024 sc1")
A(f"  s_lshl_b32 s{sT1}, s{sH}, 2\n  v_mov_b32 v{vD}, s{sT1}")
lt = lab("tpoll")
A(f"  s_mov_b32 s{sCNT}, 0")
A(f"{lt}:")
A(f"  s_mov_b64 exec, 1\n  global_load_dword v{vD+1}, v{vD}, s[{sDBG}:{sDBG+1}] sc1\n  s_mov_b64 exec, -1")
A("  s_waitcnt vmcnt(0)")
A(f"  v_readfirstlane_b32 s{sTAG}, v{vD+1}")
A(f"  s_add_u32 s{sCNT}, s{sCNT}, 1\n  s_cmp_gt_u32 s{sCNT}, 0x200000\n  s_cbranch_scc1 {lt}x")
A(f"  s_cmp_eq_u32 s{sTAG}, 0\n  s_cbranch_scc1 {lt}")
A(f"{lt}x:")
qs(2)
A(f"  s_lshl_b32 s{sT0}, s{sHALF}, 2\n  s_add_u32 s{sT0}, s{sT0}, s{sB}\n  s_lshl_b32 s{sT0}, s{sT0}, 3\n  s_lshl_b32 s{sT1}, s{sH}, 8\n  s_add_u32 s{sT1}, s{sT1}, {WFQ}\n  s_add_u32 s{sT0}, s{sT0}, s{sT1}")
A(f"  v_mov_b32 v{vD+4}, s{sTAG}\n  v_not_b32 v{vD+5}, v{vD+4}\n  v_mov_b32 v{vD}, s{sT0}")
A(f"  s_mov_b64 exec, 1\n  global_store_dwordx2 v{vD}, v[{vD+4}:{vD+5}], s[{sWS}:{sWS+1}] sc1\n  s_mov_b64 exec, -1")
A(f"  v_lshlrev_b32 v{vD}, 3, v{vLANE}\n  v_add_u32 v{vD}, s{sT1}, v{vD}")
A(f"  v_lshrrev_b32 v{vT}, 5, v{vLANE}\n  v_lshlrev_b32 v{vT}, 13, v{vT}\n  v_and_b32 v{vD+2}, 31, v{vLANE}\n  v_lshl_add_u32 v{vT}, v{vD+2}, 4, v{vT}")
A(f"  s_lshl_b32 s{sT0}, s{sH}, 14\n  s_lshl_b32 s{sT2}, s{sB}, 9\n  s_add_u32 s{sT0}, s{sT0}, s{sT2}\n  s_add_u32 s{sT0}, s{sT0}, {WQP}")
A(f"  v_add_u32 v{vT}, s{sT0}, v{vT}")
A(f"  v_add_u32 v{vD+3}, 0x1000, v{vT}")
lp = lab("qpoll")
A(f"  s_mov_b32 s{sCNT}, 0")
A(f"  s_cmp_eq_u32 s{sHALF}, 0\n  s_cselect_b32 s{sT2}, 0xf, 0xff")
A(f"{lp}:")
A(f"  s_mov_b64 exec, 0xff\n  global_load_dwordx2 v[{vD+6}:{vD+7}], v{vD}, s[{sWS}:{sWS+1}] sc1")
A("  s_waitcnt vmcnt(0)")
A(f"  v_cmp_eq_u64 vcc, v[{vD+6}:{vD+7}], v[{vD+4}:{vD+5}]\n  s_mov_b64 exec, -1")
A(f"  s_and_b32 s{sT0}, vcc_lo, s{sT2}")
A(f"  s_add_u32 s{sCNT}, s{sCNT}, 1\n  s_cmp_gt_u32 s{sCNT}, 0x200000\n  s_cbranch_scc1 {lp}x")
A(f"  s_cmp_lg_u32 s{sT0}, s{sT2}\n  s_cbranch_scc1 {lp}")
A(f"{lp}x:")
qs(3)
for rq in range(4):
    if rq < 2: A(f"  global_load_dwordx4 {vr(vTMP+4*rq)}, v{vT}, s[{sWS}:{sWS+1}] offset:{2048*rq} sc1")
    else: A(f"  global_load_dwordx4 {vr(vTMP+4*rq)}, v{vD+3}, s[{sWS}:{sWS+1}] offset:{2048*(rq-2)} sc1")
A("  s_waitcnt vmcnt(0)")
qs(4)
for e in range(4):
    A(f"  v_add_f32 v{vTMP+e}, v{vTMP+e}, v{vTMP+4+e}\n  v_add_f32 v{vTMP+8+e}, v{vTMP+8+e}, v{vTMP+12+e}\n  v_add_f32 v{vTMP+e}, v{vTMP+e}, v{vTMP+8+e}")
A(f"  v_cvt_pk_bf16_f32 v{vTMP+4}, v{vTMP}, v{vTMP+1}\n  v_cvt_pk_bf16_f32 v{vTMP+5}, v{vTMP+2}, v{vTMP+3}")
A(f"  v_lshlrev_b32 v{vT}, 3, v{vLANE}")
A(f"  ds_write_b64 v{vT}, v[{vTMP+4}:{vTMP+5}] offset:{LQ}" if LQ < 65536 else
  f"  v_add_u32 v{vT}, {LQ}, v{vT}\n  ds_write_b64 v{vT}, v[{vTMP+4}:{vTMP+5}]")
A("  s_waitcnt lgkmcnt(0)")
stamp(0)
stamp(1)
A("  s_barrier")
stamp(7)
qs(5)
qs_flush(6)
A(f"{lpf}:")
prefetch_rest()
A(f"  s_cmp_eq_u32 s{sW}, 0\n  s_cbranch_scc1 {lq}")
A("  s_barrier")
A(f"{lq}:")

def wave_reduce(op, v, sdst):
    for c in ("row_ror:8", "row_ror:4", "row_ror:2", "row_ror:1"):
        A(f"  s_nop 1\n  {op}_dpp v{v}, v{v}, v{v} {c} {DPPM}")
    A(f"  s_nop 1\n  {op}_dpp v{v}, v{v}, v{v} row_bcast:15 row_mask:0xa bank_mask:0xf")
    A(f"  s_nop 1\n  {op}_dpp v{v}, v{v}, v{v} row_bcast:31 row_mask:0xc bank_mask:0xf")
    A(f"  s_nop 0\n  v_readlane_b32 s{sdst}, v{v}, 63\n  s_nop 1")
def round_bf16(regs):
    for r in regs:
        A(f"  v_cvt_pk_bf16_f32 v{r}, v{r}, v{r}\n  v_and_b32 v{r}, 0xffff0000, v{r}")

A(f"  v_and_b32 v{vT}, 3, v{vN}\n  v_lshl_add_u32 v{vT}, v{vG}, 2, v{vT}\n  v_lshlrev_b32 v{vT}, 4, v{vT}\n  v_add_u32 v{vT}, {LQ}, v{vT}")
A(f"  ds_read_b128 {vr(vTMP)}, v{vT}\n  ds_read_b128 {vr(vTMP+4)}, v{vT} offset:256")
A("  s_waitcnt lgkmcnt(0)")
for br, q in ((0, vQA), (1, vQB)):
    for i in range(4):
        for e in range(4):
            A(f"  v_cndmask_b32 v{q+4*i+e}, 0, v{vTMP+4*br+e}, s[{sC0+2*i}:{sC0+2*i+1}]")

def build_aop(dst, wreg, bc, two=None):
    if two is None:
        for w in range(4):
            A(f"  v_and_b32_dpp v{dst+w}, v{wreg}, v{vMASK+w} row_newbcast:{bc} {DPPM}")
    else:
        A(f"  v_mov_b32_dpp v{vTMP+44}, v{wreg} row_newbcast:{bc} {DPPM}")
        A(f"  v_mov_b32_dpp v{vTMP+45}, v{two} row_newbcast:{bc} {DPPM}")
        A(f"  v_cndmask_b32 v{vTMP+44}, v{vTMP+44}, v{vTMP+45}, s[{sU}:{sU+1}]")
        for w in range(4):
            A(f"  v_and_b32 v{dst+w}, v{vTMP+44}, v{vMASK+w}")

class Stream:
    def __init__(self, seq):
        self.seq = seq; self.k = 0
    def next(self):
        k = self.k; self.k += 1
        half = k % NH
        refill = self.seq[k + NH] if k + NH < len(self.seq) else None
        return half, refill

def consume_pv(st, preg, first_zero, hook=None):
    half, refill = st.next()
    bc = lambda j: (j & 3) * 4 + (j >> 2)
    A("  s_nop 1")
    build_aop(vAOP, preg, bc(0))
    for i in range(16):
        sl = half * 16 + i
        if i < 15: build_aop(vAOP + 4 * ((i + 1) & 1), preg, bc(i + 1))
        else: A("  s_nop 0")
        F.wait(tags[sl])
        c = "0" if (first_zero and i == 0) else vr(vACC)
        A(f"  v_mfma_f32_16x16x32_bf16 {vr(vACC)}, {vr(vAOP + 4 * (i & 1))}, {slot(sl)}, {c}")
        if refill is not None: tags[sl] = refill.load(sl)
        if hook and i == 0: hook()

def consume_qk(st, q, sdst, hook=None):
    half, refill = st.next()
    for j in range(16):
        sl = half * 16 + j
        t, i = j >> 2, j & 3
        F.wait(tags[sl])
        c = "0" if i == 0 else vr(vD + 4 * t)
        A(f"  v_mfma_f32_16x16x32_bf16 {vr(vD+4*t)}, {slot(sl)}, {vr(q+4*i)}, {c}")
        if refill is not None: tags[sl] = refill.load(sl)
        if hook and j == 0: hook()
    A("  s_nop 7")
    for t in range(4):
        d = vTMP + t
        A(f"  v_mov_b32_dpp v{d}, v{vD+4*t} quad_perm:[0,0,0,0] {DPPM}")
        for s in range(1, 4):
            A(f"  v_add_f32_dpp v{d}, v{vD+4*t+s}, v{d} quad_perm:[{s},{s},{s},{s}] {DPPM}")
    A(f"  v_cndmask_b32 v{sdst}, v{vTMP}, v{vTMP+1}, s[{sM1}:{sM1+1}]")
    A(f"  v_cndmask_b32 v{sdst}, v{sdst}, v{vTMP+2}, s[{sM2}:{sM2+1}]")
    A(f"  v_cndmask_b32 v{sdst}, v{sdst}, v{vTMP+3}, s[{sM3}:{sM3+1}]")

def softmax(nb):
    S = [vS + k for k in range(nb)]
    round_bf16(S)
    for r in S: A(f"  v_mul_f32 v{r}, v{r}, v{vSCALE}")
    round_bf16(S)
    for r in S: A(f"  v_mul_f32 v{r}, v{r}, v{vLOG2E}")
    t = vTMP
    A(f"  v_mov_b32 v{t}, v{S[0]}")
    for r in S[1:]: A(f"  v_max_f32 v{t}, v{t}, v{r}")
    wave_reduce("v_max_f32", t, sMX)
    for r in S: A(f"  v_subrev_f32 v{r}, s{sMX}, v{r}")
    for r in S: A(f"  v_exp_f32 v{r}, v{r}")
    A("  s_nop 0")
    for k, r in enumerate(S): A(f"  v_cvt_pk_bf16_f32 v{vP+k}, v{r}, v{r}")
    A(f"  v_mov_b32 v{t}, v{S[0]}")
    for r in S[1:]: A(f"  v_add_f32 v{t}, v{t}, v{r}")
    wave_reduce("v_add_f32", t, sL)

def store_partial_lds(base, mlbase):
    A(f"  v_and_b32 v{vTMP}, 1, v{vG}\n  v_lshlrev_b32 v{vTMP}, 4, v{vTMP}\n  v_lshl_add_u32 v{vTMP}, v{vN}, 5, v{vTMP}")
    A(f"  s_lshl_b32 s{sT0}, s{sW}, 9\n  s_add_u32 s{sT0}, s{sT0}, {base}\n  v_add_u32 v{vTMP}, s{sT0}, v{vTMP}")
    A(f"  s_lshl_b32 s{sT0}, s{sW}, 3\n  s_add_u32 s{sT0}, s{sT0}, {mlbase}")
    A(f"  v_mov_b32 v{vTMP+1}, s{sT0}\n  v_mov_b32 v{vTMP+2}, s{sMX}\n  v_mov_b32 v{vTMP+3}, s{sL}")
    A(f"  ds_write_b64 v{vTMP+1}, v[{vTMP+2}:{vTMP+3}]")
    A("  s_nop 3")
    A(f"  ds_write_b128 v{vTMP}, {vr(vACC)}")

def combine(base, mlbase, nsl, normalise):
    ml = vTMP
    ov = vTMP + 20
    a = vTMP + 38
    A(f"  v_mov_b32 v{a}, {mlbase}")
    for k in range((nsl + 1) // 2):
        A(f"  ds_read_b128 {vr(ml+4*k)}, v{a} offset:{16*k}")
    A(f"  v_lshl_add_u32 v{a+1}, v{vN}, 3, v{vG}\n  v_lshlrev_b32 v{a+1}, 2, v{a+1}\n  v_add_u32 v{a+1}, {base}, v{a+1}")
    for w in range(nsl):
        A(f"  ds_read_b32 v{ov+2*w}, v{a+1} offset:{w*512}\n  ds_read_b32 v{ov+2*w+1}, v{a+1} offset:{w*512 + 16}")
    A("  s_waitcnt lgkmcnt(0)")
    M, Lr = vTMP + 41, vTMP + 42
    A(f"  v_max_f32 v{M}, v{ml}, v{ml+2}")
    for w in range(2, nsl): A(f"  v_max_f32 v{M}, v{M}, v{ml+2*w}")
    for w in range(nsl): A(f"  v_sub_f32 v{ml+2*w}, v{ml+2*w}, v{M}")
    for w in range(nsl): A(f"  v_exp_f32 v{ml+2*w}, v{ml+2*w}")
    A("  s_nop 0")
    A(f"  v_mul_f32 v{Lr}, v{ml}, v{ml+1}")
    for w in range(1, nsl): A(f"  v_fmac_f32 v{Lr}, v{ml+2*w}, v{ml+2*w+1}")
    if normalise: A(f"  v_rcp_f32 v{a}, v{Lr}")
    A(f"  v_mul_f32 v{a+1}, v{ml}, v{ov}\n  v_mul_f32 v{a+2}, v{ml}, v{ov+1}")
    for w in range(1, nsl):
        A(f"  v_fmac_f32 v{a+1}, v{ml+2*w}, v{ov+2*w}\n  v_fmac_f32 v{a+2}, v{ml+2*w}, v{ov+2*w+1}")
    if normalise:
        A(f"  v_mul_f32 v{a+1}, v{a+1}, v{a}\n  v_mul_f32 v{a+2}, v{a+2}, v{a}")

def gate():
    A(f"  s_lshl_b32 s{sT0}, s{sB}, 10\n  v_add_u32 v{vT}, s{sT0}, v{vLOFF}")
    A(f"  global_load_dwordx4 {vr(vTMP+8)}, v{vT}, s[{sX}:{sX+1}]")
    F.issue("gx")
    A(f"  global_load_dwordx4 {vr(vTMP+12)}, v{vLOFF}, s[{sGW}:{sGW+1}]")
    F.issue("gw")
def gate2():
    F.wait("gw")
    t = vTMP
    A(f"  v_mov_b32 v{t+5}, 0")
    for e in range(4):
        A(f"  v_lshlrev_b32 v{t}, 16, v{t+8+e}\n  v_lshlrev_b32 v{t+1}, 16, v{t+12+e}\n  v_mul_f32 v{t}, v{t}, v{t+1}")
        A(f"  v_and_b32 v{t+2}, 0xffff0000, v{t+8+e}\n  v_and_b32 v{t+3}, 0xffff0000, v{t+12+e}\n  v_mul_f32 v{t+2}, v{t+2}, v{t+3}")
        A(f"  v_cvt_pk_bf16_f32 v{t}, v{t}, v{t+2}")
        A(f"  v_lshlrev_b32 v{t+1}, 16, v{t}\n  v_and_b32 v{t+2}, 0xffff0000, v{t}")
        A(f"  v_add_f32 v{t+5}, v{t+5}, v{t+1}\n  v_add_f32 v{t+5}, v{t+5}, v{t+2}")
    wave_reduce("v_add_f32", t + 5, sT0)
    A(f"  v_mov_b32 v{vGATE}, s{sT0}")
    round_bf16([vGATE])
    A(f"  v_mul_f32 v{vGATE}, v{vLOG2E}, v{vGATE}\n  v_exp_f32 v{vGATE}, -v{vGATE}\n  s_nop 0")
    A(f"  v_add_f32 v{vGATE}, 1.0, v{vGATE}\n  v_rcp_f32 v{vGATE}, v{vGATE}\n  s_nop 0")
    round_bf16([vGATE])
    A(f"  v_sub_f32 v{vOMG}, 1.0, v{vGATE}")
    round_bf16([vOMG])

A(f"  s_cmp_lg_u32 s{sHALF}, 0\n  s_cbranch_scc1 L_pathS")
F0, tags0 = F.copy(), dict(tags)
segn = (KA.n, VA.n, KB.n, VB.n)

st = Stream([KA] * 5 + [VA] * 5)
for k in range(5):
    if k == 1: gate()
    consume_qk(st, vQA, vS + k)
    if k == 2: gate2()
softmax(5)
stamp(2)
PXR = vTMP + 24
def poll_issue():
    l = lab("pi")
    A(f"  s_cmp_lg_u32 s{sW}, 0\n  s_cbranch_scc1 {l}")
    A(f"  s_lshl_b32 s{sT1}, s{sBH}, 8\n  s_add_u32 s{sT1}, s{sT1}, {WFP}\n  v_mov_b32 v{PXR}, s{sT1}")
    A(f"  global_load_dwordx2 v[{PXR+2}:{PXR+3}], v{PXR}, s[{sWS}:{sWS+1}] sc1")
    A(f"{l}:")
def poll_check():
    l = lab("pc")
    A(f"  s_cmp_lg_u32 s{sW}, 0\n  s_cbranch_scc1 {l}")
    A(f"  s_lshl_b32 s{sT1}, s{sBH}, 8\n  s_add_u32 s{sT1}, s{sT1}, {WFP}\n  v_mov_b32 v{PXR}, s{sT1}")
    A(f"  s_mov_b32 s{sCNT}, 0\n  s_not_b32 s{sT2}, s{sTAG}")
    A(f"{l}a:")
    A(f"  v_readfirstlane_b32 s{sT0}, v{PXR+2}\n  v_readfirstlane_b32 s{sT1}, v{PXR+3}")
    A(f"  s_xor_b32 s{sT0}, s{sT0}, s{sTAG}\n  s_xor_b32 s{sT1}, s{sT1}, s{sT2}\n  s_or_b32 s{sT0}, s{sT0}, s{sT1}\n  s_cbranch_scc0 {l}b")
    A(f"  s_add_u32 s{sCNT}, s{sCNT}, 1\n  s_cmp_gt_u32 s{sCNT}, 0x200000\n  s_cbranch_scc1 {l}b")
    A(f"  global_load_dwordx2 v[{PXR+2}:{PXR+3}], v{PXR}, s[{sWS}:{sWS+1}] sc1\n  s_waitcnt vmcnt(0)\n  s_branch {l}a")
    A(f"{l}b:")
    A(f"  s_lshl_b32 s{sT0}, s{sBH}, 10\n  s_add_u32 s{sT0}, s{sT0}, {WPX}\n  v_add_u32 v{PXR}, s{sT0}, v{vLOFF}")
    A(f"  global_load_dwordx4 {vr(PXR+4)}, v{PXR}, s[{sWS}:{sWS+1}] sc1")
    A(f"{l}:")
for k in range(5):
    hook = None
    if k == 2: hook = poll_issue
    if k == 3 + (NH - 1) - (1 if NH == 2 else 0): hook = poll_check if k > 2 else None
    consume_pv(st, vP + k, k == 0, hook)
if NH == 2:
    pass
store_partial_lds(LO2, LML2)
l = lab("px")
A(f"  s_cmp_lg_u32 s{sW}, 0\n  s_cbranch_scc1 {l}")
A("  s_waitcnt vmcnt(0)")
A(f"  v_add_u32 v{PXR}, {LO2 + 8*512}, v{vLOFF}")
A(f"  s_mov_b32 exec_hi, 0\n  ds_write_b128 v{PXR}, {vr(PXR+4)}")
A(f"  s_mov_b32 exec_lo, 0\n  s_mov_b32 exec_hi, 1\n  v_mov_b32 v{PXR}, {LML2 + 64}\n  ds_write_b64 v{PXR}, v[{PXR+4}:{PXR+5}]")
A("  s_mov_b64 exec, -1")
A(f"{l}:")
stamp(4)
A("  s_waitcnt lgkmcnt(0)\n  s_barrier")
combine(LO2, LML2, 9, True)
A("  s_branch L_tail")

A("L_pathS:")
F = F0; tags = tags0
KA.n, VA.n, KB.n, VB.n = segn
st = Stream([KA] * 3 + [VA] * 3 + [KB] * 2 + [VB] * 2)
for k in range(3):
    if k == 1: gate()
    consume_qk(st, vQA, vS + k)
    if k == 2: gate2()
softmax(3)
stamp(2)
for k in range(3):
    consume_pv(st, vP + k, k == 0)
store_partial_lds(LO1, LML1)
A("  s_waitcnt lgkmcnt(0)\n  s_barrier")
l = lab("pub")
A(f"  s_cmp_lg_u32 s{sW}, 0\n  s_cbranch_scc1 {l}")
combine(LO1, LML1, 8, False)
A(f"  s_lshl_b32 s{sT0}, s{sBH}, 10\n  s_add_u32 s{sT0}, s{sT0}, {WPX}")
A(f"  v_lshl_add_u32 v{vTMP}, v{vN}, 3, v{vG}\n  v_lshlrev_b32 v{vTMP}, 2, v{vTMP}\n  v_add_u32 v{vTMP}, s{sT0}, v{vTMP}")
A(f"  global_store_dword v{vTMP}, v{vTMP+39}, s[{sWS}:{sWS+1}] sc1")
A(f"  global_store_dword v{vTMP}, v{vTMP+40}, s[{sWS}:{sWS+1}] offset:16 sc1")
A(f"  v_mov_b32 v{vTMP+2}, v{vTMP+41}\n  v_mov_b32 v{vTMP+3}, v{vTMP+42}")
A(f"  s_mov_b64 exec, 1\n  global_store_dwordx2 v{vTMP}, v[{vTMP+2}:{vTMP+3}], s[{sWS}:{sWS+1}] offset:512 sc1\n  s_mov_b64 exec, -1")
A(f"{l}:")
stamp(3)
nbefore = len(F.q)
consume_qk(st, vQB, vS + 0)
def signal():
    l = lab("sig")
    A(f"  s_cmp_lg_u32 s{sW}, 0\n  s_cbranch_scc1 {l}")
    A(f"  s_waitcnt vmcnt(16)")
    A(f"  s_lshl_b32 s{sT1}, s{sBH}, 8\n  s_add_u32 s{sT1}, s{sT1}, {WFP}")
    A(f"  v_mov_b32 v{vTMP+8}, s{sT1}\n  v_mov_b32 v{vTMP+10}, s{sTAG}\n  v_not_b32 v{vTMP+11}, v{vTMP+10}")
    A(f"  s_mov_b64 exec, 1\n  global_store_dwordx2 v{vTMP+8}, v[{vTMP+10}:{vTMP+11}], s[{sWS}:{sWS+1}] sc1\n  s_mov_b64 exec, -1")
    A(f"{l}:")
signal()
consume_qk(st, vQB, vS + 1)
softmax(2)
for k in range(2):
    consume_pv(st, vP + k, k == 0)
store_partial_lds(LO2, LML2)
stamp(4)
A("  s_waitcnt lgkmcnt(0)\n  s_barrier")
combine(LO2, LML2, 8, True)

A("L_tail:")
A(f"  v_cvt_pk_bf16_f32 v{vP}, v{vTMP+39}, v{vTMP+39}\n  v_cvt_pk_bf16_f32 v{vP+1}, v{vTMP+40}, v{vTMP+40}")
A(f"  s_lshl_b32 s{sT0}, s{sW}, 14\n  v_add_u32 v{vT}, s{sT0}, v{vLOFF}")
for i in range(16):
    A(f"  ds_read_b128 {slot(i)}, v{vT} offset:{LWO + 1024*i}")
build_aop(vAOP, vP, 0, vP + 1)
for i in range(16):
    if i < 15: build_aop(vAOP + 4 * ((i + 1) & 1), vP, i + 1, vP + 1)
    else: A("  s_nop 0")
    A(f"  s_waitcnt lgkmcnt({15-i})")
    c = "0" if i == 0 else vr(vACC)
    A(f"  v_mfma_f32_16x16x32_bf16 {vr(vACC)}, {vr(vAOP + 4 * (i & 1))}, {slot(i)}, {c}")
A(f"  s_lshl_b32 s{sT0}, s{sB}, 1\n  s_add_u32 s{sT0}, s{sT0}, s{sHALF}\n  s_lshl_b32 s{sT0}, s{sT0}, 5\n  s_add_u32 s{sT0}, s{sT0}, s{sH}\n  s_lshl_b32 s{sT0}, s{sT0}, 11")
A(f"  s_lshl_b32 s{sT1}, s{sW}, 8\n  s_add_u32 s{sT0}, s{sT0}, s{sT1}")
A(f"  v_lshlrev_b32 v{vTMP+8}, 5, v{vN}\n  v_lshl_add_u32 v{vTMP+8}, v{vG}, 4, v{vTMP+8}\n  v_add_u32 v{vTMP+8}, s{sT0}, v{vTMP+8}")
for b in range(4): A(f"  v_mov_b32 v{vTMP+b}, 0")
A("  s_nop 1")
for b in range(4): A(f"  v_permlane32_swap_b32 v{vACC+b}, v{vTMP+b}")
A("  s_nop 1")
for b in range(4): A(f"  v_add_f32_dpp v{vTMP+4+b}, v{vTMP+b}, v{vACC+b} row_shl:8 {DPPM}")
A("  s_mov_b32 exec_lo, 0x00ff00ff\n  s_mov_b32 exec_hi, 0")
A(f"  global_store_dwordx4 v{vTMP+8}, {vr(vTMP+4)}, s[{sWS}:{sWS+1}] sc1")
A("  s_mov_b64 exec, -1")
A("  s_waitcnt vmcnt(0)\n  s_barrier")
A(f"  s_cmp_lg_u32 s{sW}, 0\n  s_cbranch_scc1 L_end")
A(f"  s_lshl_b32 s{sT0}, s{sHALF}, 5\n  s_add_u32 s{sT0}, s{sT0}, s{sH}\n  s_lshl_b32 s{sT2}, s{sT0}, 3\n  s_lshl_b32 s{sT1}, s{sB}, 9\n  s_add_u32 s{sT1}, s{sT1}, {WFF}\n  s_add_u32 s{sT2}, s{sT2}, s{sT1}")
A(f"  v_mov_b32 v{vTMP+8}, s{sT2}\n  v_mov_b32 v{vTMP+10}, s{sTAG}\n  v_not_b32 v{vTMP+11}, v{vTMP+10}")
A(f"  s_mov_b64 exec, 1\n  global_store_dwordx2 v{vTMP+8}, v[{vTMP+10}:{vTMP+11}], s[{sWS}:{sWS+1}] sc1\n  s_mov_b64 exec, -1")
stamp(5)
A(f"  v_lshlrev_b32 v{vTMP+8}, 3, v{vLANE}\n  v_add_u32 v{vTMP+8}, s{sT1}, v{vTMP+8}")
A(f"  v_and_b32 v{vTMP+9}, 31, v{vLANE}\n  v_lshlrev_b32 v{vTMP+9}, 2, v{vTMP+9}")
A(f"  s_lshl_b32 s{sT1}, s{sB}, 17\n  s_lshl_b32 s{sT2}, s{sT0}, 5\n  s_add_u32 s{sT1}, s{sT1}, s{sT2}")
A(f"  v_lshlrev_b32 v{vT}, 11, v{vLANE}\n  v_add_u32 v{vT}, s{sT1}, v{vT}")
lf = lab("fpoll")
A(f"  s_mov_b32 s{sCNT}, 0")
A(f"{lf}:")
A(f"  global_load_dword v{vTMP+12}, v{vTMP+9}, s[{sDBG}:{sDBG+1}] sc1")
A(f"  global_load_dwordx2 v[{vTMP+14}:{vTMP+15}], v{vTMP+8}, s[{sWS}:{sWS+1}] sc1")
A("  s_waitcnt vmcnt(0)")
A(f"  v_not_b32 v{vTMP+13}, v{vTMP+12}")
A(f"  v_cmp_eq_u64 vcc, v[{vTMP+14}:{vTMP+15}], v[{vTMP+12}:{vTMP+13}]")
A(f"  v_cmp_ne_u32 s[{sEX}:{sEX+1}], 0, v{vTMP+12}")
A(f"  s_and_b64 vcc, vcc, s[{sEX}:{sEX+1}]")
A(f"  s_add_u32 s{sCNT}, s{sCNT}, 1\n  s_cmp_gt_u32 s{sCNT}, 0x200000\n  s_cbranch_scc1 {lf}x")
A(f"  s_cmp_lg_u64 vcc, -1\n  s_cbranch_scc1 {lf}")
A(f"{lf}x:")
A(f"  global_load_dwordx4 {vr(vTMP)}, v{vT}, s[{sWS}:{sWS+1}] sc1")
A(f"  global_load_dwordx4 {vr(vTMP+4)}, v{vT}, s[{sWS}:{sWS+1}] offset:16 sc1")
A("  s_waitcnt vmcnt(0)")
for c in ("row_ror:8", "row_ror:4", "row_ror:2", "row_ror:1"):
    for e in range(8): A(f"  v_add_f32_dpp v{vTMP+e}, v{vTMP+e}, v{vTMP+e} {c} {DPPM}")
for e in range(8): A(f"  v_mov_b32 v{vTMP+8+e}, v{vTMP+e}")
A("  s_nop 1")
for e in range(8): A(f"  v_permlane16_swap_b32 v{vTMP+e}, v{vTMP+8+e}")
A("  s_nop 1")
for e in range(8): A(f"  v_add_f32 v{vTMP+e}, v{vTMP+e}, v{vTMP+8+e}")
round_bf16(range(vTMP, vTMP + 8))
A(f"  s_mov_b32 s{sEX}, 0\n  s_mov_b32 s{sEX+1}, -1")
A(f"  v_cndmask_b32 v{vTMP+16}, v{vGATE}, v{vOMG}, s[{sEX}:{sEX+1}]")
for e in range(8): A(f"  v_mul_f32 v{vTMP+e}, v{vTMP+16}, v{vTMP+e}")
round_bf16(range(vTMP, vTMP + 8))
for e in range(8): A(f"  v_mov_b32 v{vTMP+8+e}, v{vTMP+e}")
A("  s_nop 1")
for e in range(8): A(f"  v_permlane32_swap_b32 v{vTMP+e}, v{vTMP+8+e}")
A("  s_nop 1")
for e in range(8): A(f"  v_add_f32 v{vTMP+e}, v{vTMP+e}, v{vTMP+8+e}")
for e in range(4): A(f"  v_cvt_pk_bf16_f32 v{vTMP+20+e}, v{vTMP+2*e}, v{vTMP+2*e+1}")
A(f"  s_lshl_b32 s{sT1}, s{sB}, 10\n  s_lshl_b32 s{sT0}, s{sT0}, 4\n  s_add_u32 s{sT0}, s{sT0}, s{sT1}")
A(f"  v_mov_b32 v{vT}, s{sT0}")
A("  s_mov_b64 exec, 1")
A(f"  global_store_dwordx4 v{vT}, {vr(vTMP+20)}, s[{sOUT}:{sOUT+1}]")
if STAMP:
    A("  s_mov_b64 exec, -1")
    stamp(6, True)
A("L_end:\n  s_endpgm")

kernels = [(KN, NVGPR, 96)]
if STAMP:
    A(".globl agg_kernel\n.p2align 8\n.type agg_kernel,@function\nagg_kernel:")
    A("  s_cmp_lg_u32 s2, 0\n  s_cbranch_scc1 L_end2")
    A("  s_load_dwordx4 s[20:23], s[0:1], 96")
    A(f"  v_lshlrev_b32 v1, 7, v0\n  v_add_u32 v1, {WST}, v1")
    A("  s_waitcnt lgkmcnt(0)")
    for k in range(8):
        A(f"  global_load_dwordx4 v[{8+4*k}:{11+4*k}], v1, s[22:23] offset:{16*k}")
    A("  s_waitcnt vmcnt(0)")
    for k in range(8):
        A(f"  v_min_u32 v40, v{8+k}, v{16+k}\n  v_min3_u32 v40, v40, v{24+k}, v{32+k}")
        A(f"  v_max_u32 v41, v{8+k}, v{16+k}\n  v_max3_u32 v41, v41, v{24+k}, v{32+k}")
        wave_reduce("v_min_u32", 40, 24)
        wave_reduce("v_max_u32", 41, 25)
        A(f"  v_mov_b32 v42, s24\n  v_mov_b32 v43, s25\n  v_mov_b32 v44, {8*k}")
        A("  s_mov_b64 exec, 1\n  global_store_dwordx2 v44, v[42:43], s[20:21]\n  s_mov_b64 exec, -1")
    A("L_end2:\n  s_endpgm")
    kernels.append(("agg_kernel", 48, 32))
A('.section .rodata,"a"')
for name, nv, ns in kernels:
    A(f""".p2align 6
.amdhsa_kernel {name}
  .amdhsa_next_free_vgpr {nv}
  .amdhsa_next_free_sgpr {ns}
  .amdhsa_accum_offset {(nv+3)//4*4}
  .amdhsa_group_segment_fixed_size 0
  .amdhsa_kernarg_size 112
  .amdhsa_user_sgpr_count 2
  .amdhsa_user_sgpr_kernarg_segment_ptr 1
  .amdhsa_system_sgpr_workgroup_id_x 1
.end_amdhsa_kernel""")
open(out, "w").write("\n".join(L) + "\n")
```

```python
import sys
out = sys.argv[1]
opts = sys.argv[2:]
STAMP = "stamp" in opts or "qstamp" in opts
QST = "qstamp" in opts
NH = 1
WIN = 4
for o in opts:
    if o.startswith("win"): WIN = int(o[3:])
PRE = 2
for o in opts:
    if o.startswith("pre"): PRE = int(o[3:])
KPOL = "nt"
L = []
def A(s): L.append(s)
KN = "gated_mix__mha_block_cached__sliding_block_cached__decode_kernel"

for line in open("gated_mix__mha_block_cached__sliding_block_cached__decode.s.ref").read().split("\n"):
    if line.startswith(";") and "@launch" not in line:
        A(line)
LWO = 0
LQP = 131072
LQ = LQP + 16384
LO1 = LQ + 512
LML1 = LO1 + 9 * 512
LO2 = LML1 + 128
LML2 = LO2 + 9 * 512
LFLAG = LML2 + 128
LDS_BYTES = LFLAG + 64
assert LDS_BYTES <= 163840
if STAMP:
    A(f"; @launch kernel={KN} grid=(256,1,1) block=(512,1,1) lds={LDS_BYTES}")
    A("; @launch kernel=agg_kernel grid=(1,1,1) block=(64,1,1) lds=0")
else:
    A(f"; @launch grid=(256,1,1) block=(512,1,1) lds={LDS_BYTES}")
A('.amdgcn_target "amdgcn-amd-amdhsa--gfx950"\n.text')

LOG2E = 0x3fb8aa3b
SCALE = 0x3db504f3
WY, WQP, WPX, WST = 0, 0x80000, 0x100000, 0x200000
WFQ, WFP, WFF = 0x140000, 0x150000, 0x160000

class Fifo:
    def __init__(self): self.q = []
    def issue(self, tag): self.q.append(tag)
    def wait(self, tag):
        if tag not in self.q: return
        idx = self.q.index(tag)
        n = len(self.q) - 1 - idx
        assert n <= 63
        A(f"  s_waitcnt vmcnt({n})")
        self.q = self.q[idx + 1:]
    def copy(self):
        f = Fifo(); f.q = list(self.q); return f
F = Fifo()

vLANE, vKOFF, vLOFF, vWQOFF, vWOOFF = 1, 2, 3, 4, 5
vMASK = 6
vN, vG = 10, 11
vLOG2E, vSCALE = 12, 13
vT = 14
vGATE, vOMG = 15, 0
vQA, vQB = 16, 32
vD = 48
vS = 64
vP = 69
vAOP = 76
vACC = 84
vACC2 = 88
vTMP = 92
RING = 140
NSLOT = 16 * NH
NVGPR = RING + 4 * NSLOT
def slot(i): return f"v[{RING+4*i}:{RING+4*i+3}]"
def vr(b, n=4): return f"v[{b}:{b+n-1}]"

sW = 3
sX, sAK, sAV, sAWQ, sAWO = 8, 10, 12, 14, 16
sGW, sOUT = 4, 6
sBK, sBV, sBWQ, sBWO = 20, 22, 24, 26
sDBG, sWS = 28, 30
sKA, sVA, sKB, sVB, sWQ, sWO = 32, 34, 36, 38, 40, 42
sM1, sM2, sM3 = 44, 46, 48
sC0 = 50
sU = 58
sH, sB, sHALF, sBH = 60, 61, 62, 63
sT0, sT1, sT2, sT3 = 64, 65, 66, 67
sMX, sL = 68, 69
sEX = 70
sST = 72
sCNT = 78
sTAG = 79

DPPM = "row_mask:0xf bank_mask:0xf"
uid = [0]
def lab(p):
    uid[0] += 1
    return f"L_{p}{uid[0]}"

def qs(k):
    if QST: A(f"  s_memrealtime s[{80+2*k}:{81+2*k}]")
def qs_flush(n):
    if not QST: return
    A("  s_waitcnt lgkmcnt(0)")
    A(f"  s_mov_b64 exec, 1")
    A(f"  s_lshl_b32 s{sST+1}, s2, 5\n  s_add_u32 s{sST+1}, s{sST+1}, {WST}")
    A(f"  v_mov_b32 v{vTMP+47}, s{sST+1}")
    A(f"  v_mov_b32 v{vTMP+46}, s{sST+4}\n  global_store_dword v{vTMP+47}, v{vTMP+46}, s[{sWS}:{sWS+1}]")
    for k in range(n):
        A(f"  v_mov_b32 v{vTMP+46}, s{80+2*k}\n  global_store_dword v{vTMP+47}, v{vTMP+46}, s[{sWS}:{sWS+1}] offset:{4*(k+1)}")
    A(f"  s_mov_b64 exec, -1")
def stamp(k, drain=False):
    if not STAMP or QST: return
    l = lab("st")
    A(f"  s_cmp_lg_u32 s{sW}, 0\n  s_cbranch_scc1 {l}")
    if drain: A("  s_waitcnt vmcnt(0)")
    A(f"  s_memrealtime s[{sST}:{sST+1}]\n  s_waitcnt lgkmcnt(0)")
    if k == 0: A(f"  s_mov_b32 s{sST}, s{sST+4}")
    A(f"  s_mov_b64 s[{sST+2}:{sST+3}], exec\n  s_mov_b64 exec, 1")
    A(f"  s_lshl_b32 s{sST+1}, s2, 5\n  s_add_u32 s{sST+1}, s{sST+1}, {WST + 4*k}")
    A(f"  v_mov_b32 v{vTMP+46}, s{sST}\n  v_mov_b32 v{vTMP+47}, s{sST+1}")
    A(f"  global_store_dword v{vTMP+47}, v{vTMP+46}, s[{sWS}:{sWS+1}]")
    if k == 0:
        for kk in range(1, 8):
            A(f"  global_store_dword v{vTMP+47}, v{vTMP+46}, s[{sWS}:{sWS+1}] offset:{4*kk}")
    A(f"  s_mov_b64 exec, s[{sST+2}:{sST+3}]")
    A(f"{l}:")

A(f".globl {KN}\n.p2align 8\n.type {KN},@function\n{KN}:")
A("  s_cmp_ge_u32 s2, 256\n  s_cbranch_scc1 L_end")
if STAMP: A(f"  s_memrealtime s[{sST+4}:{sST+5}]")
A("  s_load_dwordx8 s[8:15], s[0:1], 0")
A("  s_load_dwordx2 s[16:17], s[0:1], 32")
A("  s_load_dwordx8 s[20:27], s[0:1], 48")
A("  s_load_dwordx4 s[4:7], s[0:1], 80")
A("  s_load_dwordx4 s[28:31], s[0:1], 96")
A(f"  v_lshrrev_b32 v{vT}, 6, v0")
A(f"  v_and_b32 v{vLANE}, 63, v0")
A(f"  v_readfirstlane_b32 s{sW}, v{vT}")
A(f"  v_and_b32 v{vN}, 15, v{vLANE}")
A(f"  v_lshrrev_b32 v{vG}, 4, v{vLANE}")
A(f"  v_bfe_u32 v{vT}, v{vLANE}, 2, 2")
A(f"  v_lshlrev_b32 v{vKOFF}, 8, v{vT}")
A(f"  v_lshl_add_u32 v{vKOFF}, v{vG}, 6, v{vKOFF}")
A(f"  v_and_b32 v{vT}, 3, v{vLANE}")
A(f"  v_lshl_add_u32 v{vKOFF}, v{vT}, 4, v{vKOFF}")
A(f"  v_lshlrev_b32 v{vLOFF}, 4, v{vLANE}")
A(f"  v_lshlrev_b32 v{vWQOFF}, 13, v{vG}")
A(f"  v_lshl_add_u32 v{vWQOFF}, v{vN}, 4, v{vWQOFF}")
A(f"  v_lshrrev_b32 v{vT}, 3, v{vN}")
A(f"  v_lshl_add_u32 v{vT}, v{vT}, 2, v{vG}")
A(f"  v_lshlrev_b32 v{vWOOFF}, 10, v{vT}")
A(f"  v_and_b32 v{vT}, 7, v{vN}")
A(f"  v_lshl_add_u32 v{vWOOFF}, v{vT}, 4, v{vWOOFF}")
A(f"  s_and_b32 s{sH}, s2, 7\n  s_lshl_b32 s{sH}, s{sH}, 2\n  s_bfe_u32 s{sT0}, s2, 0x20003\n  s_add_u32 s{sH}, s{sH}, s{sT0}")
A(f"  s_bfe_u32 s{sB}, s2, 0x20005")
A(f"  s_lshr_b32 s{sHALF}, s2, 7")
A(f"  s_lshl_b32 s{sBH}, s{sB}, 5\n  s_add_u32 s{sBH}, s{sBH}, s{sH}")
A(f"  s_lshl_b32 s{sT0}, s{sBH}, 20\n  s_lshl_b32 s{sT1}, s{sW}, 13\n  s_add_u32 s{sT0}, s{sT0}, s{sT1}\n  s_add_u32 s{sT0}, s{sT0}, 4096")
A(f"  s_mul_i32 s{sT1}, s{sHALF}, {2560*256}\n  s_add_u32 s{sT1}, s{sT1}, s{sT0}      ; A off")
A(f"  s_add_u32 s{sT2}, s{sT0}, {3072*256}    ; B off")
A(f"  s_lshl_b32 s{sT3}, s{sB}, 8\n  s_lshl_b32 s{sT0}, s{sW}, 5\n  s_add_u32 s{sT3}, s{sT3}, s{sT0}")
A(f"  v_lshrrev_b32 v{vT}, 3, v{vN}\n  v_lshlrev_b32 v{vT}, 10, v{vT}\n  v_lshl_add_u32 v{vT}, v{vG}, 1, v{vT}\n  v_add_u32 v{vT}, s{sT3}, v{vT}")
A("  s_waitcnt lgkmcnt(0)")
ltag = lab("tag")
A(f"  s_or_b32 s92, s{sB}, s{sHALF}\n  s_or_b32 s92, s92, s{sW}\n  s_cmp_lg_u32 s92, 0\n  s_cbranch_scc1 {ltag}")
A(f"  s_memrealtime s[92:93]\n  s_waitcnt lgkmcnt(0)\n  s_or_b32 s92, s92, 1")
A(f"  s_lshl_b32 s93, s{sH}, 2\n  v_mov_b32 v{vD}, s93\n  v_mov_b32 v{vD+1}, s92")
A(f"  s_mov_b64 exec, 1\n  global_store_dword v{vD}, v{vD+1}, s[{sDBG}:{sDBG+1}] sc1\n  s_mov_b64 exec, -1")
A(f"{ltag}:")
vXW = vTMP + 32
for p in range(2):
    for i in range(4):
        A(f"  global_load_ushort v{vXW+4*p+i}, v{vT}, s[{sX}:{sX+1}] offset:{2048*p + 8*i}")
        F.issue(("xw", p, i))
def add64(d, base, off):
    A(f"  s_add_u32 s{d}, s{base}, s{off}\n  s_addc_u32 s{d+1}, s{base+1}, 0")
A(f"  s_cmp_eq_u32 s{sHALF}, 0")
A(f"  s_cselect_b32 s{sWQ}, s{sAWQ}, s{sBWQ}\n  s_cselect_b32 s{sWQ+1}, s{sAWQ+1}, s{sBWQ+1}")
A(f"  s_cselect_b32 s{sWO}, s{sAWO}, s{sBWO}\n  s_cselect_b32 s{sWO+1}, s{sAWO+1}, s{sBWO+1}")
A(f"  s_lshl_b32 s{sT0}, s{sT3}, 12\n  s_lshl_b32 s{sT3}, s{sH}, 8\n  s_add_u32 s{sT0}, s{sT0}, s{sT3}")
add64(sWQ, sWQ, sT0)
vWQ = vTMP
for i in range(4):
    A(f"  global_load_dwordx4 {vr(vWQ+4*i)}, v{vWQOFF}, s[{sWQ}:{sWQ+1}] nt")
    F.issue(("wq", i))
    if i < 3: A(f"  s_add_u32 s{sWQ}, s{sWQ}, 0x8000\n  s_addc_u32 s{sWQ+1}, s{sWQ+1}, 0")
add64(sKA, sAK, sT1); add64(sVA, sAV, sT1); add64(sKB, sBK, sT2); add64(sVB, sBV, sT2)
A(f"  s_lshl_b32 s{sT0}, s{sH}, 17\n  s_lshl_b32 s{sT1}, s{sW}, 7\n  s_add_u32 s{sT0}, s{sT0}, s{sT1}")
add64(sWO, sWO, sT0)

class Seg:
    def __init__(self, name, sbase, kind):
        self.name, self.sbase, self.kind, self.n = name, sbase, kind, 0
    def load(self, sl):
        j = self.n; self.n += 1
        tag = (self.name, j)
        voff = vKOFF if self.kind == "k" else vLOFF
        i = j % 8
        A(f"  global_load_dwordx4 {slot(sl)}, v{voff}, s[{self.sbase}:{self.sbase+1}] offset:{-4096+1024*i} {KPOL}")
        if i == 7:
            A(f"  s_add_u32 s{self.sbase}, s{self.sbase}, 0x10000\n  s_addc_u32 s{self.sbase+1}, s{self.sbase+1}, 0")
        F.issue(tag)
        return tag

NODMA = "nodma" in opts
DMAPOL = "nt"
for o in opts:
    if o.startswith("dmapol="): DMAPOL = o[7:].replace("none", "").replace("+", " ")
DMAFIRST = "dmafirst" in opts
DWIN = WIN
for o in opts:
    if o.startswith("dwin"): DWIN = int(o[4:])
def prefetch_rest():
    A(f"  s_lshl_b32 s{sT0}, s{sW}, 14")
    def ring():
        for t in range(PRE, NSLOT):
            if WIN < 32: A(f"  s_waitcnt vmcnt({WIN-1})")
            tags[t] = KA.load(t)
    def dma():
        if NODMA: return
        for i in range(16):
            A(f"  s_add_u32 m0, s{sT0}, {LWO + 1024*i}")
            if DWIN < 32: A(f"  s_waitcnt vmcnt({DWIN-1})")
            else: A("  s_nop 0")
            A(f"  global_load_lds_dwordx4 v{vWOOFF}, s[{sWO}:{sWO+1}] {DMAPOL}")
            F.issue(("dma", i))
            if i < 15: A(f"  s_add_u32 s{sWO}, s{sWO}, 0x2000\n  s_addc_u32 s{sWO+1}, s{sWO+1}, 0")
    if DMAFIRST: dma(); ring()
    else: ring(); dma()

KA, VA, KB, VB = Seg("KA", sKA, "k"), Seg("VA", sVA, "v"), Seg("KB", sKB, "k"), Seg("VB", sVB, "v")
tags = {}
for t in range(PRE):
    tags[t] = KA.load(t)
A(f"  v_mov_b32 v{vLOG2E}, {LOG2E:#x}\n  v_mov_b32 v{vSCALE}, {SCALE:#x}")
A(f"  v_and_b32 v{vT}, 1, v{vN}\n  v_lshlrev_b32 v{vT}, 4, v{vT}")
A(f"  v_mov_b32 v{vD}, 0xffff\n  v_lshlrev_b32 v{vD}, v{vT}, v{vD}")
A(f"  v_bfe_u32 v{vT}, v{vN}, 1, 2")
for w in range(4):
    A(f"  v_cmp_eq_u32 vcc, {w}, v{vT}\n  s_nop 1\n  v_cndmask_b32 v{vMASK+w}, 0, v{vD}, vcc")
for t, s in ((1, sM1), (2, sM2), (3, sM3)):
    m = 0x11111111 << t
    A(f"  s_mov_b32 s{s}, {m:#x}\n  s_mov_b32 s{s+1}, {m:#x}")
for i in range(4):
    m = 0x000f000f << (4 * i)
    A(f"  s_mov_b32 s{sC0+2*i}, {m:#x}\n  s_mov_b32 s{sC0+2*i+1}, {m:#x}")
A(f"  s_mov_b32 s{sU}, 0xff00ff00\n  s_mov_b32 s{sU+1}, 0xff00ff00")
F.wait(("wq", 3))
qs(0)
for k in range(8):
    A(f"  v_lshl_or_b32 v{vXW+k}, v{vXW+k}, 16, v{vXW+k}")
for p in range(2):
    acc = vACC if p == 0 else vACC2
    for i in range(4):
        ao = vAOP + 4 * (i & 1)
        for w in range(4):
            A(f"  v_and_b32 v{ao+w}, v{vXW+4*p+i}, v{vMASK+w}")
        A("  s_nop 1")
        c = "0" if i == 0 else vr(acc)
        A(f"  v_mfma_f32_16x16x32_bf16 {vr(acc)}, {vr(ao)}, {vr(vWQ+4*i)}, {c}")
A(f"  v_lshrrev_b32 v{vT}, 1, v{vG}\n  v_lshlrev_b32 v{vT}, 9, v{vT}\n  v_lshl_add_u32 v{vT}, v{vN}, 5, v{vT}")
A(f"  v_and_b32 v{vD}, 1, v{vG}\n  v_lshl_add_u32 v{vT}, v{vD}, 4, v{vT}")
A(f"  s_lshl_b32 s{sT0}, s{sW}, 11\n  s_add_u32 s{sT0}, s{sT0}, {LQP}\n  v_add_u32 v{vT}, s{sT0}, v{vT}")
A("  s_nop 4")
A(f"  ds_write_b128 v{vT}, {vr(vACC)}\n  ds_write_b128 v{vT}, {vr(vACC2)} offset:1024")
A("  s_waitcnt lgkmcnt(0)\n  s_barrier")
lq = lab("qdone")
lpf = lab("pf")
A(f"  s_cmp_lg_u32 s{sW}, 0\n  s_cbranch_scc1 {lpf}")
qs(1)
A(f"  v_add_u32 v{vT}, {LQP}, v{vLOFF}")
for hh in range(2):
    for w in range(8):
        A(f"  ds_read_b128 {vr(vTMP+4*w)}, v{vT} offset:{w*2048 + hh*1024}")
    A("  s_waitcnt lgkmcnt(0)")
    d = vACC if hh == 0 else vACC2
    for e in range(4):
        A(f"  v_add_f32 v{d+e}, v{vTMP+e}, v{vTMP+4+e}")
        for w in range(2, 8):
            A(f"  v_add_f32 v{d+e}, v{d+e}, v{vTMP+4*w+e}")
A(f"  s_lshl_b32 s{sT0}, s{sH}, 1\n  s_add_u32 s{sT0}, s{sT0}, s{sHALF}\n  s_lshl_b32 s{sT0}, s{sT0}, 2\n  s_add_u32 s{sT0}, s{sT0}, s{sB}\n  s_lshl_b32 s{sT0}, s{sT0}, 11\n  s_add_u32 s{sT0}, s{sT0}, {WQP}")
A(f"  v_add_u32 v{vT}, s{sT0}, v{vLOFF}")
A(f"  global_store_dwordx4 v{vT}, {vr(vACC)}, s[{sWS}:{sWS+1}] sc1")
A(f"  global_store_dwordx4 v{vT}, {vr(vACC2)}, s[{sWS}:{sWS+1}] offset:1024 sc1")
A(f"  s_lshl_b32 s{sT1}, s{sH}, 2\n  v_mov_b32 v{vD}, s{sT1}")
lt = lab("tpoll")
A(f"  s_mov_b32 s{sCNT}, 0")
A(f"{lt}:")
A(f"  s_mov_b64 exec, 1\n  global_load_dword v{vD+1}, v{vD}, s[{sDBG}:{sDBG+1}] sc1\n  s_mov_b64 exec, -1")
A("  s_waitcnt vmcnt(0)")
A(f"  v_readfirstlane_b32 s{sTAG}, v{vD+1}")
A(f"  s_add_u32 s{sCNT}, s{sCNT}, 1\n  s_cmp_gt_u32 s{sCNT}, 0x200000\n  s_cbranch_scc1 {lt}x")
A(f"  s_cmp_eq_u32 s{sTAG}, 0\n  s_cbranch_scc1 {lt}")
A(f"{lt}x:")
qs(2)
A(f"  s_lshl_b32 s{sT0}, s{sHALF}, 2\n  s_add_u32 s{sT0}, s{sT0}, s{sB}\n  s_lshl_b32 s{sT0}, s{sT0}, 3\n  s_lshl_b32 s{sT1}, s{sH}, 8\n  s_add_u32 s{sT1}, s{sT1}, {WFQ}\n  s_add_u32 s{sT0}, s{sT0}, s{sT1}")
A(f"  v_mov_b32 v{vD+4}, s{sTAG}\n  v_not_b32 v{vD+5}, v{vD+4}\n  v_mov_b32 v{vD}, s{sT0}")
A(f"  s_mov_b64 exec, 1\n  global_store_dwordx2 v{vD}, v[{vD+4}:{vD+5}], s[{sWS}:{sWS+1}] sc1\n  s_mov_b64 exec, -1")
A(f"  v_lshlrev_b32 v{vD}, 3, v{vLANE}\n  v_add_u32 v{vD}, s{sT1}, v{vD}")
A(f"  v_lshrrev_b32 v{vT}, 5, v{vLANE}\n  v_lshlrev_b32 v{vT}, 13, v{vT}\n  v_and_b32 v{vD+2}, 31, v{vLANE}\n  v_lshl_add_u32 v{vT}, v{vD+2}, 4, v{vT}")
A(f"  s_lshl_b32 s{sT0}, s{sH}, 14\n  s_lshl_b32 s{sT2}, s{sB}, 9\n  s_add_u32 s{sT0}, s{sT0}, s{sT2}\n  s_add_u32 s{sT0}, s{sT0}, {WQP}")
A(f"  v_add_u32 v{vT}, s{sT0}, v{vT}")
A(f"  v_add_u32 v{vD+3}, 0x1000, v{vT}")
lp = lab("qpoll")
A(f"  s_mov_b32 s{sCNT}, 0")
A(f"  s_cmp_eq_u32 s{sHALF}, 0\n  s_cselect_b32 s{sT2}, 0xf, 0xff")
A(f"{lp}:")
A(f"  s_mov_b64 exec, 0xff\n  global_load_dwordx2 v[{vD+6}:{vD+7}], v{vD}, s[{sWS}:{sWS+1}] sc1")
A("  s_waitcnt vmcnt(0)")
A(f"  v_cmp_eq_u64 vcc, v[{vD+6}:{vD+7}], v[{vD+4}:{vD+5}]\n  s_mov_b64 exec, -1")
A(f"  s_and_b32 s{sT0}, vcc_lo, s{sT2}")
A(f"  s_add_u32 s{sCNT}, s{sCNT}, 1\n  s_cmp_gt_u32 s{sCNT}, 0x200000\n  s_cbranch_scc1 {lp}x")
A(f"  s_cmp_lg_u32 s{sT0}, s{sT2}\n  s_cbranch_scc1 {lp}")
A(f"{lp}x:")
qs(3)
for rq in range(4):
    if rq < 2: A(f"  global_load_dwordx4 {vr(vTMP+4*rq)}, v{vT}, s[{sWS}:{sWS+1}] offset:{2048*rq} sc1")
    else: A(f"  global_load_dwordx4 {vr(vTMP+4*rq)}, v{vD+3}, s[{sWS}:{sWS+1}] offset:{2048*(rq-2)} sc1")
A("  s_waitcnt vmcnt(0)")
qs(4)
for e in range(4):
    A(f"  v_add_f32 v{vTMP+e}, v{vTMP+e}, v{vTMP+4+e}\n  v_add_f32 v{vTMP+8+e}, v{vTMP+8+e}, v{vTMP+12+e}\n  v_add_f32 v{vTMP+e}, v{vTMP+e}, v{vTMP+8+e}")
A(f"  v_cvt_pk_bf16_f32 v{vTMP+4}, v{vTMP}, v{vTMP+1}\n  v_cvt_pk_bf16_f32 v{vTMP+5}, v{vTMP+2}, v{vTMP+3}")
A(f"  v_lshlrev_b32 v{vT}, 3, v{vLANE}")
A(f"  ds_write_b64 v{vT}, v[{vTMP+4}:{vTMP+5}] offset:{LQ}" if LQ < 65536 else
  f"  v_add_u32 v{vT}, {LQ}, v{vT}\n  ds_write_b64 v{vT}, v[{vTMP+4}:{vTMP+5}]")
A("  s_waitcnt lgkmcnt(0)")
stamp(0)
stamp(1)
A("  s_barrier")
stamp(7)
qs(5)
qs_flush(6)
A(f"{lpf}:")
prefetch_rest()
A(f"  s_cmp_eq_u32 s{sW}, 0\n  s_cbranch_scc1 {lq}")
A("  s_barrier")
A(f"{lq}:")

def wave_reduce(op, v, sdst):
    for c in ("row_ror:8", "row_ror:4", "row_ror:2", "row_ror:1"):
        A(f"  s_nop 1\n  {op}_dpp v{v}, v{v}, v{v} {c} {DPPM}")
    A(f"  s_nop 1\n  {op}_dpp v{v}, v{v}, v{v} row_bcast:15 row_mask:0xa bank_mask:0xf")
    A(f"  s_nop 1\n  {op}_dpp v{v}, v{v}, v{v} row_bcast:31 row_mask:0xc bank_mask:0xf")
    A(f"  s_nop 0\n  v_readlane_b32 s{sdst}, v{v}, 63\n  s_nop 1")
def round_bf16(regs):
    for r in regs:
        A(f"  v_cvt_pk_bf16_f32 v{r}, v{r}, v{r}\n  v_and_b32 v{r}, 0xffff0000, v{r}")

A(f"  v_and_b32 v{vT}, 3, v{vN}\n  v_lshl_add_u32 v{vT}, v{vG}, 2, v{vT}\n  v_lshlrev_b32 v{vT}, 4, v{vT}\n  v_add_u32 v{vT}, {LQ}, v{vT}")
A(f"  ds_read_b128 {vr(vTMP)}, v{vT}\n  ds_read_b128 {vr(vTMP+4)}, v{vT} offset:256")
A("  s_waitcnt lgkmcnt(0)")
for br, q in ((0, vQA), (1, vQB)):
    for i in range(4):
        for e in range(4):
            A(f"  v_cndmask_b32 v{q+4*i+e}, 0, v{vTMP+4*br+e}, s[{sC0+2*i}:{sC0+2*i+1}]")

def build_aop(dst, wreg, bc, two=None):
    if two is None:
        for w in range(4):
            A(f"  v_and_b32_dpp v{dst+w}, v{wreg}, v{vMASK+w} row_newbcast:{bc} {DPPM}")
    else:
        A(f"  v_mov_b32_dpp v{vTMP+44}, v{wreg} row_newbcast:{bc} {DPPM}")
        A(f"  v_mov_b32_dpp v{vTMP+45}, v{two} row_newbcast:{bc} {DPPM}")
        A(f"  v_cndmask_b32 v{vTMP+44}, v{vTMP+44}, v{vTMP+45}, s[{sU}:{sU+1}]")
        for w in range(4):
            A(f"  v_and_b32 v{dst+w}, v{vTMP+44}, v{vMASK+w}")

class Stream:
    def __init__(self, seq):
        self.seq = seq; self.k = 0
    def next(self):
        k = self.k; self.k += 1
        half = k % NH
        refill = self.seq[k + NH] if k + NH < len(self.seq) else None
        return half, refill

def consume_pv(st, preg, first_zero, hook=None):
    half, refill = st.next()
    bc = lambda j: (j & 3) * 4 + (j >> 2)
    A("  s_nop 1")
    build_aop(vAOP, preg, bc(0))
    for i in range(16):
        sl = half * 16 + i
        if i < 15: build_aop(vAOP + 4 * ((i + 1) & 1), preg, bc(i + 1))
        else: A("  s_nop 0")
        F.wait(tags[sl])
        c = "0" if (first_zero and i == 0) else vr(vACC)
        A(f"  v_mfma_f32_16x16x32_bf16 {vr(vACC)}, {vr(vAOP + 4 * (i & 1))}, {slot(sl)}, {c}")
        if refill is not None: tags[sl] = refill.load(sl)
        if hook and i == 0: hook()

def consume_qk(st, q, sdst, hook=None):
    half, refill = st.next()
    for j in range(16):
        sl = half * 16 + j
        t, i = j >> 2, j & 3
        F.wait(tags[sl])
        c = "0" if i == 0 else vr(vD + 4 * t)
        A(f"  v_mfma_f32_16x16x32_bf16 {vr(vD+4*t)}, {slot(sl)}, {vr(q+4*i)}, {c}")
        if refill is not None: tags[sl] = refill.load(sl)
        if hook and j == 0: hook()
    A("  s_nop 7")
    for t in range(4):
        d = vTMP + t
        A(f"  v_mov_b32_dpp v{d}, v{vD+4*t} quad_perm:[0,0,0,0] {DPPM}")
        for s in range(1, 4):
            A(f"  v_add_f32_dpp v{d}, v{vD+4*t+s}, v{d} quad_perm:[{s},{s},{s},{s}] {DPPM}")
    A(f"  v_cndmask_b32 v{sdst}, v{vTMP}, v{vTMP+1}, s[{sM1}:{sM1+1}]")
    A(f"  v_cndmask_b32 v{sdst}, v{sdst}, v{vTMP+2}, s[{sM2}:{sM2+1}]")
    A(f"  v_cndmask_b32 v{sdst}, v{sdst}, v{vTMP+3}, s[{sM3}:{sM3+1}]")

def softmax(nb):
    S = [vS + k for k in range(nb)]
    round_bf16(S)
    for r in S: A(f"  v_mul_f32 v{r}, v{r}, v{vSCALE}")
    round_bf16(S)
    for r in S: A(f"  v_mul_f32 v{r}, v{r}, v{vLOG2E}")
    t = vTMP
    A(f"  v_mov_b32 v{t}, v{S[0]}")
    for r in S[1:]: A(f"  v_max_f32 v{t}, v{t}, v{r}")
    wave_reduce("v_max_f32", t, sMX)
    for r in S: A(f"  v_subrev_f32 v{r}, s{sMX}, v{r}")
    for r in S: A(f"  v_exp_f32 v{r}, v{r}")
    A("  s_nop 0")
    for k, r in enumerate(S): A(f"  v_cvt_pk_bf16_f32 v{vP+k}, v{r}, v{r}")
    A(f"  v_mov_b32 v{t}, v{S[0]}")
    for r in S[1:]: A(f"  v_add_f32 v{t}, v{t}, v{r}")
    wave_reduce("v_add_f32", t, sL)

def store_partial_lds(base, mlbase):
    A(f"  v_and_b32 v{vTMP}, 1, v{vG}\n  v_lshlrev_b32 v{vTMP}, 4, v{vTMP}\n  v_lshl_add_u32 v{vTMP}, v{vN}, 5, v{vTMP}")
    A(f"  s_lshl_b32 s{sT0}, s{sW}, 9\n  s_add_u32 s{sT0}, s{sT0}, {base}\n  v_add_u32 v{vTMP}, s{sT0}, v{vTMP}")
    A(f"  s_lshl_b32 s{sT0}, s{sW}, 3\n  s_add_u32 s{sT0}, s{sT0}, {mlbase}")
    A(f"  v_mov_b32 v{vTMP+1}, s{sT0}\n  v_mov_b32 v{vTMP+2}, s{sMX}\n  v_mov_b32 v{vTMP+3}, s{sL}")
    A(f"  ds_write_b64 v{vTMP+1}, v[{vTMP+2}:{vTMP+3}]")
    A("  s_nop 3")
    A(f"  ds_write_b128 v{vTMP}, {vr(vACC)}")

def combine(base, mlbase, nsl, normalise):
    ml = vTMP
    ov = vTMP + 20
    a = vTMP + 38
    A(f"  v_mov_b32 v{a}, {mlbase}")
    for k in range((nsl + 1) // 2):
        A(f"  ds_read_b128 {vr(ml+4*k)}, v{a} offset:{16*k}")
    A(f"  v_lshl_add_u32 v{a+1}, v{vN}, 3, v{vG}\n  v_lshlrev_b32 v{a+1}, 2, v{a+1}\n  v_add_u32 v{a+1}, {base}, v{a+1}")
    for w in range(nsl):
        A(f"  ds_read_b32 v{ov+2*w}, v{a+1} offset:{w*512}\n  ds_read_b32 v{ov+2*w+1}, v{a+1} offset:{w*512 + 16}")
    A("  s_waitcnt lgkmcnt(0)")
    M, Lr = vTMP + 41, vTMP + 42
    A(f"  v_max_f32 v{M}, v{ml}, v{ml+2}")
    for w in range(2, nsl): A(f"  v_max_f32 v{M}, v{M}, v{ml+2*w}")
    for w in range(nsl): A(f"  v_sub_f32 v{ml+2*w}, v{ml+2*w}, v{M}")
    for w in range(nsl): A(f"  v_exp_f32 v{ml+2*w}, v{ml+2*w}")
    A("  s_nop 0")
    A(f"  v_mul_f32 v{Lr}, v{ml}, v{ml+1}")
    for w in range(1, nsl): A(f"  v_fmac_f32 v{Lr}, v{ml+2*w}, v{ml+2*w+1}")
    if normalise: A(f"  v_rcp_f32 v{a}, v{Lr}")
    A(f"  v_mul_f32 v{a+1}, v{ml}, v{ov}\n  v_mul_f32 v{a+2}, v{ml}, v{ov+1}")
    for w in range(1, nsl):
        A(f"  v_fmac_f32 v{a+1}, v{ml+2*w}, v{ov+2*w}\n  v_fmac_f32 v{a+2}, v{ml+2*w}, v{ov+2*w+1}")
    if normalise:
        A(f"  v_mul_f32 v{a+1}, v{a+1}, v{a}\n  v_mul_f32 v{a+2}, v{a+2}, v{a}")

def gate():
    A(f"  s_lshl_b32 s{sT0}, s{sB}, 10\n  v_add_u32 v{vT}, s{sT0}, v{vLOFF}")
    A(f"  global_load_dwordx4 {vr(vTMP+8)}, v{vT}, s[{sX}:{sX+1}]")
    F.issue("gx")
    A(f"  global_load_dwordx4 {vr(vTMP+12)}, v{vLOFF}, s[{sGW}:{sGW+1}]")
    F.issue("gw")
def gate2():
    F.wait("gw")
    t = vTMP
    A(f"  v_mov_b32 v{t+5}, 0")
    for e in range(4):
        A(f"  v_lshlrev_b32 v{t}, 16, v{t+8+e}\n  v_lshlrev_b32 v{t+1}, 16, v{t+12+e}\n  v_mul_f32 v{t}, v{t}, v{t+1}")
        A(f"  v_and_b32 v{t+2}, 0xffff0000, v{t+8+e}\n  v_and_b32 v{t+3}, 0xffff0000, v{t+12+e}\n  v_mul_f32 v{t+2}, v{t+2}, v{t+3}")
        A(f"  v_cvt_pk_bf16_f32 v{t}, v{t}, v{t+2}")
        A(f"  v_lshlrev_b32 v{t+1}, 16, v{t}\n  v_and_b32 v{t+2}, 0xffff0000, v{t}")
        A(f"  v_add_f32 v{t+5}, v{t+5}, v{t+1}\n  v_add_f32 v{t+5}, v{t+5}, v{t+2}")
    wave_reduce("v_add_f32", t + 5, sT0)
    A(f"  v_mov_b32 v{vGATE}, s{sT0}")
    round_bf16([vGATE])
    A(f"  v_mul_f32 v{vGATE}, v{vLOG2E}, v{vGATE}\n  v_exp_f32 v{vGATE}, -v{vGATE}\n  s_nop 0")
    A(f"  v_add_f32 v{vGATE}, 1.0, v{vGATE}\n  v_rcp_f32 v{vGATE}, v{vGATE}\n  s_nop 0")
    round_bf16([vGATE])
    A(f"  v_sub_f32 v{vOMG}, 1.0, v{vGATE}")
    round_bf16([vOMG])

A(f"  s_cmp_lg_u32 s{sHALF}, 0\n  s_cbranch_scc1 L_pathS")
F0, tags0 = F.copy(), dict(tags)
segn = (KA.n, VA.n, KB.n, VB.n)

st = Stream([KA] * 5 + [VA] * 5)
for k in range(5):
    if k == 1: gate()
    consume_qk(st, vQA, vS + k)
    if k == 2: gate2()
softmax(5)
stamp(2)
PXR = vTMP + 24
def poll_issue():
    l = lab("pi")
    A(f"  s_cmp_lg_u32 s{sW}, 0\n  s_cbranch_scc1 {l}")
    A(f"  s_lshl_b32 s{sT1}, s{sBH}, 8\n  s_add_u32 s{sT1}, s{sT1}, {WFP}\n  v_mov_b32 v{PXR}, s{sT1}")
    A(f"  global_load_dwordx2 v[{PXR+2}:{PXR+3}], v{PXR}, s[{sWS}:{sWS+1}] sc1")
    A(f"{l}:")
def poll_check():
    l = lab("pc")
    A(f"  s_cmp_lg_u32 s{sW}, 0\n  s_cbranch_scc1 {l}")
    A(f"  s_lshl_b32 s{sT1}, s{sBH}, 8\n  s_add_u32 s{sT1}, s{sT1}, {WFP}\n  v_mov_b32 v{PXR}, s{sT1}")
    A(f"  s_mov_b32 s{sCNT}, 0\n  s_not_b32 s{sT2}, s{sTAG}")
    A(f"{l}a:")
    A(f"  v_readfirstlane_b32 s{sT0}, v{PXR+2}\n  v_readfirstlane_b32 s{sT1}, v{PXR+3}")
    A(f"  s_xor_b32 s{sT0}, s{sT0}, s{sTAG}\n  s_xor_b32 s{sT1}, s{sT1}, s{sT2}\n  s_or_b32 s{sT0}, s{sT0}, s{sT1}\n  s_cbranch_scc0 {l}b")
    A(f"  s_add_u32 s{sCNT}, s{sCNT}, 1\n  s_cmp_gt_u32 s{sCNT}, 0x200000\n  s_cbranch_scc1 {l}b")
    A(f"  global_load_dwordx2 v[{PXR+2}:{PXR+3}], v{PXR}, s[{sWS}:{sWS+1}] sc1\n  s_waitcnt vmcnt(0)\n  s_branch {l}a")
    A(f"{l}b:")
    A(f"  s_lshl_b32 s{sT0}, s{sBH}, 10\n  s_add_u32 s{sT0}, s{sT0}, {WPX}\n  v_add_u32 v{PXR}, s{sT0}, v{vLOFF}")
    A(f"  global_load_dwordx4 {vr(PXR+4)}, v{PXR}, s[{sWS}:{sWS+1}] sc1")
    A(f"{l}:")
for k in range(5):
    hook = None
    if k == 2: hook = poll_issue
    if k == 3 + (NH - 1) - (1 if NH == 2 else 0): hook = poll_check if k > 2 else None
    consume_pv(st, vP + k, k == 0, hook)
if NH == 2:
    pass
store_partial_lds(LO2, LML2)
l = lab("px")
A(f"  s_cmp_lg_u32 s{sW}, 0\n  s_cbranch_scc1 {l}")
A("  s_waitcnt vmcnt(0)")
A(f"  v_add_u32 v{PXR}, {LO2 + 8*512}, v{vLOFF}")
A(f"  s_mov_b32 exec_hi, 0\n  ds_write_b128 v{PXR}, {vr(PXR+4)}")
A(f"  s_mov_b32 exec_lo, 0\n  s_mov_b32 exec_hi, 1\n  v_mov_b32 v{PXR}, {LML2 + 64}\n  ds_write_b64 v{PXR}, v[{PXR+4}:{PXR+5}]")
A("  s_mov_b64 exec, -1")
A(f"{l}:")
stamp(4)
A("  s_waitcnt lgkmcnt(0)\n  s_barrier")
combine(LO2, LML2, 9, True)
A("  s_branch L_tail")

A("L_pathS:")
F = F0; tags = tags0
KA.n, VA.n, KB.n, VB.n = segn
st = Stream([KA] * 3 + [VA] * 3 + [KB] * 2 + [VB] * 2)
for k in range(3):
    if k == 1: gate()
    consume_qk(st, vQA, vS + k)
    if k == 2: gate2()
softmax(3)
stamp(2)
for k in range(3):
    consume_pv(st, vP + k, k == 0)
store_partial_lds(LO1, LML1)
A("  s_waitcnt lgkmcnt(0)\n  s_barrier")
l = lab("pub")
A(f"  s_cmp_lg_u32 s{sW}, 0\n  s_cbranch_scc1 {l}")
combine(LO1, LML1, 8, False)
A(f"  s_lshl_b32 s{sT0}, s{sBH}, 10\n  s_add_u32 s{sT0}, s{sT0}, {WPX}")
A(f"  v_lshl_add_u32 v{vTMP}, v{vN}, 3, v{vG}\n  v_lshlrev_b32 v{vTMP}, 2, v{vTMP}\n  v_add_u32 v{vTMP}, s{sT0}, v{vTMP}")
A(f"  global_store_dword v{vTMP}, v{vTMP+39}, s[{sWS}:{sWS+1}] sc1")
A(f"  global_store_dword v{vTMP}, v{vTMP+40}, s[{sWS}:{sWS+1}] offset:16 sc1")
A(f"  v_mov_b32 v{vTMP+2}, v{vTMP+41}\n  v_mov_b32 v{vTMP+3}, v{vTMP+42}")
A(f"  s_mov_b64 exec, 1\n  global_store_dwordx2 v{vTMP}, v[{vTMP+2}:{vTMP+3}], s[{sWS}:{sWS+1}] offset:512 sc1\n  s_mov_b64 exec, -1")
A(f"{l}:")
stamp(3)
nbefore = len(F.q)
consume_qk(st, vQB, vS + 0)
def signal():
    l = lab("sig")
    A(f"  s_cmp_lg_u32 s{sW}, 0\n  s_cbranch_scc1 {l}")
    A(f"  s_waitcnt vmcnt(16)")
    A(f"  s_lshl_b32 s{sT1}, s{sBH}, 8\n  s_add_u32 s{sT1}, s{sT1}, {WFP}")
    A(f"  v_mov_b32 v{vTMP+8}, s{sT1}\n  v_mov_b32 v{vTMP+10}, s{sTAG}\n  v_not_b32 v{vTMP+11}, v{vTMP+10}")
    A(f"  s_mov_b64 exec, 1\n  global_store_dwordx2 v{vTMP+8}, v[{vTMP+10}:{vTMP+11}], s[{sWS}:{sWS+1}] sc1\n  s_mov_b64 exec, -1")
    A(f"{l}:")
signal()
consume_qk(st, vQB, vS + 1)
softmax(2)
for k in range(2):
    consume_pv(st, vP + k, k == 0)
store_partial_lds(LO2, LML2)
stamp(4)
A("  s_waitcnt lgkmcnt(0)\n  s_barrier")
combine(LO2, LML2, 8, True)

A("L_tail:")
A(f"  v_cvt_pk_bf16_f32 v{vP}, v{vTMP+39}, v{vTMP+39}\n  v_cvt_pk_bf16_f32 v{vP+1}, v{vTMP+40}, v{vTMP+40}")
A(f"  s_lshl_b32 s{sT0}, s{sW}, 14\n  v_add_u32 v{vT}, s{sT0}, v{vLOFF}")
for i in range(16):
    A(f"  ds_read_b128 {slot(i)}, v{vT} offset:{LWO + 1024*i}")
build_aop(vAOP, vP, 0, vP + 1)
for i in range(16):
    if i < 15: build_aop(vAOP + 4 * ((i + 1) & 1), vP, i + 1, vP + 1)
    else: A("  s_nop 0")
    A(f"  s_waitcnt lgkmcnt({15-i})")
    c = "0" if i == 0 else vr(vACC)
    A(f"  v_mfma_f32_16x16x32_bf16 {vr(vACC)}, {vr(vAOP + 4 * (i & 1))}, {slot(i)}, {c}")
A(f"  s_lshl_b32 s{sT0}, s{sB}, 1\n  s_add_u32 s{sT0}, s{sT0}, s{sHALF}\n  s_lshl_b32 s{sT0}, s{sT0}, 5\n  s_add_u32 s{sT0}, s{sT0}, s{sH}\n  s_lshl_b32 s{sT0}, s{sT0}, 11")
A(f"  s_lshl_b32 s{sT1}, s{sW}, 8\n  s_add_u32 s{sT0}, s{sT0}, s{sT1}")
A(f"  v_lshlrev_b32 v{vTMP+8}, 5, v{vN}\n  v_lshl_add_u32 v{vTMP+8}, v{vG}, 4, v{vTMP+8}\n  v_add_u32 v{vTMP+8}, s{sT0}, v{vTMP+8}")
for b in range(4): A(f"  v_mov_b32 v{vTMP+b}, 0")
A("  s_nop 1")
for b in range(4): A(f"  v_permlane32_swap_b32 v{vACC+b}, v{vTMP+b}")
A("  s_nop 1")
for b in range(4): A(f"  v_add_f32_dpp v{vTMP+4+b}, v{vTMP+b}, v{vACC+b} row_shl:8 {DPPM}")
A("  s_mov_b32 exec_lo, 0x00ff00ff\n  s_mov_b32 exec_hi, 0")
A(f"  global_store_dwordx4 v{vTMP+8}, {vr(vTMP+4)}, s[{sWS}:{sWS+1}] sc1")
A("  s_mov_b64 exec, -1")
A("  s_waitcnt vmcnt(0)\n  s_barrier")
A(f"  s_cmp_lg_u32 s{sW}, 0\n  s_cbranch_scc1 L_end")
A(f"  s_lshl_b32 s{sT0}, s{sHALF}, 5\n  s_add_u32 s{sT0}, s{sT0}, s{sH}\n  s_lshl_b32 s{sT2}, s{sT0}, 3\n  s_lshl_b32 s{sT1}, s{sB}, 9\n  s_add_u32 s{sT1}, s{sT1}, {WFF}\n  s_add_u32 s{sT2}, s{sT2}, s{sT1}")
A(f"  v_mov_b32 v{vTMP+8}, s{sT2}\n  v_mov_b32 v{vTMP+10}, s{sTAG}\n  v_not_b32 v{vTMP+11}, v{vTMP+10}")
A(f"  s_mov_b64 exec, 1\n  global_store_dwordx2 v{vTMP+8}, v[{vTMP+10}:{vTMP+11}], s[{sWS}:{sWS+1}] sc1\n  s_mov_b64 exec, -1")
stamp(5)
A(f"  v_lshlrev_b32 v{vTMP+8}, 3, v{vLANE}\n  v_add_u32 v{vTMP+8}, s{sT1}, v{vTMP+8}")
A(f"  v_and_b32 v{vTMP+9}, 31, v{vLANE}\n  v_lshlrev_b32 v{vTMP+9}, 2, v{vTMP+9}")
A(f"  s_lshl_b32 s{sT1}, s{sB}, 17\n  s_lshl_b32 s{sT2}, s{sT0}, 5\n  s_add_u32 s{sT1}, s{sT1}, s{sT2}")
A(f"  v_lshlrev_b32 v{vT}, 11, v{vLANE}\n  v_add_u32 v{vT}, s{sT1}, v{vT}")
lf = lab("fpoll")
A(f"  s_mov_b32 s{sCNT}, 0")
A(f"{lf}:")
A(f"  global_load_dword v{vTMP+12}, v{vTMP+9}, s[{sDBG}:{sDBG+1}] sc1")
A(f"  global_load_dwordx2 v[{vTMP+14}:{vTMP+15}], v{vTMP+8}, s[{sWS}:{sWS+1}] sc1")
A("  s_waitcnt vmcnt(0)")
A(f"  v_not_b32 v{vTMP+13}, v{vTMP+12}")
A(f"  v_cmp_eq_u64 vcc, v[{vTMP+14}:{vTMP+15}], v[{vTMP+12}:{vTMP+13}]")
A(f"  v_cmp_ne_u32 s[{sEX}:{sEX+1}], 0, v{vTMP+12}")
A(f"  s_and_b64 vcc, vcc, s[{sEX}:{sEX+1}]")
A(f"  s_add_u32 s{sCNT}, s{sCNT}, 1\n  s_cmp_gt_u32 s{sCNT}, 0x200000\n  s_cbranch_scc1 {lf}x")
A(f"  s_cmp_lg_u64 vcc, -1\n  s_cbranch_scc1 {lf}")
A(f"{lf}x:")
A(f"  global_load_dwordx4 {vr(vTMP)}, v{vT}, s[{sWS}:{sWS+1}] sc1")
A(f"  global_load_dwordx4 {vr(vTMP+4)}, v{vT}, s[{sWS}:{sWS+1}] offset:16 sc1")
A("  s_waitcnt vmcnt(0)")
for c in ("row_ror:8", "row_ror:4", "row_ror:2", "row_ror:1"):
    for e in range(8): A(f"  v_add_f32_dpp v{vTMP+e}, v{vTMP+e}, v{vTMP+e} {c} {DPPM}")
for e in range(8): A(f"  v_mov_b32 v{vTMP+8+e}, v{vTMP+e}")
A("  s_nop 1")
for e in range(8): A(f"  v_permlane16_swap_b32 v{vTMP+e}, v{vTMP+8+e}")
A("  s_nop 1")
for e in range(8): A(f"  v_add_f32 v{vTMP+e}, v{vTMP+e}, v{vTMP+8+e}")
round_bf16(range(vTMP, vTMP + 8))
A(f"  s_mov_b32 s{sEX}, 0\n  s_mov_b32 s{sEX+1}, -1")
A(f"  v_cndmask_b32 v{vTMP+16}, v{vGATE}, v{vOMG}, s[{sEX}:{sEX+1}]")
for e in range(8): A(f"  v_mul_f32 v{vTMP+e}, v{vTMP+16}, v{vTMP+e}")
round_bf16(range(vTMP, vTMP + 8))
for e in range(8): A(f"  v_mov_b32 v{vTMP+8+e}, v{vTMP+e}")
A("  s_nop 1")
for e in range(8): A(f"  v_permlane32_swap_b32 v{vTMP+e}, v{vTMP+8+e}")
A("  s_nop 1")
for e in range(8): A(f"  v_add_f32 v{vTMP+e}, v{vTMP+e}, v{vTMP+8+e}")
for e in range(4): A(f"  v_cvt_pk_bf16_f32 v{vTMP+20+e}, v{vTMP+2*e}, v{vTMP+2*e+1}")
A(f"  s_lshl_b32 s{sT1}, s{sB}, 10\n  s_lshl_b32 s{sT0}, s{sT0}, 4\n  s_add_u32 s{sT0}, s{sT0}, s{sT1}")
A(f"  v_mov_b32 v{vT}, s{sT0}")
A("  s_mov_b64 exec, 1")
A(f"  global_store_dwordx4 v{vT}, {vr(vTMP+20)}, s[{sOUT}:{sOUT+1}]")
if STAMP:
    A("  s_mov_b64 exec, -1")
    stamp(6, True)
A("L_end:\n  s_endpgm")

kernels = [(KN, NVGPR, 96)]
if STAMP:
    A(".globl agg_kernel\n.p2align 8\n.type agg_kernel,@function\nagg_kernel:")
    A("  s_cmp_lg_u32 s2, 0\n  s_cbranch_scc1 L_end2")
    A("  s_load_dwordx4 s[20:23], s[0:1], 96")
    if "xcd" in opts:
        A(f"  v_lshlrev_b32 v1, 5, v0\n  v_add_u32 v1, {WST}, v1")
        A("  s_waitcnt lgkmcnt(0)")
        for k in range(4):
            A(f"  global_load_dword v{8+k}, v1, s[22:23] offset:{20 + 2048*(k&1)}")
            A(f"  global_load_dword v{12+k}, v1, s[22:23] offset:{2048*(k&1)}")
            if k == 1: A("  v_add_u32 v1, 0x1000, v1")
        A("  s_waitcnt vmcnt(0)")
        A("  v_min_u32 v40, v12, v13\n  v_min3_u32 v40, v40, v14, v15")
        wave_reduce("v_min_u32", 40, 24)
        A("  v_max_u32 v8, v8, v9\n  v_max_u32 v10, v10, v11")
        for r in (8, 10):
            A(f"  s_nop 1\n  v_max_u32_dpp v{r}, v{r}, v{r} row_ror:8 {DPPM}")
            for sw in ("v_permlane16_swap_b32", "v_permlane32_swap_b32"):
                A(f"  v_mov_b32 v20, v{r}\n  s_nop 1\n  {sw} v{r}, v20\n  s_nop 1\n  v_max_u32 v{r}, v{r}, v20")
            A(f"  v_subrev_u32 v{r}, s24, v{r}")
        A("  v_lshlrev_b32 v1, 2, v0\n  s_mov_b64 exec, 0xff")
        A("  global_store_dword v1, v8, s[20:21]\n  global_store_dword v1, v10, s[20:21] offset:32")
    else:
        A(f"  v_lshlrev_b32 v1, 7, v0\n  v_add_u32 v1, {WST}, v1")
        A("  s_waitcnt lgkmcnt(0)")
        for k in range(8):
            A(f"  global_load_dwordx4 v[{8+4*k}:{11+4*k}], v1, s[22:23] offset:{16*k}")
        A("  s_waitcnt vmcnt(0)")
        for k in range(8):
            A(f"  v_min_u32 v40, v{8+k}, v{16+k}\n  v_min3_u32 v40, v40, v{24+k}, v{32+k}")
            A(f"  v_max_u32 v41, v{8+k}, v{16+k}\n  v_max3_u32 v41, v41, v{24+k}, v{32+k}")
            wave_reduce("v_min_u32", 40, 24)
            wave_reduce("v_max_u32", 41, 25)
            A(f"  v_mov_b32 v42, s24\n  v_mov_b32 v43, s25\n  v_mov_b32 v44, {8*k}")
            A("  s_mov_b64 exec, 1\n  global_store_dwordx2 v44, v[42:43], s[20:21]\n  s_mov_b64 exec, -1")
    A("L_end2:\n  s_endpgm")
    kernels.append(("agg_kernel", 48, 32))
A('.section .rodata,"a"')
for name, nv, ns in kernels:
    A(f""".p2align 6
.amdhsa_kernel {name}
  .amdhsa_next_free_vgpr {nv}
  .amdhsa_next_free_sgpr {ns}
  .amdhsa_accum_offset {(nv+3)//4*4}
  .amdhsa_group_segment_fixed_size 0
  .amdhsa_kernarg_size 112
  .amdhsa_user_sgpr_count 2
  .amdhsa_user_sgpr_kernarg_segment_ptr 1
  .amdhsa_system_sgpr_workgroup_id_x 1
.end_amdhsa_kernel""")
open(out, "w").write("\n".join(L) + "\n")
```

```python
import sys
out = sys.argv[1]
opts = sys.argv[2:]
STAMP = "stamp" in opts or "qstamp" in opts
QST = "qstamp" in opts
NH = 1
WIN = 4
for o in opts:
    if o.startswith("win"): WIN = int(o[3:])
PRE = 2
for o in opts:
    if o.startswith("pre"): PRE = int(o[3:])
KPOL = "nt"
L = []
def A(s): L.append(s)
KN = "gated_mix__mha_block_cached__sliding_block_cached__decode_kernel"

for line in open("gated_mix__mha_block_cached__sliding_block_cached__decode.s.ref").read().split("\n"):
    if line.startswith(";") and "@launch" not in line:
        A(line)
LWO = 0
LQP = 131072
LQ = LQP + 16384
LO1 = LQ + 512
LML1 = LO1 + 9 * 512
LO2 = LML1 + 128
LML2 = LO2 + 9 * 512
LFLAG = LML2 + 128
LDS_BYTES = LFLAG + 64
assert LDS_BYTES <= 163840
if STAMP:
    A(f"; @launch kernel={KN} grid=(256,1,1) block=(512,1,1) lds={LDS_BYTES}")
    A("; @launch kernel=agg_kernel grid=(1,1,1) block=(64,1,1) lds=0")
else:
    A(f"; @launch grid=(256,1,1) block=(512,1,1) lds={LDS_BYTES}")
A('.amdgcn_target "amdgcn-amd-amdhsa--gfx950"\n.text')

LOG2E = 0x3fb8aa3b
SCALE = 0x3db504f3
WY, WQP, WPX, WST = 0, 0x80000, 0x100000, 0x200000
WFQ, WFP, WFF = 0x140000, 0x150000, 0x160000

class Fifo:
    def __init__(self): self.q = []
    def issue(self, tag): self.q.append(tag)
    def wait(self, tag):
        if tag not in self.q: return
        idx = self.q.index(tag)
        n = len(self.q) - 1 - idx
        assert n <= 63
        A(f"  s_waitcnt vmcnt({n})")
        self.q = self.q[idx + 1:]
    def copy(self):
        f = Fifo(); f.q = list(self.q); return f
F = Fifo()

vLANE, vKOFF, vLOFF, vWQOFF, vWOOFF = 1, 2, 3, 4, 5
vMASK = 6
vN, vG = 10, 11
vLOG2E, vSCALE = 12, 13
vT = 14
vGATE, vOMG = 15, 0
vQA, vQB = 16, 32
vD = 48
vS = 64
vP = 69
vAOP = 76
vACC = 84
vACC2 = 88
vTMP = 92
RING = 140
NSLOT = 16 * NH
NVGPR = RING + 4 * NSLOT
def slot(i): return f"v[{RING+4*i}:{RING+4*i+3}]"
def vr(b, n=4): return f"v[{b}:{b+n-1}]"

sW = 3
sX, sAK, sAV, sAWQ, sAWO = 8, 10, 12, 14, 16
sGW, sOUT = 4, 6
sBK, sBV, sBWQ, sBWO = 20, 22, 24, 26
sDBG, sWS = 28, 30
sKA, sVA, sKB, sVB, sWQ, sWO = 32, 34, 36, 38, 40, 42
sM1, sM2, sM3 = 44, 46, 48
sC0 = 50
sU = 58
sH, sB, sHALF, sBH = 60, 61, 62, 63
sT0, sT1, sT2, sT3 = 64, 65, 66, 67
sMX, sL = 68, 69
sEX = 70
sST = 72
sCNT = 78
sTAG = 79

DPPM = "row_mask:0xf bank_mask:0xf"
uid = [0]
def lab(p):
    uid[0] += 1
    return f"L_{p}{uid[0]}"

def qs(k):
    if QST: A(f"  s_memrealtime s[{80+2*k}:{81+2*k}]")
def qs_flush(n):
    if not QST: return
    A("  s_waitcnt lgkmcnt(0)")
    A(f"  s_mov_b64 exec, 1")
    A(f"  s_lshl_b32 s{sST+1}, s2, 5\n  s_add_u32 s{sST+1}, s{sST+1}, {WST}")
    A(f"  v_mov_b32 v{vTMP+47}, s{sST+1}")
    A(f"  v_mov_b32 v{vTMP+46}, s{sST+4}\n  global_store_dword v{vTMP+47}, v{vTMP+46}, s[{sWS}:{sWS+1}]")
    for k in range(n):
        A(f"  v_mov_b32 v{vTMP+46}, s{80+2*k}\n  global_store_dword v{vTMP+47}, v{vTMP+46}, s[{sWS}:{sWS+1}] offset:{4*(k+1)}")
    A(f"  s_mov_b64 exec, -1")
def stamp(k, drain=False):
    if not STAMP or QST: return
    l = lab("st")
    A(f"  s_cmp_lg_u32 s{sW}, 0\n  s_cbranch_scc1 {l}")
    if drain: A("  s_waitcnt vmcnt(0)")
    A(f"  s_memrealtime s[{sST}:{sST+1}]\n  s_waitcnt lgkmcnt(0)")
    if k == 0: A(f"  s_mov_b32 s{sST}, s{sST+4}")
    A(f"  s_mov_b64 s[{sST+2}:{sST+3}], exec\n  s_mov_b64 exec, 1")
    A(f"  s_lshl_b32 s{sST+1}, s2, 5\n  s_add_u32 s{sST+1}, s{sST+1}, {WST + 4*k}")
    A(f"  v_mov_b32 v{vTMP+46}, s{sST}\n  v_mov_b32 v{vTMP+47}, s{sST+1}")
    A(f"  global_store_dword v{vTMP+47}, v{vTMP+46}, s[{sWS}:{sWS+1}]")
    if k == 0:
        for kk in range(1, 8):
            A(f"  global_store_dword v{vTMP+47}, v{vTMP+46}, s[{sWS}:{sWS+1}] offset:{4*kk}")
    A(f"  s_mov_b64 exec, s[{sST+2}:{sST+3}]")
    A(f"{l}:")

A(f".globl {KN}\n.p2align 8\n.type {KN},@function\n{KN}:")
A("  s_cmp_ge_u32 s2, 256\n  s_cbranch_scc1 L_end")
if STAMP: A(f"  s_memrealtime s[{sST+4}:{sST+5}]")
A("  s_load_dwordx8 s[8:15], s[0:1], 0")
A("  s_load_dwordx2 s[16:17], s[0:1], 32")
A("  s_load_dwordx8 s[20:27], s[0:1], 48")
A("  s_load_dwordx4 s[4:7], s[0:1], 80")
A("  s_load_dwordx4 s[28:31], s[0:1], 96")
A(f"  v_lshrrev_b32 v{vT}, 6, v0")
A(f"  v_and_b32 v{vLANE}, 63, v0")
A(f"  v_readfirstlane_b32 s{sW}, v{vT}")
A(f"  v_and_b32 v{vN}, 15, v{vLANE}")
A(f"  v_lshrrev_b32 v{vG}, 4, v{vLANE}")
A(f"  v_bfe_u32 v{vT}, v{vLANE}, 2, 2")
A(f"  v_lshlrev_b32 v{vKOFF}, 8, v{vT}")
A(f"  v_lshl_add_u32 v{vKOFF}, v{vG}, 6, v{vKOFF}")
A(f"  v_and_b32 v{vT}, 3, v{vLANE}")
A(f"  v_lshl_add_u32 v{vKOFF}, v{vT}, 4, v{vKOFF}")
A(f"  v_lshlrev_b32 v{vLOFF}, 4, v{vLANE}")
A(f"  v_lshlrev_b32 v{vWQOFF}, 13, v{vG}")
A(f"  v_lshl_add_u32 v{vWQOFF}, v{vN}, 4, v{vWQOFF}")
A(f"  v_lshrrev_b32 v{vT}, 3, v{vN}")
A(f"  v_lshl_add_u32 v{vT}, v{vT}, 2, v{vG}")
A(f"  v_lshlrev_b32 v{vWOOFF}, 10, v{vT}")
A(f"  v_and_b32 v{vT}, 7, v{vN}")
A(f"  v_lshl_add_u32 v{vWOOFF}, v{vT}, 4, v{vWOOFF}")
A(f"  s_and_b32 s{sH}, s2, 7\n  s_lshl_b32 s{sH}, s{sH}, 2\n  s_bfe_u32 s{sT0}, s2, 0x20003\n  s_add_u32 s{sH}, s{sH}, s{sT0}")
A(f"  s_bfe_u32 s{sB}, s2, 0x20005")
A(f"  s_lshr_b32 s{sHALF}, s2, 7")
A(f"  s_lshl_b32 s{sBH}, s{sB}, 5\n  s_add_u32 s{sBH}, s{sBH}, s{sH}")
A(f"  s_lshl_b32 s{sT0}, s{sBH}, 20\n  s_lshl_b32 s{sT1}, s{sW}, 13\n  s_add_u32 s{sT0}, s{sT0}, s{sT1}\n  s_add_u32 s{sT0}, s{sT0}, 4096")
A(f"  s_mul_i32 s{sT1}, s{sHALF}, {2560*256}\n  s_add_u32 s{sT1}, s{sT1}, s{sT0}      ; A off")
A(f"  s_add_u32 s{sT2}, s{sT0}, {3072*256}    ; B off")
A(f"  s_lshl_b32 s{sT3}, s{sB}, 8\n  s_lshl_b32 s{sT0}, s{sW}, 5\n  s_add_u32 s{sT3}, s{sT3}, s{sT0}")
A(f"  v_lshrrev_b32 v{vT}, 3, v{vN}\n  v_lshlrev_b32 v{vT}, 10, v{vT}\n  v_lshl_add_u32 v{vT}, v{vG}, 1, v{vT}\n  v_add_u32 v{vT}, s{sT3}, v{vT}")
A("  s_waitcnt lgkmcnt(0)")
ltag = lab("tag")
A(f"  s_or_b32 s92, s{sB}, s{sHALF}\n  s_or_b32 s92, s92, s{sW}\n  s_cmp_lg_u32 s92, 0\n  s_cbranch_scc1 {ltag}")
A(f"  s_memrealtime s[92:93]\n  s_waitcnt lgkmcnt(0)\n  s_or_b32 s92, s92, 1")
A(f"  s_lshl_b32 s93, s{sH}, 2\n  v_mov_b32 v{vD}, s93\n  v_mov_b32 v{vD+1}, s92")
A(f"  s_mov_b64 exec, 1\n  global_store_dword v{vD}, v{vD+1}, s[{sDBG}:{sDBG+1}] sc1\n  s_mov_b64 exec, -1")
A(f"{ltag}:")
vXW = vTMP + 32
for p in range(2):
    for i in range(4):
        A(f"  global_load_ushort v{vXW+4*p+i}, v{vT}, s[{sX}:{sX+1}] offset:{2048*p + 8*i}")
        F.issue(("xw", p, i))
def add64(d, base, off):
    A(f"  s_add_u32 s{d}, s{base}, s{off}\n  s_addc_u32 s{d+1}, s{base+1}, 0")
A(f"  s_cmp_eq_u32 s{sHALF}, 0")
A(f"  s_cselect_b32 s{sWQ}, s{sAWQ}, s{sBWQ}\n  s_cselect_b32 s{sWQ+1}, s{sAWQ+1}, s{sBWQ+1}")
A(f"  s_cselect_b32 s{sWO}, s{sAWO}, s{sBWO}\n  s_cselect_b32 s{sWO+1}, s{sAWO+1}, s{sBWO+1}")
A(f"  s_lshl_b32 s{sT0}, s{sT3}, 12\n  s_lshl_b32 s{sT3}, s{sH}, 8\n  s_add_u32 s{sT0}, s{sT0}, s{sT3}")
add64(sWQ, sWQ, sT0)
vWQ = vTMP
for i in range(4):
    A(f"  global_load_dwordx4 {vr(vWQ+4*i)}, v{vWQOFF}, s[{sWQ}:{sWQ+1}] nt")
    F.issue(("wq", i))
    if i < 3: A(f"  s_add_u32 s{sWQ}, s{sWQ}, 0x8000\n  s_addc_u32 s{sWQ+1}, s{sWQ+1}, 0")
add64(sKA, sAK, sT1); add64(sVA, sAV, sT1); add64(sKB, sBK, sT2); add64(sVB, sBV, sT2)
A(f"  s_lshl_b32 s{sT0}, s{sH}, 17\n  s_lshl_b32 s{sT1}, s{sW}, 7\n  s_add_u32 s{sT0}, s{sT0}, s{sT1}")
add64(sWO, sWO, sT0)

class Seg:
    def __init__(self, name, sbase, kind):
        self.name, self.sbase, self.kind, self.n = name, sbase, kind, 0
    def load(self, sl):
        j = self.n; self.n += 1
        tag = (self.name, j)
        voff = vKOFF if self.kind == "k" else vLOFF
        i = j % 8
        A(f"  global_load_dwordx4 {slot(sl)}, v{voff}, s[{self.sbase}:{self.sbase+1}] offset:{-4096+1024*i} {KPOL}")
        if i == 7:
            A(f"  s_add_u32 s{self.sbase}, s{self.sbase}, 0x10000\n  s_addc_u32 s{self.sbase+1}, s{self.sbase+1}, 0")
        F.issue(tag)
        return tag

NODMA = "nodma" in opts
DMAPOL = "nt"
for o in opts:
    if o.startswith("dmapol="): DMAPOL = o[7:].replace("none", "").replace("+", " ")
DMAFIRST = "dmafirst" in opts
DMALATE = "dmaearly" not in opts
DWIN = WIN
for o in opts:
    if o.startswith("dwin"): DWIN = int(o[4:])
def prefetch_rest():
    A(f"  s_lshl_b32 s{sT0}, s{sW}, 14")
    def ring():
        for t in range(PRE, NSLOT):
            if WIN < 32: A(f"  s_waitcnt vmcnt({WIN-1})")
            tags[t] = KA.load(t)
    def dma():
        if NODMA: return
        for i in range(16):
            A(f"  s_add_u32 m0, s{sT0}, {LWO + 1024*i}")
            if DWIN < 32: A(f"  s_waitcnt vmcnt({DWIN-1})")
            else: A("  s_nop 0")
            A(f"  global_load_lds_dwordx4 v{vWOOFF}, s[{sWO}:{sWO+1}] {DMAPOL}")
            F.issue(("dma", i))
            if i < 15: A(f"  s_add_u32 s{sWO}, s{sWO}, 0x2000\n  s_addc_u32 s{sWO+1}, s{sWO+1}, 0")
    if DMALATE: ring()
    elif DMAFIRST: dma(); ring()
    else: ring(); dma()
def dma_one(i):
    A(f"  s_lshl_b32 s{sT0}, s{sW}, 14\n  s_add_u32 m0, s{sT0}, {LWO + 1024*i}")
    A("  s_nop 0")
    A(f"  global_load_lds_dwordx4 v{vWOOFF}, s[{sWO}:{sWO+1}] {DMAPOL}")
    F.issue(("dma", i))
    if i < 15: A(f"  s_add_u32 s{sWO}, s{sWO}, 0x2000\n  s_addc_u32 s{sWO+1}, s{sWO+1}, 0")

KA, VA, KB, VB = Seg("KA", sKA, "k"), Seg("VA", sVA, "v"), Seg("KB", sKB, "k"), Seg("VB", sVB, "v")
tags = {}
for t in range(PRE):
    tags[t] = KA.load(t)
A(f"  v_mov_b32 v{vLOG2E}, {LOG2E:#x}\n  v_mov_b32 v{vSCALE}, {SCALE:#x}")
A(f"  v_and_b32 v{vT}, 1, v{vN}\n  v_lshlrev_b32 v{vT}, 4, v{vT}")
A(f"  v_mov_b32 v{vD}, 0xffff\n  v_lshlrev_b32 v{vD}, v{vT}, v{vD}")
A(f"  v_bfe_u32 v{vT}, v{vN}, 1, 2")
for w in range(4):
    A(f"  v_cmp_eq_u32 vcc, {w}, v{vT}\n  s_nop 1\n  v_cndmask_b32 v{vMASK+w}, 0, v{vD}, vcc")
for t, s in ((1, sM1), (2, sM2), (3, sM3)):
    m = 0x11111111 << t
    A(f"  s_mov_b32 s{s}, {m:#x}\n  s_mov_b32 s{s+1}, {m:#x}")
for i in range(4):
    m = 0x000f000f << (4 * i)
    A(f"  s_mov_b32 s{sC0+2*i}, {m:#x}\n  s_mov_b32 s{sC0+2*i+1}, {m:#x}")
A(f"  s_mov_b32 s{sU}, 0xff00ff00\n  s_mov_b32 s{sU+1}, 0xff00ff00")
F.wait(("wq", 3))
qs(0)
for k in range(8):
    A(f"  v_lshl_or_b32 v{vXW+k}, v{vXW+k}, 16, v{vXW+k}")
for p in range(2):
    acc = vACC if p == 0 else vACC2
    for i in range(4):
        ao = vAOP + 4 * (i & 1)
        for w in range(4):
            A(f"  v_and_b32 v{ao+w}, v{vXW+4*p+i}, v{vMASK+w}")
        A("  s_nop 1")
        c = "0" if i == 0 else vr(acc)
        A(f"  v_mfma_f32_16x16x32_bf16 {vr(acc)}, {vr(ao)}, {vr(vWQ+4*i)}, {c}")
A(f"  v_lshrrev_b32 v{vT}, 1, v{vG}\n  v_lshlrev_b32 v{vT}, 9, v{vT}\n  v_lshl_add_u32 v{vT}, v{vN}, 5, v{vT}")
A(f"  v_and_b32 v{vD}, 1, v{vG}\n  v_lshl_add_u32 v{vT}, v{vD}, 4, v{vT}")
A(f"  s_lshl_b32 s{sT0}, s{sW}, 11\n  s_add_u32 s{sT0}, s{sT0}, {LQP}\n  v_add_u32 v{vT}, s{sT0}, v{vT}")
A("  s_nop 4")
A(f"  ds_write_b128 v{vT}, {vr(vACC)}\n  ds_write_b128 v{vT}, {vr(vACC2)} offset:1024")
A("  s_waitcnt lgkmcnt(0)\n  s_barrier")
lq = lab("qdone")
lpf = lab("pf")
A(f"  s_cmp_lg_u32 s{sW}, 0\n  s_cbranch_scc1 {lpf}")
qs(1)
A(f"  v_add_u32 v{vT}, {LQP}, v{vLOFF}")
for hh in range(2):
    for w in range(8):
        A(f"  ds_read_b128 {vr(vTMP+4*w)}, v{vT} offset:{w*2048 + hh*1024}")
    A("  s_waitcnt lgkmcnt(0)")
    d = vACC if hh == 0 else vACC2
    for e in range(4):
        A(f"  v_add_f32 v{d+e}, v{vTMP+e}, v{vTMP+4+e}")
        for w in range(2, 8):
            A(f"  v_add_f32 v{d+e}, v{d+e}, v{vTMP+4*w+e}")
A(f"  s_lshl_b32 s{sT0}, s{sB}, 1\n  s_add_u32 s{sT0}, s{sT0}, s{sHALF}\n  s_lshl_b32 s{sT0}, s{sT0}, 5\n  s_add_u32 s{sT0}, s{sT0}, s{sH}\n  s_lshl_b32 s{sT0}, s{sT0}, 11")
A(f"  v_add_u32 v{vT}, s{sT0}, v{vLOFF}")
for e in range(4): A(f"  v_mov_b32 v{vD+8+e}, -1")
A(f"  global_store_dwordx4 v{vT}, {vr(vD+8)}, s[{sWS}:{sWS+1}] sc1")
A(f"  global_store_dwordx4 v{vT}, {vr(vD+8)}, s[{sWS}:{sWS+1}] offset:1024 sc1")
A(f"  s_lshl_b32 s{sT0}, s{sH}, 1\n  s_add_u32 s{sT0}, s{sT0}, s{sHALF}\n  s_lshl_b32 s{sT0}, s{sT0}, 2\n  s_add_u32 s{sT0}, s{sT0}, s{sB}\n  s_lshl_b32 s{sT0}, s{sT0}, 11\n  s_add_u32 s{sT0}, s{sT0}, {WQP}")
A(f"  v_add_u32 v{vT}, s{sT0}, v{vLOFF}")
A(f"  global_store_dwordx4 v{vT}, {vr(vACC)}, s[{sWS}:{sWS+1}] sc1")
A(f"  global_store_dwordx4 v{vT}, {vr(vACC2)}, s[{sWS}:{sWS+1}] offset:1024 sc1")
A(f"  s_lshl_b32 s{sT1}, s{sH}, 2\n  v_mov_b32 v{vD}, s{sT1}")
lt = lab("tpoll")
A(f"  s_mov_b32 s{sCNT}, 0")
A(f"{lt}:")
A(f"  s_mov_b64 exec, 1\n  global_load_dword v{vD+1}, v{vD}, s[{sDBG}:{sDBG+1}] sc1\n  s_mov_b64 exec, -1")
A("  s_waitcnt vmcnt(0)")
A(f"  v_readfirstlane_b32 s{sTAG}, v{vD+1}")
A(f"  s_add_u32 s{sCNT}, s{sCNT}, 1\n  s_cmp_gt_u32 s{sCNT}, 0x200000\n  s_cbranch_scc1 {lt}x")
A(f"  s_cmp_eq_u32 s{sTAG}, 0\n  s_cbranch_scc1 {lt}")
A(f"{lt}x:")
qs(2)
A(f"  s_lshl_b32 s{sT0}, s{sHALF}, 2\n  s_add_u32 s{sT0}, s{sT0}, s{sB}\n  s_lshl_b32 s{sT0}, s{sT0}, 3\n  s_lshl_b32 s{sT1}, s{sH}, 8\n  s_add_u32 s{sT1}, s{sT1}, {WFQ}\n  s_add_u32 s{sT0}, s{sT0}, s{sT1}")
A(f"  v_mov_b32 v{vD+4}, s{sTAG}\n  v_not_b32 v{vD+5}, v{vD+4}\n  v_mov_b32 v{vD}, s{sT0}")
A(f"  s_mov_b64 exec, 1\n  global_store_dwordx2 v{vD}, v[{vD+4}:{vD+5}], s[{sWS}:{sWS+1}] sc1\n  s_mov_b64 exec, -1")
A(f"  v_lshlrev_b32 v{vD}, 3, v{vLANE}\n  v_add_u32 v{vD}, s{sT1}, v{vD}")
A(f"  v_lshrrev_b32 v{vT}, 5, v{vLANE}\n  v_lshlrev_b32 v{vT}, 13, v{vT}\n  v_and_b32 v{vD+2}, 31, v{vLANE}\n  v_lshl_add_u32 v{vT}, v{vD+2}, 4, v{vT}")
A(f"  s_lshl_b32 s{sT0}, s{sH}, 14\n  s_lshl_b32 s{sT2}, s{sB}, 9\n  s_add_u32 s{sT0}, s{sT0}, s{sT2}\n  s_add_u32 s{sT0}, s{sT0}, {WQP}")
A(f"  v_add_u32 v{vT}, s{sT0}, v{vT}")
A(f"  v_add_u32 v{vD+3}, 0x1000, v{vT}")
lp = lab("qpoll")
A(f"  s_mov_b32 s{sCNT}, 0")
A(f"  s_cmp_eq_u32 s{sHALF}, 0\n  s_cselect_b32 s{sT2}, 0xf, 0xff")
A(f"{lp}:")
A(f"  s_mov_b64 exec, 0xff\n  global_load_dwordx2 v[{vD+6}:{vD+7}], v{vD}, s[{sWS}:{sWS+1}] sc1")
A("  s_waitcnt vmcnt(0)")
A(f"  v_cmp_eq_u64 vcc, v[{vD+6}:{vD+7}], v[{vD+4}:{vD+5}]\n  s_mov_b64 exec, -1")
A(f"  s_and_b32 s{sT0}, vcc_lo, s{sT2}")
A(f"  s_add_u32 s{sCNT}, s{sCNT}, 1\n  s_cmp_gt_u32 s{sCNT}, 0x200000\n  s_cbranch_scc1 {lp}x")
if "noqwait" not in opts: A(f"  s_cmp_lg_u32 s{sT0}, s{sT2}\n  s_cbranch_scc1 {lp}")
A(f"{lp}x:")
qs(3)
for rq in range(4):
    if rq < 2: A(f"  global_load_dwordx4 {vr(vTMP+4*rq)}, v{vT}, s[{sWS}:{sWS+1}] offset:{2048*rq} sc1")
    else: A(f"  global_load_dwordx4 {vr(vTMP+4*rq)}, v{vD+3}, s[{sWS}:{sWS+1}] offset:{2048*(rq-2)} sc1")
A("  s_waitcnt vmcnt(0)")
qs(4)
for e in range(4):
    A(f"  v_add_f32 v{vTMP+e}, v{vTMP+e}, v{vTMP+4+e}\n  v_add_f32 v{vTMP+8+e}, v{vTMP+8+e}, v{vTMP+12+e}\n  v_add_f32 v{vTMP+e}, v{vTMP+e}, v{vTMP+8+e}")
A(f"  v_cvt_pk_bf16_f32 v{vTMP+4}, v{vTMP}, v{vTMP+1}\n  v_cvt_pk_bf16_f32 v{vTMP+5}, v{vTMP+2}, v{vTMP+3}")
A(f"  v_lshlrev_b32 v{vT}, 3, v{vLANE}")
A(f"  ds_write_b64 v{vT}, v[{vTMP+4}:{vTMP+5}] offset:{LQ}" if LQ < 65536 else
  f"  v_add_u32 v{vT}, {LQ}, v{vT}\n  ds_write_b64 v{vT}, v[{vTMP+4}:{vTMP+5}]")
A("  s_waitcnt lgkmcnt(0)")
stamp(0)
stamp(1)
A("  s_barrier")
stamp(7)
qs(5)
qs_flush(6)
A(f"{lpf}:")
prefetch_rest()
A(f"  s_cmp_eq_u32 s{sW}, 0\n  s_cbranch_scc1 {lq}")
A("  s_barrier")
A(f"{lq}:")

def wave_reduce(op, v, sdst):
    for c in ("row_ror:8", "row_ror:4", "row_ror:2", "row_ror:1"):
        A(f"  s_nop 1\n  {op}_dpp v{v}, v{v}, v{v} {c} {DPPM}")
    A(f"  s_nop 1\n  {op}_dpp v{v}, v{v}, v{v} row_bcast:15 row_mask:0xa bank_mask:0xf")
    A(f"  s_nop 1\n  {op}_dpp v{v}, v{v}, v{v} row_bcast:31 row_mask:0xc bank_mask:0xf")
    A(f"  s_nop 0\n  v_readlane_b32 s{sdst}, v{v}, 63\n  s_nop 1")
def round_bf16(regs):
    for r in regs:
        A(f"  v_cvt_pk_bf16_f32 v{r}, v{r}, v{r}\n  v_and_b32 v{r}, 0xffff0000, v{r}")

A(f"  v_and_b32 v{vT}, 3, v{vN}\n  v_lshl_add_u32 v{vT}, v{vG}, 2, v{vT}\n  v_lshlrev_b32 v{vT}, 4, v{vT}\n  v_add_u32 v{vT}, {LQ}, v{vT}")
A(f"  ds_read_b128 {vr(vTMP)}, v{vT}\n  ds_read_b128 {vr(vTMP+4)}, v{vT} offset:256")
A("  s_waitcnt lgkmcnt(0)")
for br, q in ((0, vQA), (1, vQB)):
    for i in range(4):
        for e in range(4):
            A(f"  v_cndmask_b32 v{q+4*i+e}, 0, v{vTMP+4*br+e}, s[{sC0+2*i}:{sC0+2*i+1}]")

def build_aop(dst, wreg, bc, two=None):
    if two is None:
        for w in range(4):
            A(f"  v_and_b32_dpp v{dst+w}, v{wreg}, v{vMASK+w} row_newbcast:{bc} {DPPM}")
    else:
        A(f"  v_mov_b32_dpp v{vTMP+44}, v{wreg} row_newbcast:{bc} {DPPM}")
        A(f"  v_mov_b32_dpp v{vTMP+45}, v{two} row_newbcast:{bc} {DPPM}")
        A(f"  v_cndmask_b32 v{vTMP+44}, v{vTMP+44}, v{vTMP+45}, s[{sU}:{sU+1}]")
        for w in range(4):
            A(f"  v_and_b32 v{dst+w}, v{vTMP+44}, v{vMASK+w}")

class Stream:
    def __init__(self, seq):
        self.seq = seq; self.k = 0
    def next(self):
        k = self.k; self.k += 1
        half = k % NH
        refill = self.seq[k + NH] if k + NH < len(self.seq) else None
        return half, refill

def consume_pv(st, preg, first_zero, hook=None):
    half, refill = st.next()
    bc = lambda j: (j & 3) * 4 + (j >> 2)
    A("  s_nop 1")
    build_aop(vAOP, preg, bc(0))
    for i in range(16):
        sl = half * 16 + i
        if i < 15: build_aop(vAOP + 4 * ((i + 1) & 1), preg, bc(i + 1))
        else: A("  s_nop 0")
        F.wait(tags[sl])
        c = "0" if (first_zero and i == 0) else vr(vACC)
        A(f"  v_mfma_f32_16x16x32_bf16 {vr(vACC)}, {vr(vAOP + 4 * (i & 1))}, {slot(sl)}, {c}")
        if refill is not None: tags[sl] = refill.load(sl)
        elif i > 0:
            if i == 1: A(f"  s_lshl_b32 s{sT0}, s{sW}, 14\n  v_add_u32 v{vT}, s{sT0}, v{vLOFF}")
            A(f"  ds_read_b128 {slot(sl-1)}, v{vT} offset:{LWO + 1024*(i-1)}")
        if hook and i == 0: hook()

def consume_qk(st, q, sdst, hook=None):
    first = st.k == 0
    half, refill = st.next()
    for j in range(16):
        sl = half * 16 + j
        t, i = j >> 2, j & 3
        F.wait(tags[sl])
        c = "0" if i == 0 else vr(vD + 4 * t)
        A(f"  v_mfma_f32_16x16x32_bf16 {vr(vD+4*t)}, {slot(sl)}, {vr(q+4*i)}, {c}")
        if refill is not None: tags[sl] = refill.load(sl)
        if hook and j == 0: hook()
        if first and DMALATE: dma_one(j)
    A("  s_nop 7")
    for t in range(4):
        d = vTMP + t
        A(f"  v_mov_b32_dpp v{d}, v{vD+4*t} quad_perm:[0,0,0,0] {DPPM}")
        for s in range(1, 4):
            A(f"  v_add_f32_dpp v{d}, v{vD+4*t+s}, v{d} quad_perm:[{s},{s},{s},{s}] {DPPM}")
    A(f"  v_cndmask_b32 v{sdst}, v{vTMP}, v{vTMP+1}, s[{sM1}:{sM1+1}]")
    A(f"  v_cndmask_b32 v{sdst}, v{sdst}, v{vTMP+2}, s[{sM2}:{sM2+1}]")
    A(f"  v_cndmask_b32 v{sdst}, v{sdst}, v{vTMP+3}, s[{sM3}:{sM3+1}]")

def softmax(nb):
    S = [vS + k for k in range(nb)]
    round_bf16(S)
    for r in S: A(f"  v_mul_f32 v{r}, v{r}, v{vSCALE}")
    round_bf16(S)
    for r in S: A(f"  v_mul_f32 v{r}, v{r}, v{vLOG2E}")
    t = vTMP
    A(f"  v_mov_b32 v{t}, v{S[0]}")
    for r in S[1:]: A(f"  v_max_f32 v{t}, v{t}, v{r}")
    wave_reduce("v_max_f32", t, sMX)
    for r in S: A(f"  v_subrev_f32 v{r}, s{sMX}, v{r}")
    for r in S: A(f"  v_exp_f32 v{r}, v{r}")
    A("  s_nop 0")
    for k, r in enumerate(S): A(f"  v_cvt_pk_bf16_f32 v{vP+k}, v{r}, v{r}")
    A(f"  v_mov_b32 v{t}, v{S[0]}")
    for r in S[1:]: A(f"  v_add_f32 v{t}, v{t}, v{r}")
    wave_reduce("v_add_f32", t, sL)

def store_partial_lds(base, mlbase):
    A(f"  v_and_b32 v{vTMP}, 1, v{vG}\n  v_lshlrev_b32 v{vTMP}, 4, v{vTMP}\n  v_lshl_add_u32 v{vTMP}, v{vN}, 5, v{vTMP}")
    A(f"  s_lshl_b32 s{sT0}, s{sW}, 9\n  s_add_u32 s{sT0}, s{sT0}, {base}\n  v_add_u32 v{vTMP}, s{sT0}, v{vTMP}")
    A(f"  s_lshl_b32 s{sT0}, s{sW}, 3\n  s_add_u32 s{sT0}, s{sT0}, {mlbase}")
    A(f"  v_mov_b32 v{vTMP+1}, s{sT0}\n  v_mov_b32 v{vTMP+2}, s{sMX}\n  v_mov_b32 v{vTMP+3}, s{sL}")
    A(f"  ds_write_b64 v{vTMP+1}, v[{vTMP+2}:{vTMP+3}]")
    A("  s_nop 3")
    A(f"  ds_write_b128 v{vTMP}, {vr(vACC)}")

def combine(base, mlbase, nsl, normalise):
    ml = vTMP
    ov = vTMP + 20
    a = vTMP + 38
    A(f"  v_mov_b32 v{a}, {mlbase}")
    for k in range((nsl + 1) // 2):
        A(f"  ds_read_b128 {vr(ml+4*k)}, v{a} offset:{16*k}")
    A(f"  v_lshl_add_u32 v{a+1}, v{vN}, 3, v{vG}\n  v_lshlrev_b32 v{a+1}, 2, v{a+1}\n  v_add_u32 v{a+1}, {base}, v{a+1}")
    for w in range(nsl):
        A(f"  ds_read_b32 v{ov+2*w}, v{a+1} offset:{w*512}\n  ds_read_b32 v{ov+2*w+1}, v{a+1} offset:{w*512 + 16}")
    A("  s_waitcnt lgkmcnt(0)")
    M, Lr = vTMP + 41, vTMP + 42
    A(f"  v_max_f32 v{M}, v{ml}, v{ml+2}")
    for w in range(2, nsl): A(f"  v_max_f32 v{M}, v{M}, v{ml+2*w}")
    for w in range(nsl): A(f"  v_sub_f32 v{ml+2*w}, v{ml+2*w}, v{M}")
    for w in range(nsl): A(f"  v_exp_f32 v{ml+2*w}, v{ml+2*w}")
    A("  s_nop 0")
    A(f"  v_mul_f32 v{Lr}, v{ml}, v{ml+1}")
    for w in range(1, nsl): A(f"  v_fmac_f32 v{Lr}, v{ml+2*w}, v{ml+2*w+1}")
    if normalise: A(f"  v_rcp_f32 v{a}, v{Lr}")
    A(f"  v_mul_f32 v{a+1}, v{ml}, v{ov}\n  v_mul_f32 v{a+2}, v{ml}, v{ov+1}")
    for w in range(1, nsl):
        A(f"  v_fmac_f32 v{a+1}, v{ml+2*w}, v{ov+2*w}\n  v_fmac_f32 v{a+2}, v{ml+2*w}, v{ov+2*w+1}")
    if normalise:
        A(f"  v_mul_f32 v{a+1}, v{a+1}, v{a}\n  v_mul_f32 v{a+2}, v{a+2}, v{a}")

def gate():
    A(f"  s_lshl_b32 s{sT0}, s{sB}, 10\n  v_add_u32 v{vT}, s{sT0}, v{vLOFF}")
    A(f"  global_load_dwordx4 {vr(vTMP+8)}, v{vT}, s[{sX}:{sX+1}]")
    F.issue("gx")
    A(f"  global_load_dwordx4 {vr(vTMP+12)}, v{vLOFF}, s[{sGW}:{sGW+1}]")
    F.issue("gw")
def gate2():
    F.wait("gw")
    t = vTMP
    A(f"  v_mov_b32 v{t+5}, 0")
    for e in range(4):
        A(f"  v_lshlrev_b32 v{t}, 16, v{t+8+e}\n  v_lshlrev_b32 v{t+1}, 16, v{t+12+e}\n  v_mul_f32 v{t}, v{t}, v{t+1}")
        A(f"  v_and_b32 v{t+2}, 0xffff0000, v{t+8+e}\n  v_and_b32 v{t+3}, 0xffff0000, v{t+12+e}\n  v_mul_f32 v{t+2}, v{t+2}, v{t+3}")
        A(f"  v_cvt_pk_bf16_f32 v{t}, v{t}, v{t+2}")
        A(f"  v_lshlrev_b32 v{t+1}, 16, v{t}\n  v_and_b32 v{t+2}, 0xffff0000, v{t}")
        A(f"  v_add_f32 v{t+5}, v{t+5}, v{t+1}\n  v_add_f32 v{t+5}, v{t+5}, v{t+2}")
    wave_reduce("v_add_f32", t + 5, sT0)
    A(f"  v_mov_b32 v{vGATE}, s{sT0}")
    round_bf16([vGATE])
    A(f"  v_mul_f32 v{vGATE}, v{vLOG2E}, v{vGATE}\n  v_exp_f32 v{vGATE}, -v{vGATE}\n  s_nop 0")
    A(f"  v_add_f32 v{vGATE}, 1.0, v{vGATE}\n  v_rcp_f32 v{vGATE}, v{vGATE}\n  s_nop 0")
    round_bf16([vGATE])
    A(f"  v_sub_f32 v{vOMG}, 1.0, v{vGATE}")
    round_bf16([vOMG])

VR = vTMP + 32
def v_addr():
    A(f"  v_and_b32 v{VR}, 31, v{vLANE}\n  v_lshlrev_b32 v{VR+1}, 8, v{VR}\n  v_lshlrev_b32 v{VR}, 2, v{VR}")
    A(f"  v_lshrrev_b32 v{VR+2}, 5, v{vLANE}\n  v_lshl_add_u32 v{VR+1}, v{VR+2}, 5, v{VR+1}")
    A(f"  s_lshl_b32 s{sT1}, s{sB}, 3\n  s_add_u32 s{sT1}, s{sT1}, {WFQ}\n  v_add_u32 v{VR+1}, s{sT1}, v{VR+1}")
def v_loads():
    A(f"  global_load_dword v{VR+2}, v{VR}, s[{sDBG}:{sDBG+1}] sc1")
    A(f"  global_load_dwordx2 v[{VR+4}:{VR+5}], v{VR+1}, s[{sWS}:{sWS+1}] sc1")
def v_issue():
    l = lab("vi")
    A(f"  s_cmp_lg_u32 s{sW}, 0\n  s_cbranch_scc1 {l}")
    v_addr(); v_loads()
    A(f"{l}:")
def v_check():
    l = lab("vc")
    A(f"  s_cmp_lg_u32 s{sW}, 0\n  s_cbranch_scc1 {l}")
    A(f"  s_mov_b32 s{sCNT}, 0")
    A(f"{l}a:")
    A(f"  v_not_b32 v{VR+3}, v{VR+2}")
    A(f"  v_cmp_eq_u64 vcc, v[{VR+4}:{VR+5}], v[{VR+2}:{VR+3}]")
    A(f"  v_cmp_ne_u32 s[{sEX}:{sEX+1}], 0, v{VR+2}")
    A(f"  s_and_b64 vcc, vcc, s[{sEX}:{sEX+1}]")
    A(f"  s_cmp_eq_u64 vcc, -1\n  s_cbranch_scc1 {l}")
    A(f"  s_add_u32 s{sCNT}, s{sCNT}, 1\n  s_cmp_gt_u32 s{sCNT}, 0x200000\n  s_cbranch_scc1 {l}")
    v_addr(); v_loads()
    A(f"  s_waitcnt vmcnt(0)\n  s_branch {l}a")
    A(f"{l}:")
A(f"  s_cmp_lg_u32 s{sHALF}, 0\n  s_cbranch_scc1 L_pathS")
F0, tags0 = F.copy(), dict(tags)
segn = (KA.n, VA.n, KB.n, VB.n)

st = Stream([KA] * 5 + [VA] * 5)
for k in range(5):
    if k == 1: gate()
    consume_qk(st, vQA, vS + k, v_issue if k == 2 else (v_check if k == 4 else None))
    if k == 2: gate2()
softmax(5)
stamp(2)
PXR = vTMP + 24
def poll_issue():
    l = lab("pi")
    A(f"  s_cmp_lg_u32 s{sW}, 0\n  s_cbranch_scc1 {l}")
    A(f"  s_lshl_b32 s{sT1}, s{sBH}, 8\n  s_add_u32 s{sT1}, s{sT1}, {WFP}\n  v_mov_b32 v{PXR}, s{sT1}")
    A(f"  global_load_dwordx2 v[{PXR+2}:{PXR+3}], v{PXR}, s[{sWS}:{sWS+1}] sc1")
    A(f"{l}:")
def poll_check():
    l = lab("pc")
    A(f"  s_cmp_lg_u32 s{sW}, 0\n  s_cbranch_scc1 {l}")
    A(f"  s_lshl_b32 s{sT1}, s{sBH}, 8\n  s_add_u32 s{sT1}, s{sT1}, {WFP}\n  v_mov_b32 v{PXR}, s{sT1}")
    A(f"  s_mov_b32 s{sCNT}, 0\n  s_not_b32 s{sT2}, s{sTAG}")
    A(f"{l}a:")
    A(f"  v_readfirstlane_b32 s{sT0}, v{PXR+2}\n  v_readfirstlane_b32 s{sT1}, v{PXR+3}")
    A(f"  s_xor_b32 s{sT0}, s{sT0}, s{sTAG}\n  s_xor_b32 s{sT1}, s{sT1}, s{sT2}\n  s_or_b32 s{sT0}, s{sT0}, s{sT1}\n  s_cbranch_scc0 {l}b")
    A(f"  s_add_u32 s{sCNT}, s{sCNT}, 1\n  s_cmp_gt_u32 s{sCNT}, 0x200000\n  s_cbranch_scc1 {l}b")
    A(f"  global_load_dwordx2 v[{PXR+2}:{PXR+3}], v{PXR}, s[{sWS}:{sWS+1}] sc1\n  s_waitcnt vmcnt(0)\n  s_branch {l}a")
    A(f"{l}b:")
    A(f"  s_lshl_b32 s{sT0}, s{sBH}, 10\n  s_add_u32 s{sT0}, s{sT0}, {WPX}\n  v_add_u32 v{PXR}, s{sT0}, v{vLOFF}")
    A(f"  global_load_dwordx4 {vr(PXR+4)}, v{PXR}, s[{sWS}:{sWS+1}] sc1")
    A(f"{l}:")
for k in range(5):
    hook = None
    if k == 2: hook = poll_issue
    if k == 3 + (NH - 1) - (1 if NH == 2 else 0): hook = poll_check if k > 2 else None
    consume_pv(st, vP + k, k == 0, hook)
if NH == 2:
    pass
store_partial_lds(LO2, LML2)
l = lab("px")
A(f"  s_cmp_lg_u32 s{sW}, 0\n  s_cbranch_scc1 {l}")
A("  s_waitcnt vmcnt(0)")
A(f"  v_add_u32 v{PXR}, {LO2 + 8*512}, v{vLOFF}")
A(f"  s_mov_b32 exec_hi, 0\n  ds_write_b128 v{PXR}, {vr(PXR+4)}")
A(f"  s_mov_b32 exec_lo, 0\n  s_mov_b32 exec_hi, 1\n  v_mov_b32 v{PXR}, {LML2 + 64}\n  ds_write_b64 v{PXR}, v[{PXR+4}:{PXR+5}]")
A("  s_mov_b64 exec, -1")
A(f"{l}:")
stamp(4)
A("  s_waitcnt lgkmcnt(0)\n  s_barrier")
combine(LO2, LML2, 9, True)
A("  s_branch L_tail")

A("L_pathS:")
F = F0; tags = tags0
KA.n, VA.n, KB.n, VB.n = segn
st = Stream([KA] * 3 + [VA] * 3 + [KB] * 2 + [VB] * 2)
for k in range(3):
    if k == 1: gate()
    consume_qk(st, vQA, vS + k)
    if k == 2: gate2()
softmax(3)
stamp(2)
for k in range(3):
    consume_pv(st, vP + k, k == 0, v_issue if k == 0 else (v_check if k == 2 else None))
store_partial_lds(LO1, LML1)
A("  s_waitcnt lgkmcnt(0)\n  s_barrier")
l = lab("pub")
A(f"  s_cmp_lg_u32 s{sW}, 0\n  s_cbranch_scc1 {l}")
combine(LO1, LML1, 8, False)
A(f"  s_lshl_b32 s{sT0}, s{sBH}, 10\n  s_add_u32 s{sT0}, s{sT0}, {WPX}")
A(f"  v_lshl_add_u32 v{vTMP}, v{vN}, 3, v{vG}\n  v_lshlrev_b32 v{vTMP}, 2, v{vTMP}\n  v_add_u32 v{vTMP}, s{sT0}, v{vTMP}")
A(f"  global_store_dword v{vTMP}, v{vTMP+39}, s[{sWS}:{sWS+1}] sc1")
A(f"  global_store_dword v{vTMP}, v{vTMP+40}, s[{sWS}:{sWS+1}] offset:16 sc1")
A(f"  v_mov_b32 v{vTMP+2}, v{vTMP+41}\n  v_mov_b32 v{vTMP+3}, v{vTMP+42}")
A(f"  s_mov_b64 exec, 1\n  global_store_dwordx2 v{vTMP}, v[{vTMP+2}:{vTMP+3}], s[{sWS}:{sWS+1}] offset:512 sc1\n  s_mov_b64 exec, -1")
A(f"{l}:")
stamp(3)
nbefore = len(F.q)
consume_qk(st, vQB, vS + 0)
def signal():
    l = lab("sig")
    A(f"  s_cmp_lg_u32 s{sW}, 0\n  s_cbranch_scc1 {l}")
    A(f"  s_waitcnt vmcnt(16)")
    A(f"  s_lshl_b32 s{sT1}, s{sBH}, 8\n  s_add_u32 s{sT1}, s{sT1}, {WFP}")
    A(f"  v_mov_b32 v{vTMP+8}, s{sT1}\n  v_mov_b32 v{vTMP+10}, s{sTAG}\n  v_not_b32 v{vTMP+11}, v{vTMP+10}")
    A(f"  s_mov_b64 exec, 1\n  global_store_dwordx2 v{vTMP+8}, v[{vTMP+10}:{vTMP+11}], s[{sWS}:{sWS+1}] sc1\n  s_mov_b64 exec, -1")
    A(f"{l}:")
signal()
consume_qk(st, vQB, vS + 1)
softmax(2)
for k in range(2):
    consume_pv(st, vP + k, k == 0)
store_partial_lds(LO2, LML2)
stamp(4)
A("  s_waitcnt lgkmcnt(0)\n  s_barrier")
combine(LO2, LML2, 8, True)

A("L_tail:")
if "notail" in opts: A("  s_branch L_end")
A(f"  v_cvt_pk_bf16_f32 v{vP}, v{vTMP+39}, v{vTMP+39}\n  v_cvt_pk_bf16_f32 v{vP+1}, v{vTMP+40}, v{vTMP+40}")
A(f"  ds_read_b128 {slot(15)}, v{vT} offset:{LWO + 1024*15}")
A("  s_nop 0")
build_aop(vAOP, vP, 0, vP + 1)
for i in range(16):
    if i < 15: build_aop(vAOP + 4 * ((i + 1) & 1), vP, i + 1, vP + 1)
    else: A("  s_waitcnt lgkmcnt(0)")
    c = "0" if i == 0 else vr(vACC)
    A(f"  v_mfma_f32_16x16x32_bf16 {vr(vACC)}, {vr(vAOP + 4 * (i & 1))}, {slot(i)}, {c}")
A(f"  s_lshl_b32 s{sT0}, s{sB}, 1\n  s_add_u32 s{sT0}, s{sT0}, s{sHALF}\n  s_lshl_b32 s{sT0}, s{sT0}, 5\n  s_add_u32 s{sT0}, s{sT0}, s{sH}\n  s_lshl_b32 s{sT0}, s{sT0}, 11")
A(f"  s_lshl_b32 s{sT1}, s{sW}, 8\n  s_add_u32 s{sT0}, s{sT0}, s{sT1}")
A(f"  v_lshlrev_b32 v{vTMP+8}, 5, v{vN}\n  v_lshl_add_u32 v{vTMP+8}, v{vG}, 4, v{vTMP+8}\n  v_add_u32 v{vTMP+8}, s{sT0}, v{vTMP+8}")
for b in range(4): A(f"  v_mov_b32 v{vTMP+b}, 0")
A("  s_nop 1")
for b in range(4): A(f"  v_permlane32_swap_b32 v{vACC+b}, v{vTMP+b}")
A("  s_nop 1")
for b in range(4): A(f"  v_add_f32_dpp v{vTMP+4+b}, v{vTMP+b}, v{vACC+b} row_shl:8 {DPPM}")
A(f"  v_mov_b32 v{vTMP+9}, 0x7fc00000")
for b in range(4):
    A(f"  v_cmp_eq_u32 vcc, -1, v{vTMP+4+b}\n  s_nop 1\n  v_cndmask_b32 v{vTMP+4+b}, v{vTMP+4+b}, v{vTMP+9}, vcc")
A("  s_mov_b32 exec_lo, 0x00ff00ff\n  s_mov_b32 exec_hi, 0")
A(f"  global_store_dwordx4 v{vTMP+8}, {vr(vTMP+4)}, s[{sWS}:{sWS+1}] sc1")
A("  s_mov_b64 exec, -1")
if "nofinal" in opts: A("  s_branch L_end")
A(f"  s_cmp_lg_u32 s{sW}, 0\n  s_cbranch_scc1 L_end")
stamp(5)
A(f"  s_lshl_b32 s{sT0}, s{sHALF}, 5\n  s_add_u32 s{sT0}, s{sT0}, s{sH}")
A(f"  s_lshl_b32 s{sT1}, s{sB}, 17\n  s_lshl_b32 s{sT2}, s{sT0}, 5\n  s_add_u32 s{sT1}, s{sT1}, s{sT2}")
A(f"  v_lshlrev_b32 v{vT}, 11, v{vLANE}\n  v_add_u32 v{vT}, s{sT1}, v{vT}")
lf = lab("fpoll")
A(f"  s_mov_b32 s{sCNT}, 0")
A("  s_nop 1")
A(f"{lf}:")
A(f"  global_load_dwordx4 {vr(vTMP+12)}, v{vT}, s[{sWS}:{sWS+1}] sc1")
A(f"  global_load_dwordx4 {vr(vTMP+16)}, v{vT}, s[{sWS}:{sWS+1}] offset:16 sc1")
A("  s_waitcnt vmcnt(0)")
A(f"  v_max3_u32 v{vTMP+20}, v{vTMP+12}, v{vTMP+13}, v{vTMP+14}\n  v_max3_u32 v{vTMP+20}, v{vTMP+20}, v{vTMP+15}, v{vTMP+16}")
A(f"  v_max3_u32 v{vTMP+20}, v{vTMP+20}, v{vTMP+17}, v{vTMP+18}\n  v_max_u32 v{vTMP+20}, v{vTMP+20}, v{vTMP+19}")
A(f"  v_cmp_eq_u32 vcc, -1, v{vTMP+20}")
A(f"  s_add_u32 s{sCNT}, s{sCNT}, 1\n  s_cmp_gt_u32 s{sCNT}, 0x200000\n  s_cbranch_scc1 {lf}x")
A(f"  s_and_b64 exec, exec, vcc\n  s_cbranch_execnz {lf}")
A(f"{lf}x:")
A("  s_mov_b64 exec, -1")
for e in range(8): A(f"  v_mov_b32 v{vTMP+e}, v{vTMP+12+e}")
A("  s_nop 1")
for c in ("row_ror:8", "row_ror:4", "row_ror:2", "row_ror:1"):
    for e in range(8): A(f"  v_add_f32_dpp v{vTMP+e}, v{vTMP+e}, v{vTMP+e} {c} {DPPM}")
for e in range(8): A(f"  v_mov_b32 v{vTMP+8+e}, v{vTMP+e}")
A("  s_nop 1")
for e in range(8): A(f"  v_permlane16_swap_b32 v{vTMP+e}, v{vTMP+8+e}")
A("  s_nop 1")
for e in range(8): A(f"  v_add_f32 v{vTMP+e}, v{vTMP+e}, v{vTMP+8+e}")
round_bf16(range(vTMP, vTMP + 8))
A(f"  s_mov_b32 s{sEX}, 0\n  s_mov_b32 s{sEX+1}, -1")
A(f"  v_cndmask_b32 v{vTMP+16}, v{vGATE}, v{vOMG}, s[{sEX}:{sEX+1}]")
for e in range(8): A(f"  v_mul_f32 v{vTMP+e}, v{vTMP+16}, v{vTMP+e}")
round_bf16(range(vTMP, vTMP + 8))
for e in range(8): A(f"  v_mov_b32 v{vTMP+8+e}, v{vTMP+e}")
A("  s_nop 1")
for e in range(8): A(f"  v_permlane32_swap_b32 v{vTMP+e}, v{vTMP+8+e}")
A("  s_nop 1")
for e in range(8): A(f"  v_add_f32 v{vTMP+e}, v{vTMP+e}, v{vTMP+8+e}")
for e in range(4): A(f"  v_cvt_pk_bf16_f32 v{vTMP+20+e}, v{vTMP+2*e}, v{vTMP+2*e+1}")
A(f"  s_lshl_b32 s{sT1}, s{sB}, 10\n  s_lshl_b32 s{sT0}, s{sT0}, 4\n  s_add_u32 s{sT0}, s{sT0}, s{sT1}")
A(f"  v_mov_b32 v{vT}, s{sT0}")
A("  s_mov_b64 exec, 1")
A(f"  global_store_dwordx4 v{vT}, {vr(vTMP+20)}, s[{sOUT}:{sOUT+1}]")
if STAMP:
    A("  s_mov_b64 exec, -1")
    stamp(6, True)
A("L_end:\n  s_endpgm")

kernels = [(KN, NVGPR, 96)]
if STAMP:
    A(".globl agg_kernel\n.p2align 8\n.type agg_kernel,@function\nagg_kernel:")
    A("  s_cmp_lg_u32 s2, 0\n  s_cbranch_scc1 L_end2")
    A("  s_load_dwordx4 s[20:23], s[0:1], 96")
    if "xcd" in opts:
        A(f"  v_lshlrev_b32 v1, 5, v0\n  v_add_u32 v1, {WST}, v1")
        A("  s_waitcnt lgkmcnt(0)")
        for k in range(4):
            A(f"  global_load_dword v{8+k}, v1, s[22:23] offset:{20 + 2048*(k&1)}")
            A(f"  global_load_dword v{12+k}, v1, s[22:23] offset:{2048*(k&1)}")
            if k == 1: A("  v_add_u32 v1, 0x1000, v1")
        A("  s_waitcnt vmcnt(0)")
        A("  v_min_u32 v40, v12, v13\n  v_min3_u32 v40, v40, v14, v15")
        wave_reduce("v_min_u32", 40, 24)
        A("  v_max_u32 v8, v8, v9\n  v_max_u32 v10, v10, v11")
        for r in (8, 10):
            A(f"  s_nop 1\n  v_max_u32_dpp v{r}, v{r}, v{r} row_ror:8 {DPPM}")
            for sw in ("v_permlane16_swap_b32", "v_permlane32_swap_b32"):
                A(f"  v_mov_b32 v20, v{r}\n  s_nop 1\n  {sw} v{r}, v20\n  s_nop 1\n  v_max_u32 v{r}, v{r}, v20")
            A(f"  v_subrev_u32 v{r}, s24, v{r}")
        A("  v_lshlrev_b32 v1, 2, v0\n  s_mov_b64 exec, 0xff")
        A("  global_store_dword v1, v8, s[20:21]\n  global_store_dword v1, v10, s[20:21] offset:32")
    else:
        A(f"  v_lshlrev_b32 v1, 7, v0\n  v_add_u32 v1, {WST}, v1")
        A("  s_waitcnt lgkmcnt(0)")
        for k in range(8):
            A(f"  global_load_dwordx4 v[{8+4*k}:{11+4*k}], v1, s[22:23] offset:{16*k}")
        A("  s_waitcnt vmcnt(0)")
        for k in range(8):
            A(f"  v_min_u32 v40, v{8+k}, v{16+k}\n  v_min3_u32 v40, v40, v{24+k}, v{32+k}")
            A(f"  v_max_u32 v41, v{8+k}, v{16+k}\n  v_max3_u32 v41, v41, v{24+k}, v{32+k}")
            wave_reduce("v_min_u32", 40, 24)
            wave_reduce("v_max_u32", 41, 25)
            A(f"  v_mov_b32 v42, s24\n  v_mov_b32 v43, s25\n  v_mov_b32 v44, {8*k}")
            A("  s_mov_b64 exec, 1\n  global_store_dwordx2 v44, v[42:43], s[20:21]\n  s_mov_b64 exec, -1")
    A("L_end2:\n  s_endpgm")
    kernels.append(("agg_kernel", 48, 32))
A('.section .rodata,"a"')
for name, nv, ns in kernels:
    A(f""".p2align 6
.amdhsa_kernel {name}
  .amdhsa_next_free_vgpr {nv}
  .amdhsa_next_free_sgpr {ns}
  .amdhsa_accum_offset {(nv+3)//4*4}
  .amdhsa_group_segment_fixed_size 0
  .amdhsa_kernarg_size 112
  .amdhsa_user_sgpr_count 2
  .amdhsa_user_sgpr_kernarg_segment_ptr 1
  .amdhsa_system_sgpr_workgroup_id_x 1
.end_amdhsa_kernel""")
open(out, "w").write("\n".join(L) + "\n")
```

```python
import sys
out = sys.argv[1]
opts = sys.argv[2:]
STAMP = "stamp" in opts or "qstamp" in opts
QST = "qstamp" in opts
NH = 1
WIN = 4
for o in opts:
    if o.startswith("win"): WIN = int(o[3:])
PRE = 2
for o in opts:
    if o.startswith("pre"): PRE = int(o[3:])
KPOL = "nt"
L = []
def A(s): L.append(s)
KN = "gated_mix__mha_block_cached__sliding_block_cached__decode_kernel"

for line in open("gated_mix__mha_block_cached__sliding_block_cached__decode.s.ref").read().split("\n"):
    if line.startswith(";") and "@launch" not in line:
        A(line)
LWO = 0
LQP = 131072
LQ = LQP + 16384
LO1 = LQ + 512
LML1 = LO1 + 9 * 512
LO2 = LML1 + 128
LML2 = LO2 + 9 * 512
LFLAG = LML2 + 128
LDS_BYTES = LFLAG + 64
assert LDS_BYTES <= 163840
if STAMP:
    A(f"; @launch kernel={KN} grid=(256,1,1) block=(512,1,1) lds={LDS_BYTES}")
    A("; @launch kernel=agg_kernel grid=(1,1,1) block=(64,1,1) lds=0")
else:
    A(f"; @launch grid=(256,1,1) block=(512,1,1) lds={LDS_BYTES}")
A('.amdgcn_target "amdgcn-amd-amdhsa--gfx950"\n.text')

LOG2E = 0x3fb8aa3b
SCALE = 0x3db504f3
WY, WQP, WPX, WST = 0, 0x80000, 0x100000, 0x200000
WFQ, WFP, WFF = 0x140000, 0x150000, 0x160000

class Fifo:
    def __init__(self): self.q = []
    def issue(self, tag): self.q.append(tag)
    def wait(self, tag):
        if tag not in self.q: return
        idx = self.q.index(tag)
        n = len(self.q) - 1 - idx
        assert n <= 63
        A(f"  s_waitcnt vmcnt({n})")
        self.q = self.q[idx + 1:]
    def copy(self):
        f = Fifo(); f.q = list(self.q); return f
F = Fifo()

vLANE, vKOFF, vLOFF, vWQOFF, vWOOFF = 1, 2, 3, 4, 5
vMASK = 6
vN, vG = 10, 11
vLOG2E, vSCALE = 12, 13
vT = 14
vGATE, vOMG = 15, 0
vQA, vQB = 16, 32
vD = 48
vS = 64
vP = 69
vAOP = 76
vACC = 84
vACC2 = 88
vTMP = 92
RING = 140
NSLOT = 16 * NH
NVGPR = RING + 4 * NSLOT
def slot(i): return f"v[{RING+4*i}:{RING+4*i+3}]"
def vr(b, n=4): return f"v[{b}:{b+n-1}]"

sW = 3
sX, sAK, sAV, sAWQ, sAWO = 8, 10, 12, 14, 16
sGW, sOUT = 4, 6
sBK, sBV, sBWQ, sBWO = 20, 22, 24, 26
sDBG, sWS = 28, 30
sKA, sVA, sKB, sVB, sWQ, sWO = 32, 34, 36, 38, 40, 42
sM1, sM2, sM3 = 44, 46, 48
sC0 = 50
sU = 58
sH, sB, sHALF, sBH = 60, 61, 62, 63
sT0, sT1, sT2, sT3 = 64, 65, 66, 67
sMX, sL = 68, 69
sEX = 70
sST = 72
sCNT = 78
sTAG = 79

DPPM = "row_mask:0xf bank_mask:0xf"
uid = [0]
def lab(p):
    uid[0] += 1
    return f"L_{p}{uid[0]}"

def qs(k):
    if QST: A(f"  s_memrealtime s[{80+2*k}:{81+2*k}]")
def qs_flush(n):
    if not QST: return
    A("  s_waitcnt lgkmcnt(0)")
    A(f"  s_mov_b64 exec, 1")
    A(f"  s_lshl_b32 s{sST+1}, s2, 5\n  s_add_u32 s{sST+1}, s{sST+1}, {WST}")
    A(f"  v_mov_b32 v{vTMP+47}, s{sST+1}")
    A(f"  v_mov_b32 v{vTMP+46}, s{sST+4}\n  global_store_dword v{vTMP+47}, v{vTMP+46}, s[{sWS}:{sWS+1}]")
    for k in range(n):
        A(f"  v_mov_b32 v{vTMP+46}, s{80+2*k}\n  global_store_dword v{vTMP+47}, v{vTMP+46}, s[{sWS}:{sWS+1}] offset:{4*(k+1)}")
    A(f"  s_mov_b64 exec, -1")
def stamp(k, drain=False):
    if not STAMP or QST: return
    l = lab("st")
    A(f"  s_cmp_lg_u32 s{sW}, 0\n  s_cbranch_scc1 {l}")
    if drain: A("  s_waitcnt vmcnt(0)")
    A(f"  s_memrealtime s[{sST}:{sST+1}]\n  s_waitcnt lgkmcnt(0)")
    if k == 0: A(f"  s_mov_b32 s{sST}, s{sST+4}")
    A(f"  s_mov_b64 s[{sST+2}:{sST+3}], exec\n  s_mov_b64 exec, 1")
    A(f"  s_lshl_b32 s{sST+1}, s2, 5\n  s_add_u32 s{sST+1}, s{sST+1}, {WST + 4*k}")
    A(f"  v_mov_b32 v{vTMP+46}, s{sST}\n  v_mov_b32 v{vTMP+47}, s{sST+1}")
    A(f"  global_store_dword v{vTMP+47}, v{vTMP+46}, s[{sWS}:{sWS+1}]")
    if k == 0:
        for kk in range(1, 8):
            A(f"  global_store_dword v{vTMP+47}, v{vTMP+46}, s[{sWS}:{sWS+1}] offset:{4*kk}")
    A(f"  s_mov_b64 exec, s[{sST+2}:{sST+3}]")
    A(f"{l}:")

A(f".globl {KN}\n.p2align 8\n.type {KN},@function\n{KN}:")
A("  s_cmp_ge_u32 s2, 256\n  s_cbranch_scc1 L_end")
if STAMP: A(f"  s_memrealtime s[{sST+4}:{sST+5}]")
A("  s_load_dwordx8 s[8:15], s[0:1], 0")
A("  s_load_dwordx2 s[16:17], s[0:1], 32")
A("  s_load_dwordx8 s[20:27], s[0:1], 48")
A("  s_load_dwordx4 s[4:7], s[0:1], 80")
A("  s_load_dwordx4 s[28:31], s[0:1], 96")
A(f"  v_lshrrev_b32 v{vT}, 6, v0")
A(f"  v_and_b32 v{vLANE}, 63, v0")
A(f"  v_readfirstlane_b32 s{sW}, v{vT}")
A(f"  v_and_b32 v{vN}, 15, v{vLANE}")
A(f"  v_lshrrev_b32 v{vG}, 4, v{vLANE}")
A(f"  v_bfe_u32 v{vT}, v{vLANE}, 2, 2")
A(f"  v_lshlrev_b32 v{vKOFF}, 8, v{vT}")
A(f"  v_lshl_add_u32 v{vKOFF}, v{vG}, 6, v{vKOFF}")
A(f"  v_and_b32 v{vT}, 3, v{vLANE}")
A(f"  v_lshl_add_u32 v{vKOFF}, v{vT}, 4, v{vKOFF}")
A(f"  v_lshlrev_b32 v{vLOFF}, 4, v{vLANE}")
A(f"  v_lshlrev_b32 v{vWQOFF}, 13, v{vG}")
A(f"  v_lshl_add_u32 v{vWQOFF}, v{vN}, 4, v{vWQOFF}")
A(f"  v_lshrrev_b32 v{vT}, 3, v{vN}")
A(f"  v_lshl_add_u32 v{vT}, v{vT}, 2, v{vG}")
A(f"  v_lshlrev_b32 v{vWOOFF}, 10, v{vT}")
A(f"  v_and_b32 v{vT}, 7, v{vN}")
A(f"  v_lshl_add_u32 v{vWOOFF}, v{vT}, 4, v{vWOOFF}")
A(f"  s_and_b32 s{sH}, s2, 7\n  s_lshl_b32 s{sH}, s{sH}, 2\n  s_bfe_u32 s{sT0}, s2, 0x20003\n  s_add_u32 s{sH}, s{sH}, s{sT0}")
A(f"  s_bfe_u32 s{sB}, s2, 0x20005")
A(f"  s_lshr_b32 s{sHALF}, s2, 7")
A(f"  s_lshl_b32 s{sBH}, s{sB}, 5\n  s_add_u32 s{sBH}, s{sBH}, s{sH}")
A(f"  s_lshl_b32 s{sT0}, s{sBH}, 20\n  s_lshl_b32 s{sT1}, s{sW}, 13\n  s_add_u32 s{sT0}, s{sT0}, s{sT1}\n  s_add_u32 s{sT0}, s{sT0}, 4096")
A(f"  s_mul_i32 s{sT1}, s{sHALF}, {2560*256}\n  s_add_u32 s{sT1}, s{sT1}, s{sT0}      ; A off")
A(f"  s_add_u32 s{sT2}, s{sT0}, {3072*256}    ; B off")
A(f"  s_lshl_b32 s{sT3}, s{sB}, 8\n  s_lshl_b32 s{sT0}, s{sW}, 5\n  s_add_u32 s{sT3}, s{sT3}, s{sT0}")
A(f"  v_lshrrev_b32 v{vT}, 3, v{vN}\n  v_lshlrev_b32 v{vT}, 10, v{vT}\n  v_lshl_add_u32 v{vT}, v{vG}, 1, v{vT}\n  v_add_u32 v{vT}, s{sT3}, v{vT}")
A("  s_waitcnt lgkmcnt(0)")
ltag = lab("tag")
A(f"  s_or_b32 s92, s{sB}, s{sHALF}\n  s_or_b32 s92, s92, s{sW}\n  s_cmp_lg_u32 s92, 0\n  s_cbranch_scc1 {ltag}")
A(f"  s_memrealtime s[92:93]\n  s_waitcnt lgkmcnt(0)\n  s_or_b32 s92, s92, 1")
A(f"  s_lshl_b32 s93, s{sH}, 2\n  v_mov_b32 v{vD}, s93\n  v_mov_b32 v{vD+1}, s92")
A(f"  s_mov_b64 exec, 1\n  global_store_dword v{vD}, v{vD+1}, s[{sDBG}:{sDBG+1}] sc1\n  s_mov_b64 exec, -1")
A(f"{ltag}:")
vXW = vTMP + 32
for p in range(2):
    for i in range(4):
        A(f"  global_load_ushort v{vXW+4*p+i}, v{vT}, s[{sX}:{sX+1}] offset:{2048*p + 8*i}")
        F.issue(("xw", p, i))
def add64(d, base, off):
    A(f"  s_add_u32 s{d}, s{base}, s{off}\n  s_addc_u32 s{d+1}, s{base+1}, 0")
A(f"  s_cmp_eq_u32 s{sHALF}, 0")
A(f"  s_cselect_b32 s{sWQ}, s{sAWQ}, s{sBWQ}\n  s_cselect_b32 s{sWQ+1}, s{sAWQ+1}, s{sBWQ+1}")
A(f"  s_cselect_b32 s{sWO}, s{sAWO}, s{sBWO}\n  s_cselect_b32 s{sWO+1}, s{sAWO+1}, s{sBWO+1}")
A(f"  s_lshl_b32 s{sT0}, s{sT3}, 12\n  s_lshl_b32 s{sT3}, s{sH}, 8\n  s_add_u32 s{sT0}, s{sT0}, s{sT3}")
add64(sWQ, sWQ, sT0)
vWQ = vTMP
for i in range(4):
    A(f"  global_load_dwordx4 {vr(vWQ+4*i)}, v{vWQOFF}, s[{sWQ}:{sWQ+1}] nt")
    F.issue(("wq", i))
    if i < 3: A(f"  s_add_u32 s{sWQ}, s{sWQ}, 0x8000\n  s_addc_u32 s{sWQ+1}, s{sWQ+1}, 0")
add64(sKA, sAK, sT1); add64(sVA, sAV, sT1); add64(sKB, sBK, sT2); add64(sVB, sBV, sT2)
A(f"  s_lshl_b32 s{sT0}, s{sH}, 17\n  s_lshl_b32 s{sT1}, s{sW}, 7\n  s_add_u32 s{sT0}, s{sT0}, s{sT1}")
add64(sWO, sWO, sT0)

class Seg:
    def __init__(self, name, sbase, kind):
        self.name, self.sbase, self.kind, self.n = name, sbase, kind, 0
    def load(self, sl):
        j = self.n; self.n += 1
        tag = (self.name, j)
        voff = vKOFF if self.kind == "k" else vLOFF
        i = j % 8
        A(f"  global_load_dwordx4 {slot(sl)}, v{voff}, s[{self.sbase}:{self.sbase+1}] offset:{-4096+1024*i} {KPOL}")
        if i == 7:
            A(f"  s_add_u32 s{self.sbase}, s{self.sbase}, 0x10000\n  s_addc_u32 s{self.sbase+1}, s{self.sbase+1}, 0")
        F.issue(tag)
        return tag

NODMA = "nodma" in opts
DMAPOL = "nt"
for o in opts:
    if o.startswith("dmapol="): DMAPOL = o[7:].replace("none", "").replace("+", " ")
DMAFIRST = "dmafirst" in opts
DMALATE = "dmaearly" not in opts
DWIN = WIN
for o in opts:
    if o.startswith("dwin"): DWIN = int(o[4:])
def prefetch_rest():
    A(f"  s_lshl_b32 s{sT0}, s{sW}, 14")
    def ring():
        for t in range(PRE, NSLOT):
            if WIN < 32: A(f"  s_waitcnt vmcnt({WIN-1})")
            tags[t] = KA.load(t)
    def dma():
        if NODMA: return
        for i in range(16):
            A(f"  s_add_u32 m0, s{sT0}, {LWO + 1024*i}")
            if DWIN < 32: A(f"  s_waitcnt vmcnt({DWIN-1})")
            else: A("  s_nop 0")
            A(f"  global_load_lds_dwordx4 v{vWOOFF}, s[{sWO}:{sWO+1}] {DMAPOL}")
            F.issue(("dma", i))
            if i < 15: A(f"  s_add_u32 s{sWO}, s{sWO}, 0x2000\n  s_addc_u32 s{sWO+1}, s{sWO+1}, 0")
    if DMALATE: ring()
    elif DMAFIRST: dma(); ring()
    else: ring(); dma()
def dma_one(i):
    A(f"  s_lshl_b32 s{sT0}, s{sW}, 14\n  s_add_u32 m0, s{sT0}, {LWO + 1024*i}")
    A("  s_nop 0")
    A(f"  global_load_lds_dwordx4 v{vWOOFF}, s[{sWO}:{sWO+1}] {DMAPOL}")
    F.issue(("dma", i))
    if i < 15: A(f"  s_add_u32 s{sWO}, s{sWO}, 0x2000\n  s_addc_u32 s{sWO+1}, s{sWO+1}, 0")

KA, VA, KB, VB = Seg("KA", sKA, "k"), Seg("VA", sVA, "v"), Seg("KB", sKB, "k"), Seg("VB", sVB, "v")
tags = {}
for t in range(PRE):
    tags[t] = KA.load(t)
A(f"  v_mov_b32 v{vLOG2E}, {LOG2E:#x}\n  v_mov_b32 v{vSCALE}, {SCALE:#x}")
A(f"  v_and_b32 v{vT}, 1, v{vN}\n  v_lshlrev_b32 v{vT}, 4, v{vT}")
A(f"  v_mov_b32 v{vD}, 0xffff\n  v_lshlrev_b32 v{vD}, v{vT}, v{vD}")
A(f"  v_bfe_u32 v{vT}, v{vN}, 1, 2")
for w in range(4):
    A(f"  v_cmp_eq_u32 vcc, {w}, v{vT}\n  s_nop 1\n  v_cndmask_b32 v{vMASK+w}, 0, v{vD}, vcc")
for t, s in ((1, sM1), (2, sM2), (3, sM3)):
    m = 0x11111111 << t
    A(f"  s_mov_b32 s{s}, {m:#x}\n  s_mov_b32 s{s+1}, {m:#x}")
for i in range(4):
    m = 0x000f000f << (4 * i)
    A(f"  s_mov_b32 s{sC0+2*i}, {m:#x}\n  s_mov_b32 s{sC0+2*i+1}, {m:#x}")
A(f"  s_mov_b32 s{sU}, 0xff00ff00\n  s_mov_b32 s{sU+1}, 0xff00ff00")
F.wait(("wq", 3))
qs(0)
for k in range(8):
    A(f"  v_lshl_or_b32 v{vXW+k}, v{vXW+k}, 16, v{vXW+k}")
for p in range(2):
    acc = vACC if p == 0 else vACC2
    for i in range(4):
        ao = vAOP + 4 * (i & 1)
        for w in range(4):
            A(f"  v_and_b32 v{ao+w}, v{vXW+4*p+i}, v{vMASK+w}")
        A("  s_nop 1")
        c = "0" if i == 0 else vr(acc)
        A(f"  v_mfma_f32_16x16x32_bf16 {vr(acc)}, {vr(ao)}, {vr(vWQ+4*i)}, {c}")
A(f"  v_lshrrev_b32 v{vT}, 1, v{vG}\n  v_lshlrev_b32 v{vT}, 9, v{vT}\n  v_lshl_add_u32 v{vT}, v{vN}, 5, v{vT}")
A(f"  v_and_b32 v{vD}, 1, v{vG}\n  v_lshl_add_u32 v{vT}, v{vD}, 4, v{vT}")
A(f"  s_lshl_b32 s{sT0}, s{sW}, 11\n  s_add_u32 s{sT0}, s{sT0}, {LQP}\n  v_add_u32 v{vT}, s{sT0}, v{vT}")
A("  s_nop 4")
A(f"  ds_write_b128 v{vT}, {vr(vACC)}\n  ds_write_b128 v{vT}, {vr(vACC2)} offset:1024")
A("  s_waitcnt lgkmcnt(0)\n  s_barrier")
lq = lab("qdone")
lpf = lab("pf")
A(f"  s_cmp_lg_u32 s{sW}, 0\n  s_cbranch_scc1 {lpf}")
qs(1)
A(f"  v_add_u32 v{vT}, {LQP}, v{vLOFF}")
for hh in range(2):
    for w in range(8):
        A(f"  ds_read_b128 {vr(vTMP+4*w)}, v{vT} offset:{w*2048 + hh*1024}")
    A("  s_waitcnt lgkmcnt(0)")
    d = vACC if hh == 0 else vACC2
    for e in range(4):
        A(f"  v_add_f32 v{d+e}, v{vTMP+e}, v{vTMP+4+e}")
        for w in range(2, 8):
            A(f"  v_add_f32 v{d+e}, v{d+e}, v{vTMP+4*w+e}")
A(f"  s_lshl_b32 s{sT0}, s{sB}, 1\n  s_add_u32 s{sT0}, s{sT0}, s{sHALF}\n  s_lshl_b32 s{sT0}, s{sT0}, 5\n  s_add_u32 s{sT0}, s{sT0}, s{sH}\n  s_lshl_b32 s{sT0}, s{sT0}, 11")
A(f"  v_add_u32 v{vT}, s{sT0}, v{vLOFF}")
for e in range(4): A(f"  v_mov_b32 v{vD+8+e}, -1")
A(f"  global_store_dwordx4 v{vT}, {vr(vD+8)}, s[{sWS}:{sWS+1}] sc1")
A(f"  global_store_dwordx4 v{vT}, {vr(vD+8)}, s[{sWS}:{sWS+1}] offset:1024 sc1")
A(f"  s_lshl_b32 s{sT0}, s{sH}, 1\n  s_add_u32 s{sT0}, s{sT0}, s{sHALF}\n  s_lshl_b32 s{sT0}, s{sT0}, 2\n  s_add_u32 s{sT0}, s{sT0}, s{sB}\n  s_lshl_b32 s{sT0}, s{sT0}, 11\n  s_add_u32 s{sT0}, s{sT0}, {WQP}")
A(f"  v_add_u32 v{vT}, s{sT0}, v{vLOFF}")
A(f"  global_store_dwordx4 v{vT}, {vr(vACC)}, s[{sWS}:{sWS+1}] sc1")
A(f"  global_store_dwordx4 v{vT}, {vr(vACC2)}, s[{sWS}:{sWS+1}] offset:1024 sc1")
A(f"  s_lshl_b32 s{sT1}, s{sH}, 2\n  v_mov_b32 v{vD}, s{sT1}")
lt = lab("tpoll")
A(f"  s_mov_b32 s{sCNT}, 0")
A(f"{lt}:")
A(f"  s_mov_b64 exec, 1\n  global_load_dword v{vD+1}, v{vD}, s[{sDBG}:{sDBG+1}] sc1\n  s_mov_b64 exec, -1")
A("  s_waitcnt vmcnt(0)")
A(f"  v_readfirstlane_b32 s{sTAG}, v{vD+1}")
A(f"  s_add_u32 s{sCNT}, s{sCNT}, 1\n  s_cmp_gt_u32 s{sCNT}, 0x200000\n  s_cbranch_scc1 {lt}x")
A(f"  s_cmp_eq_u32 s{sTAG}, 0\n  s_cbranch_scc1 {lt}")
A(f"{lt}x:")
qs(2)
A(f"  s_lshl_b32 s{sT0}, s{sHALF}, 2\n  s_add_u32 s{sT0}, s{sT0}, s{sB}\n  s_lshl_b32 s{sT0}, s{sT0}, 3\n  s_lshl_b32 s{sT1}, s{sH}, 8\n  s_add_u32 s{sT1}, s{sT1}, {WFQ}\n  s_add_u32 s{sT0}, s{sT0}, s{sT1}")
A(f"  v_mov_b32 v{vD+4}, s{sTAG}\n  v_not_b32 v{vD+5}, v{vD+4}\n  v_mov_b32 v{vD}, s{sT0}")
A(f"  s_mov_b64 exec, 1\n  global_store_dwordx2 v{vD}, v[{vD+4}:{vD+5}], s[{sWS}:{sWS+1}] sc1\n  s_mov_b64 exec, -1")
A(f"  v_lshlrev_b32 v{vD}, 3, v{vLANE}\n  v_add_u32 v{vD}, s{sT1}, v{vD}")
A(f"  v_lshrrev_b32 v{vT}, 5, v{vLANE}\n  v_lshlrev_b32 v{vT}, 13, v{vT}\n  v_and_b32 v{vD+2}, 31, v{vLANE}\n  v_lshl_add_u32 v{vT}, v{vD+2}, 4, v{vT}")
A(f"  s_lshl_b32 s{sT0}, s{sH}, 14\n  s_lshl_b32 s{sT2}, s{sB}, 9\n  s_add_u32 s{sT0}, s{sT0}, s{sT2}\n  s_add_u32 s{sT0}, s{sT0}, {WQP}")
A(f"  v_add_u32 v{vT}, s{sT0}, v{vT}")
A(f"  v_add_u32 v{vD+3}, 0x1000, v{vT}")
lp = lab("qpoll")
A(f"  s_mov_b32 s{sCNT}, 0")
A(f"  s_cmp_eq_u32 s{sHALF}, 0\n  s_cselect_b32 s{sT2}, 0xf, 0xff")
A(f"{lp}:")
A(f"  s_mov_b64 exec, 0xff\n  global_load_dwordx2 v[{vD+6}:{vD+7}], v{vD}, s[{sWS}:{sWS+1}] sc1")
A("  s_waitcnt vmcnt(0)")
A(f"  v_cmp_eq_u64 vcc, v[{vD+6}:{vD+7}], v[{vD+4}:{vD+5}]\n  s_mov_b64 exec, -1")
A(f"  s_and_b32 s{sT0}, vcc_lo, s{sT2}")
A(f"  s_add_u32 s{sCNT}, s{sCNT}, 1\n  s_cmp_gt_u32 s{sCNT}, 0x200000\n  s_cbranch_scc1 {lp}x")
if "noqwait" not in opts: A(f"  s_cmp_lg_u32 s{sT0}, s{sT2}\n  s_cbranch_scc1 {lp}")
A(f"{lp}x:")
qs(3)
for rq in range(4):
    if rq < 2: A(f"  global_load_dwordx4 {vr(vTMP+4*rq)}, v{vT}, s[{sWS}:{sWS+1}] offset:{2048*rq} sc1")
    else: A(f"  global_load_dwordx4 {vr(vTMP+4*rq)}, v{vD+3}, s[{sWS}:{sWS+1}] offset:{2048*(rq-2)} sc1")
A("  s_waitcnt vmcnt(0)")
qs(4)
for e in range(4):
    A(f"  v_add_f32 v{vTMP+e}, v{vTMP+e}, v{vTMP+4+e}\n  v_add_f32 v{vTMP+8+e}, v{vTMP+8+e}, v{vTMP+12+e}\n  v_add_f32 v{vTMP+e}, v{vTMP+e}, v{vTMP+8+e}")
A(f"  v_cvt_pk_bf16_f32 v{vTMP+4}, v{vTMP}, v{vTMP+1}\n  v_cvt_pk_bf16_f32 v{vTMP+5}, v{vTMP+2}, v{vTMP+3}")
A(f"  v_lshlrev_b32 v{vT}, 3, v{vLANE}")
A(f"  ds_write_b64 v{vT}, v[{vTMP+4}:{vTMP+5}] offset:{LQ}" if LQ < 65536 else
  f"  v_add_u32 v{vT}, {LQ}, v{vT}\n  ds_write_b64 v{vT}, v[{vTMP+4}:{vTMP+5}]")
A("  s_waitcnt lgkmcnt(0)")
stamp(0)
stamp(1)
A("  s_barrier")
stamp(7)
qs(5)
qs_flush(6)
A(f"{lpf}:")
prefetch_rest()
A(f"  s_cmp_eq_u32 s{sW}, 0\n  s_cbranch_scc1 {lq}")
A("  s_barrier")
A(f"{lq}:")

def wave_reduce(op, v, sdst):
    for c in ("row_ror:8", "row_ror:4", "row_ror:2", "row_ror:1"):
        A(f"  s_nop 1\n  {op}_dpp v{v}, v{v}, v{v} {c} {DPPM}")
    A(f"  s_nop 1\n  {op}_dpp v{v}, v{v}, v{v} row_bcast:15 row_mask:0xa bank_mask:0xf")
    A(f"  s_nop 1\n  {op}_dpp v{v}, v{v}, v{v} row_bcast:31 row_mask:0xc bank_mask:0xf")
    A(f"  s_nop 0\n  v_readlane_b32 s{sdst}, v{v}, 63\n  s_nop 1")
def round_bf16(regs):
    for r in regs:
        A(f"  v_cvt_pk_bf16_f32 v{r}, v{r}, v{r}\n  v_and_b32 v{r}, 0xffff0000, v{r}")

A(f"  v_and_b32 v{vT}, 3, v{vN}\n  v_lshl_add_u32 v{vT}, v{vG}, 2, v{vT}\n  v_lshlrev_b32 v{vT}, 4, v{vT}\n  v_add_u32 v{vT}, {LQ}, v{vT}")
A(f"  ds_read_b128 {vr(vTMP)}, v{vT}\n  ds_read_b128 {vr(vTMP+4)}, v{vT} offset:256")
A("  s_waitcnt lgkmcnt(0)")
for br, q in ((0, vQA), (1, vQB)):
    for i in range(4):
        for e in range(4):
            A(f"  v_cndmask_b32 v{q+4*i+e}, 0, v{vTMP+4*br+e}, s[{sC0+2*i}:{sC0+2*i+1}]")

def build_aop(dst, wreg, bc, two=None):
    if two is None:
        for w in range(4):
            A(f"  v_and_b32_dpp v{dst+w}, v{wreg}, v{vMASK+w} row_newbcast:{bc} {DPPM}")
    else:
        A(f"  v_mov_b32_dpp v{vTMP+44}, v{wreg} row_newbcast:{bc} {DPPM}")
        A(f"  v_mov_b32_dpp v{vTMP+45}, v{two} row_newbcast:{bc} {DPPM}")
        A(f"  v_cndmask_b32 v{vTMP+44}, v{vTMP+44}, v{vTMP+45}, s[{sU}:{sU+1}]")
        for w in range(4):
            A(f"  v_and_b32 v{dst+w}, v{vTMP+44}, v{vMASK+w}")

class Stream:
    def __init__(self, seq):
        self.seq = seq; self.k = 0
    def next(self):
        k = self.k; self.k += 1
        half = k % NH
        refill = self.seq[k + NH] if k + NH < len(self.seq) else None
        return half, refill

def consume_pv(st, preg, first_zero, hook=None):
    half, refill = st.next()
    bc = lambda j: (j & 3) * 4 + (j >> 2)
    A("  s_nop 1")
    build_aop(vAOP, preg, bc(0))
    for i in range(16):
        sl = half * 16 + i
        if i < 15: build_aop(vAOP + 4 * ((i + 1) & 1), preg, bc(i + 1))
        else: A("  s_nop 0")
        F.wait(tags[sl])
        c = "0" if (first_zero and i == 0) else vr(vACC)
        A(f"  v_mfma_f32_16x16x32_bf16 {vr(vACC)}, {vr(vAOP + 4 * (i & 1))}, {slot(sl)}, {c}")
        if refill is not None: tags[sl] = refill.load(sl)
        elif i > 0:
            if i == 1: A(f"  s_lshl_b32 s{sT0}, s{sW}, 14\n  v_add_u32 v{vT}, s{sT0}, v{vLOFF}")
            A(f"  ds_read_b128 {slot(sl-1)}, v{vT} offset:{LWO + 1024*(i-1)}")
        if hook and i == 0: hook()

def consume_qk(st, q, sdst, hook=None):
    first = st.k == 0
    half, refill = st.next()
    for j in range(16):
        sl = half * 16 + j
        t, i = j >> 2, j & 3
        F.wait(tags[sl])
        c = "0" if i == 0 else vr(vD + 4 * t)
        A(f"  v_mfma_f32_16x16x32_bf16 {vr(vD+4*t)}, {slot(sl)}, {vr(q+4*i)}, {c}")
        if refill is not None: tags[sl] = refill.load(sl)
        if hook and j == 0: hook()
        if first and DMALATE: dma_one(j)
    A("  s_nop 7")
    for t in range(4):
        d = vTMP + t
        A(f"  v_mov_b32_dpp v{d}, v{vD+4*t} quad_perm:[0,0,0,0] {DPPM}")
        for s in range(1, 4):
            A(f"  v_add_f32_dpp v{d}, v{vD+4*t+s}, v{d} quad_perm:[{s},{s},{s},{s}] {DPPM}")
    A(f"  v_cndmask_b32 v{sdst}, v{vTMP}, v{vTMP+1}, s[{sM1}:{sM1+1}]")
    A(f"  v_cndmask_b32 v{sdst}, v{sdst}, v{vTMP+2}, s[{sM2}:{sM2+1}]")
    A(f"  v_cndmask_b32 v{sdst}, v{sdst}, v{vTMP+3}, s[{sM3}:{sM3+1}]")

def softmax(nb):
    S = [vS + k for k in range(nb)]
    round_bf16(S)
    for r in S: A(f"  v_mul_f32 v{r}, v{r}, v{vSCALE}")
    round_bf16(S)
    for r in S: A(f"  v_mul_f32 v{r}, v{r}, v{vLOG2E}")
    t = vTMP
    A(f"  v_mov_b32 v{t}, v{S[0]}")
    for r in S[1:]: A(f"  v_max_f32 v{t}, v{t}, v{r}")
    wave_reduce("v_max_f32", t, sMX)
    for r in S: A(f"  v_subrev_f32 v{r}, s{sMX}, v{r}")
    for r in S: A(f"  v_exp_f32 v{r}, v{r}")
    A("  s_nop 0")
    for k, r in enumerate(S): A(f"  v_cvt_pk_bf16_f32 v{vP+k}, v{r}, v{r}")
    A(f"  v_mov_b32 v{t}, v{S[0]}")
    for r in S[1:]: A(f"  v_add_f32 v{t}, v{t}, v{r}")
    wave_reduce("v_add_f32", t, sL)

def store_partial_lds(base, mlbase):
    A(f"  v_and_b32 v{vTMP}, 1, v{vG}\n  v_lshlrev_b32 v{vTMP}, 4, v{vTMP}\n  v_lshl_add_u32 v{vTMP}, v{vN}, 5, v{vTMP}")
    A(f"  s_lshl_b32 s{sT0}, s{sW}, 9\n  s_add_u32 s{sT0}, s{sT0}, {base}\n  v_add_u32 v{vTMP}, s{sT0}, v{vTMP}")
    A(f"  s_lshl_b32 s{sT0}, s{sW}, 3\n  s_add_u32 s{sT0}, s{sT0}, {mlbase}")
    A(f"  v_mov_b32 v{vTMP+1}, s{sT0}\n  v_mov_b32 v{vTMP+2}, s{sMX}\n  v_mov_b32 v{vTMP+3}, s{sL}")
    A(f"  ds_write_b64 v{vTMP+1}, v[{vTMP+2}:{vTMP+3}]")
    A("  s_nop 3")
    A(f"  ds_write_b128 v{vTMP}, {vr(vACC)}")

def combine(base, mlbase, nsl, normalise):
    ml = vTMP
    ov = vTMP + 20
    a = vTMP + 38
    A(f"  v_mov_b32 v{a}, {mlbase}")
    for k in range((nsl + 1) // 2):
        A(f"  ds_read_b128 {vr(ml+4*k)}, v{a} offset:{16*k}")
    A(f"  v_lshl_add_u32 v{a+1}, v{vN}, 3, v{vG}\n  v_lshlrev_b32 v{a+1}, 2, v{a+1}\n  v_add_u32 v{a+1}, {base}, v{a+1}")
    for w in range(nsl):
        A(f"  ds_read_b32 v{ov+2*w}, v{a+1} offset:{w*512}\n  ds_read_b32 v{ov+2*w+1}, v{a+1} offset:{w*512 + 16}")
    A("  s_waitcnt lgkmcnt(0)")
    M, Lr = vTMP + 41, vTMP + 42
    A(f"  v_max_f32 v{M}, v{ml}, v{ml+2}")
    for w in range(2, nsl): A(f"  v_max_f32 v{M}, v{M}, v{ml+2*w}")
    for w in range(nsl): A(f"  v_sub_f32 v{ml+2*w}, v{ml+2*w}, v{M}")
    for w in range(nsl): A(f"  v_exp_f32 v{ml+2*w}, v{ml+2*w}")
    A("  s_nop 0")
    A(f"  v_mul_f32 v{Lr}, v{ml}, v{ml+1}")
    for w in range(1, nsl): A(f"  v_fmac_f32 v{Lr}, v{ml+2*w}, v{ml+2*w+1}")
    if normalise: A(f"  v_rcp_f32 v{a}, v{Lr}")
    A(f"  v_mul_f32 v{a+1}, v{ml}, v{ov}\n  v_mul_f32 v{a+2}, v{ml}, v{ov+1}")
    for w in range(1, nsl):
        A(f"  v_fmac_f32 v{a+1}, v{ml+2*w}, v{ov+2*w}\n  v_fmac_f32 v{a+2}, v{ml+2*w}, v{ov+2*w+1}")
    if normalise:
        A(f"  v_mul_f32 v{a+1}, v{a+1}, v{a}\n  v_mul_f32 v{a+2}, v{a+2}, v{a}")

def gate():
    A(f"  s_lshl_b32 s{sT0}, s{sB}, 10\n  v_add_u32 v{vT}, s{sT0}, v{vLOFF}")
    A(f"  global_load_dwordx4 {vr(vTMP+8)}, v{vT}, s[{sX}:{sX+1}]")
    F.issue("gx")
    A(f"  global_load_dwordx4 {vr(vTMP+12)}, v{vLOFF}, s[{sGW}:{sGW+1}]")
    F.issue("gw")
def gate2():
    F.wait("gw")
    t = vTMP
    A(f"  v_mov_b32 v{t+5}, 0")
    for e in range(4):
        A(f"  v_lshlrev_b32 v{t}, 16, v{t+8+e}\n  v_lshlrev_b32 v{t+1}, 16, v{t+12+e}\n  v_mul_f32 v{t}, v{t}, v{t+1}")
        A(f"  v_and_b32 v{t+2}, 0xffff0000, v{t+8+e}\n  v_and_b32 v{t+3}, 0xffff0000, v{t+12+e}\n  v_mul_f32 v{t+2}, v{t+2}, v{t+3}")
        A(f"  v_cvt_pk_bf16_f32 v{t}, v{t}, v{t+2}")
        A(f"  v_lshlrev_b32 v{t+1}, 16, v{t}\n  v_and_b32 v{t+2}, 0xffff0000, v{t}")
        A(f"  v_add_f32 v{t+5}, v{t+5}, v{t+1}\n  v_add_f32 v{t+5}, v{t+5}, v{t+2}")
    wave_reduce("v_add_f32", t + 5, sT0)
    A(f"  v_mov_b32 v{vGATE}, s{sT0}")
    round_bf16([vGATE])
    A(f"  v_mul_f32 v{vGATE}, v{vLOG2E}, v{vGATE}\n  v_exp_f32 v{vGATE}, -v{vGATE}\n  s_nop 0")
    A(f"  v_add_f32 v{vGATE}, 1.0, v{vGATE}\n  v_rcp_f32 v{vGATE}, v{vGATE}\n  s_nop 0")
    round_bf16([vGATE])
    A(f"  v_sub_f32 v{vOMG}, 1.0, v{vGATE}")
    round_bf16([vOMG])

VR = vTMP + 32
def v_addr():
    A(f"  v_and_b32 v{VR}, 31, v{vLANE}\n  v_lshlrev_b32 v{VR+1}, 8, v{VR}\n  v_lshlrev_b32 v{VR}, 2, v{VR}")
    A(f"  v_lshrrev_b32 v{VR+2}, 5, v{vLANE}\n  v_lshl_add_u32 v{VR+1}, v{VR+2}, 5, v{VR+1}")
    A(f"  s_lshl_b32 s{sT1}, s{sB}, 3\n  s_add_u32 s{sT1}, s{sT1}, {WFQ}\n  v_add_u32 v{VR+1}, s{sT1}, v{VR+1}")
def v_loads():
    A(f"  global_load_dword v{VR+2}, v{VR}, s[{sDBG}:{sDBG+1}] sc1")
    A(f"  global_load_dwordx2 v[{VR+4}:{VR+5}], v{VR+1}, s[{sWS}:{sWS+1}] sc1")
def v_issue():
    l = lab("vi")
    A(f"  s_cmp_lg_u32 s{sW}, 0\n  s_cbranch_scc1 {l}")
    v_addr(); v_loads()
    A(f"{l}:")
def v_check():
    l = lab("vc")
    A(f"  s_cmp_lg_u32 s{sW}, 0\n  s_cbranch_scc1 {l}")
    A(f"  s_mov_b32 s{sCNT}, 0")
    A(f"{l}a:")
    A(f"  v_not_b32 v{VR+3}, v{VR+2}")
    A(f"  v_cmp_eq_u64 vcc, v[{VR+4}:{VR+5}], v[{VR+2}:{VR+3}]")
    A(f"  v_cmp_ne_u32 s[{sEX}:{sEX+1}], 0, v{VR+2}")
    A(f"  s_and_b64 vcc, vcc, s[{sEX}:{sEX+1}]")
    A(f"  s_cmp_eq_u64 vcc, -1\n  s_cbranch_scc1 {l}")
    A(f"  s_add_u32 s{sCNT}, s{sCNT}, 1\n  s_cmp_gt_u32 s{sCNT}, 0x200000\n  s_cbranch_scc1 {l}")
    v_addr(); v_loads()
    A(f"  s_waitcnt vmcnt(0)\n  s_branch {l}a")
    A(f"{l}:")
A(f"  s_cmp_lg_u32 s{sHALF}, 0\n  s_cbranch_scc1 L_pathS")
F0, tags0 = F.copy(), dict(tags)
segn = (KA.n, VA.n, KB.n, VB.n)

st = Stream([KA] * 5 + [VA] * 5)
for k in range(5):
    if k == 1: gate()
    consume_qk(st, vQA, vS + k, v_issue if k == 2 else (v_check if k == 4 else None))
    if k == 2: gate2()
softmax(5)
stamp(2)
PXR = vTMP + 24
def poll_issue():
    l = lab("pi")
    A(f"  s_cmp_lg_u32 s{sW}, 0\n  s_cbranch_scc1 {l}")
    A(f"  s_lshl_b32 s{sT1}, s{sBH}, 8\n  s_add_u32 s{sT1}, s{sT1}, {WFP}\n  v_mov_b32 v{PXR}, s{sT1}")
    A(f"  global_load_dwordx2 v[{PXR+2}:{PXR+3}], v{PXR}, s[{sWS}:{sWS+1}] sc1")
    A(f"{l}:")
def poll_check():
    l = lab("pc")
    A(f"  s_cmp_lg_u32 s{sW}, 0\n  s_cbranch_scc1 {l}")
    A(f"  s_lshl_b32 s{sT1}, s{sBH}, 8\n  s_add_u32 s{sT1}, s{sT1}, {WFP}\n  v_mov_b32 v{PXR}, s{sT1}")
    A(f"  s_mov_b32 s{sCNT}, 0\n  s_not_b32 s{sT2}, s{sTAG}")
    A(f"{l}a:")
    A(f"  v_readfirstlane_b32 s{sT0}, v{PXR+2}\n  v_readfirstlane_b32 s{sT1}, v{PXR+3}")
    A(f"  s_xor_b32 s{sT0}, s{sT0}, s{sTAG}\n  s_xor_b32 s{sT1}, s{sT1}, s{sT2}\n  s_or_b32 s{sT0}, s{sT0}, s{sT1}\n  s_cbranch_scc0 {l}b")
    A(f"  s_add_u32 s{sCNT}, s{sCNT}, 1\n  s_cmp_gt_u32 s{sCNT}, 0x200000\n  s_cbranch_scc1 {l}b")
    A(f"  global_load_dwordx2 v[{PXR+2}:{PXR+3}], v{PXR}, s[{sWS}:{sWS+1}] sc1\n  s_waitcnt vmcnt(0)\n  s_branch {l}a")
    A(f"{l}b:")
    A(f"  s_lshl_b32 s{sT0}, s{sBH}, 10\n  s_add_u32 s{sT0}, s{sT0}, {WPX}\n  v_add_u32 v{PXR}, s{sT0}, v{vLOFF}")
    A(f"  global_load_dwordx4 {vr(PXR+4)}, v{PXR}, s[{sWS}:{sWS+1}] sc1")
    A(f"{l}:")
for k in range(5):
    hook = None
    if k == 2: hook = poll_issue
    if k == 3 + (NH - 1) - (1 if NH == 2 else 0): hook = poll_check if k > 2 else None
    consume_pv(st, vP + k, k == 0, hook)
if NH == 2:
    pass
store_partial_lds(LO2, LML2)
l = lab("px")
A(f"  s_cmp_lg_u32 s{sW}, 0\n  s_cbranch_scc1 {l}")
A("  s_waitcnt vmcnt(0)")
A(f"  v_add_u32 v{PXR}, {LO2 + 8*512}, v{vLOFF}")
A(f"  s_mov_b32 exec_hi, 0\n  ds_write_b128 v{PXR}, {vr(PXR+4)}")
A(f"  s_mov_b32 exec_lo, 0\n  s_mov_b32 exec_hi, 1\n  v_mov_b32 v{PXR}, {LML2 + 64}\n  ds_write_b64 v{PXR}, v[{PXR+4}:{PXR+5}]")
A("  s_mov_b64 exec, -1")
A(f"{l}:")
stamp(4)
A("  s_waitcnt lgkmcnt(0)\n  s_barrier")
combine(LO2, LML2, 9, True)
A("  s_branch L_tail")

A("L_pathS:")
F = F0; tags = tags0
KA.n, VA.n, KB.n, VB.n = segn
st = Stream([KA] * 3 + [VA] * 3 + [KB] * 2 + [VB] * 2)
for k in range(3):
    if k == 1: gate()
    consume_qk(st, vQA, vS + k)
    if k == 2: gate2()
softmax(3)
stamp(2)
for k in range(3):
    consume_pv(st, vP + k, k == 0, v_issue if k == 0 else (v_check if k == 2 else None))
store_partial_lds(LO1, LML1)
A("  s_waitcnt lgkmcnt(0)\n  s_barrier")
l = lab("pub")
A(f"  s_cmp_lg_u32 s{sW}, 0\n  s_cbranch_scc1 {l}")
combine(LO1, LML1, 8, False)
A(f"  s_lshl_b32 s{sT0}, s{sBH}, 10\n  s_add_u32 s{sT0}, s{sT0}, {WPX}")
A(f"  v_lshl_add_u32 v{vTMP}, v{vN}, 3, v{vG}\n  v_lshlrev_b32 v{vTMP}, 2, v{vTMP}\n  v_add_u32 v{vTMP}, s{sT0}, v{vTMP}")
A(f"  global_store_dword v{vTMP}, v{vTMP+39}, s[{sWS}:{sWS+1}] sc1")
A(f"  global_store_dword v{vTMP}, v{vTMP+40}, s[{sWS}:{sWS+1}] offset:16 sc1")
A(f"  v_mov_b32 v{vTMP+2}, v{vTMP+41}\n  v_mov_b32 v{vTMP+3}, v{vTMP+42}")
A(f"  s_mov_b64 exec, 1\n  global_store_dwordx2 v{vTMP}, v[{vTMP+2}:{vTMP+3}], s[{sWS}:{sWS+1}] offset:512 sc1\n  s_mov_b64 exec, -1")
A(f"{l}:")
stamp(3)
nbefore = len(F.q)
consume_qk(st, vQB, vS + 0)
def signal():
    l = lab("sig")
    A(f"  s_cmp_lg_u32 s{sW}, 0\n  s_cbranch_scc1 {l}")
    A(f"  s_waitcnt vmcnt(16)")
    A(f"  s_lshl_b32 s{sT1}, s{sBH}, 8\n  s_add_u32 s{sT1}, s{sT1}, {WFP}")
    A(f"  v_mov_b32 v{vTMP+8}, s{sT1}\n  v_mov_b32 v{vTMP+10}, s{sTAG}\n  v_not_b32 v{vTMP+11}, v{vTMP+10}")
    A(f"  s_mov_b64 exec, 1\n  global_store_dwordx2 v{vTMP+8}, v[{vTMP+10}:{vTMP+11}], s[{sWS}:{sWS+1}] sc1\n  s_mov_b64 exec, -1")
    A(f"{l}:")
signal()
consume_qk(st, vQB, vS + 1)
softmax(2)
for k in range(2):
    consume_pv(st, vP + k, k == 0)
store_partial_lds(LO2, LML2)
stamp(4)
A("  s_waitcnt lgkmcnt(0)\n  s_barrier")
combine(LO2, LML2, 8, True)

A("L_tail:")
if "notail" in opts: A("  s_branch L_end")
A(f"  v_cvt_pk_bf16_f32 v{vP}, v{vTMP+39}, v{vTMP+39}\n  v_cvt_pk_bf16_f32 v{vP+1}, v{vTMP+40}, v{vTMP+40}")
A(f"  ds_read_b128 {slot(15)}, v{vT} offset:{LWO + 1024*15}")
A("  s_nop 0")
build_aop(vAOP, vP, 0, vP + 1)
for i in range(16):
    if i < 15: build_aop(vAOP + 4 * ((i + 1) & 1), vP, i + 1, vP + 1)
    else: A("  s_waitcnt lgkmcnt(0)")
    c = "0" if i == 0 else vr(vACC)
    A(f"  v_mfma_f32_16x16x32_bf16 {vr(vACC)}, {vr(vAOP + 4 * (i & 1))}, {slot(i)}, {c}")
A(f"  s_lshl_b32 s{sT0}, s{sB}, 1\n  s_add_u32 s{sT0}, s{sT0}, s{sHALF}\n  s_lshl_b32 s{sT0}, s{sT0}, 5\n  s_add_u32 s{sT0}, s{sT0}, s{sH}\n  s_lshl_b32 s{sT0}, s{sT0}, 11")
A(f"  s_lshl_b32 s{sT1}, s{sW}, 8\n  s_add_u32 s{sT0}, s{sT0}, s{sT1}")
A(f"  v_lshlrev_b32 v{vTMP+8}, 5, v{vN}\n  v_lshl_add_u32 v{vTMP+8}, v{vG}, 4, v{vTMP+8}\n  v_add_u32 v{vTMP+8}, s{sT0}, v{vTMP+8}")
for b in range(4): A(f"  v_mov_b32 v{vTMP+b}, 0")
A("  s_nop 1")
for b in range(4): A(f"  v_permlane32_swap_b32 v{vACC+b}, v{vTMP+b}")
A("  s_nop 1")
for b in range(4): A(f"  v_add_f32_dpp v{vTMP+4+b}, v{vTMP+b}, v{vACC+b} row_shl:8 {DPPM}")
A(f"  v_mov_b32 v{vTMP+9}, 0x7fc00000")
for b in range(4):
    A(f"  v_cmp_eq_u32 vcc, -1, v{vTMP+4+b}\n  s_nop 1\n  v_cndmask_b32 v{vTMP+4+b}, v{vTMP+4+b}, v{vTMP+9}, vcc")
A("  s_mov_b32 exec_lo, 0x00ff00ff\n  s_mov_b32 exec_hi, 0")
A(f"  global_store_dwordx4 v{vTMP+8}, {vr(vTMP+4)}, s[{sWS}:{sWS+1}] sc1")
A("  s_mov_b64 exec, -1")
if "nofinal" in opts: A("  s_branch L_end")
A(f"  s_cmp_lg_u32 s{sW}, 0\n  s_cbranch_scc1 L_end")
stamp(5)
A(f"  s_lshl_b32 s{sT0}, s{sHALF}, 5\n  s_add_u32 s{sT0}, s{sT0}, s{sH}")
A(f"  s_lshl_b32 s{sT1}, s{sB}, 17\n  s_lshl_b32 s{sT2}, s{sT0}, 5\n  s_add_u32 s{sT1}, s{sT1}, s{sT2}")
A(f"  v_lshrrev_b32 v{vT}, 3, v{vLANE}\n  v_lshlrev_b32 v{vT}, 14, v{vT}\n  v_and_b32 v{vTMP+21}, 7, v{vLANE}\n  v_lshl_add_u32 v{vT}, v{vTMP+21}, 2, v{vT}\n  v_add_u32 v{vT}, s{sT1}, v{vT}")
for k in range(1, 4): A(f"  v_add_u32 v{vTMP+21+k}, {4096*k}, v{vT}")
lf = lab("fpoll")
A(f"  s_mov_b32 s{sCNT}, 0")
A(f"{lf}:")
for k in range(8):
    a = vT if k < 2 else vTMP + 21 + k // 2
    A(f"  global_load_dword v{vTMP+12+k}, v{a}, s[{sWS}:{sWS+1}] offset:{2048*(k&1)} sc1")
A("  s_waitcnt vmcnt(0)")
A(f"  v_max3_u32 v{vTMP+20}, v{vTMP+12}, v{vTMP+13}, v{vTMP+14}\n  v_max3_u32 v{vTMP+20}, v{vTMP+20}, v{vTMP+15}, v{vTMP+16}")
A(f"  v_max3_u32 v{vTMP+20}, v{vTMP+20}, v{vTMP+17}, v{vTMP+18}\n  v_max_u32 v{vTMP+20}, v{vTMP+20}, v{vTMP+19}")
A(f"  v_cmp_eq_u32 vcc, -1, v{vTMP+20}")
A(f"  s_add_u32 s{sCNT}, s{sCNT}, 1\n  s_cmp_gt_u32 s{sCNT}, 0x200000\n  s_cbranch_scc1 {lf}x")
A(f"  s_and_b64 exec, exec, vcc\n  s_cbranch_execnz {lf}")
A(f"{lf}x:")
A("  s_mov_b64 exec, -1")
t = vTMP
A(f"  v_add_f32 v{t}, v{t+12}, v{t+13}\n  v_add_f32 v{t+1}, v{t+14}, v{t+15}\n  v_add_f32 v{t+2}, v{t+16}, v{t+17}\n  v_add_f32 v{t+3}, v{t+18}, v{t+19}")
A(f"  v_add_f32 v{t}, v{t}, v{t+1}\n  v_add_f32 v{t+2}, v{t+2}, v{t+3}\n  v_add_f32 v{t}, v{t}, v{t+2}")
A(f"  s_mov_b32 s{sEX}, 0\n  s_mov_b32 s{sEX+1}, -1")
A(f"  v_add_f32_dpp v{t}, v{t}, v{t} row_ror:8 {DPPM}")
A(f"  v_cndmask_b32 v{t+4}, v{vGATE}, v{vOMG}, s[{sEX}:{sEX+1}]")
A(f"  v_mov_b32 v{t+1}, v{t}\n  s_nop 1\n  v_permlane16_swap_b32 v{t}, v{t+1}\n  s_nop 1\n  v_add_f32 v{t}, v{t}, v{t+1}")
round_bf16([t])
A(f"  v_mul_f32 v{t}, v{t+4}, v{t}")
round_bf16([t])
A(f"  v_mov_b32 v{t+1}, v{t}\n  s_nop 1\n  v_permlane32_swap_b32 v{t}, v{t+1}\n  s_nop 1\n  v_add_f32 v{t}, v{t}, v{t+1}")
A(f"  v_cvt_pk_bf16_f32 v{t}, v{t}, v{t}")
A(f"  s_lshl_b32 s{sT1}, s{sB}, 10\n  s_lshl_b32 s{sT0}, s{sT0}, 4\n  s_add_u32 s{sT0}, s{sT0}, s{sT1}")
A(f"  v_lshlrev_b32 v{vT}, 1, v{vLANE}\n  v_add_u32 v{vT}, s{sT0}, v{vT}")
A("  s_mov_b64 exec, 0xff")
A(f"  global_store_short v{vT}, v{t}, s[{sOUT}:{sOUT+1}]")
if STAMP:
    A("  s_mov_b64 exec, -1")
    stamp(6, True)
A("L_end:\n  s_endpgm")

kernels = [(KN, NVGPR, 96)]
if STAMP:
    A(".globl agg_kernel\n.p2align 8\n.type agg_kernel,@function\nagg_kernel:")
    A("  s_cmp_lg_u32 s2, 0\n  s_cbranch_scc1 L_end2")
    A("  s_load_dwordx4 s[20:23], s[0:1], 96")
    if "xcd" in opts:
        A(f"  v_lshlrev_b32 v1, 5, v0\n  v_add_u32 v1, {WST}, v1")
        A("  s_waitcnt lgkmcnt(0)")
        for k in range(4):
            A(f"  global_load_dword v{8+k}, v1, s[22:23] offset:{20 + 2048*(k&1)}")
            A(f"  global_load_dword v{12+k}, v1, s[22:23] offset:{2048*(k&1)}")
            if k == 1: A("  v_add_u32 v1, 0x1000, v1")
        A("  s_waitcnt vmcnt(0)")
        A("  v_min_u32 v40, v12, v13\n  v_min3_u32 v40, v40, v14, v15")
        wave_reduce("v_min_u32", 40, 24)
        A("  v_max_u32 v8, v8, v9\n  v_max_u32 v10, v10, v11")
        for r in (8, 10):
            A(f"  s_nop 1\n  v_max_u32_dpp v{r}, v{r}, v{r} row_ror:8 {DPPM}")
            for sw in ("v_permlane16_swap_b32", "v_permlane32_swap_b32"):
                A(f"  v_mov_b32 v20, v{r}\n  s_nop 1\n  {sw} v{r}, v20\n  s_nop 1\n  v_max_u32 v{r}, v{r}, v20")
            A(f"  v_subrev_u32 v{r}, s24, v{r}")
        A("  v_lshlrev_b32 v1, 2, v0\n  s_mov_b64 exec, 0xff")
        A("  global_store_dword v1, v8, s[20:21]\n  global_store_dword v1, v10, s[20:21] offset:32")
    else:
        A(f"  v_lshlrev_b32 v1, 7, v0\n  v_add_u32 v1, {WST}, v1")
        A("  s_waitcnt lgkmcnt(0)")
        for k in range(8):
            A(f"  global_load_dwordx4 v[{8+4*k}:{11+4*k}], v1, s[22:23] offset:{16*k}")
        A("  s_waitcnt vmcnt(0)")
        for k in range(8):
            A(f"  v_min_u32 v40, v{8+k}, v{16+k}\n  v_min3_u32 v40, v40, v{24+k}, v{32+k}")
            A(f"  v_max_u32 v41, v{8+k}, v{16+k}\n  v_max3_u32 v41, v41, v{24+k}, v{32+k}")
            wave_reduce("v_min_u32", 40, 24)
            wave_reduce("v_max_u32", 41, 25)
            A(f"  v_mov_b32 v42, s24\n  v_mov_b32 v43, s25\n  v_mov_b32 v44, {8*k}")
            A("  s_mov_b64 exec, 1\n  global_store_dwordx2 v44, v[42:43], s[20:21]\n  s_mov_b64 exec, -1")
    A("L_end2:\n  s_endpgm")
    kernels.append(("agg_kernel", 48, 32))
A('.section .rodata,"a"')
for name, nv, ns in kernels:
    A(f""".p2align 6
.amdhsa_kernel {name}
  .amdhsa_next_free_vgpr {nv}
  .amdhsa_next_free_sgpr {ns}
  .amdhsa_accum_offset {(nv+3)//4*4}
  .amdhsa_group_segment_fixed_size 0
  .amdhsa_kernarg_size 112
  .amdhsa_user_sgpr_count 2
  .amdhsa_user_sgpr_kernarg_segment_ptr 1
  .amdhsa_system_sgpr_workgroup_id_x 1
.end_amdhsa_kernel""")
open(out, "w").write("\n".join(L) + "\n")
```

```python
import sys
out = sys.argv[1]
opts = sys.argv[2:]
STAMP = "stamp" in opts or "qstamp" in opts
QST = "qstamp" in opts
NH = 1
WIN = 4
for o in opts:
    if o.startswith("win"): WIN = int(o[3:])
PRE = 2
for o in opts:
    if o.startswith("pre"): PRE = int(o[3:])
KPOL = "nt"
L = []
def A(s): L.append(s)
KN = "gated_mix__mha_block_cached__sliding_block_cached__decode_kernel"

for line in open("gated_mix__mha_block_cached__sliding_block_cached__decode.s.ref").read().split("\n"):
    if line.startswith(";") and "@launch" not in line:
        A(line)
LWO = 0
LQP = 131072
LQ = LQP + 16384
LO1 = LQ + 512
LML1 = LO1 + 9 * 512
LO2 = LML1 + 128
LML2 = LO2 + 9 * 512
LFLAG = LML2 + 128
LDS_BYTES = LFLAG + 64
assert LDS_BYTES <= 163840
if STAMP:
    A(f"; @launch kernel={KN} grid=(256,1,1) block=(512,1,1) lds={LDS_BYTES}")
    A("; @launch kernel=agg_kernel grid=(1,1,1) block=(64,1,1) lds=0")
else:
    A(f"; @launch grid=(256,1,1) block=(512,1,1) lds={LDS_BYTES}")
A('.amdgcn_target "amdgcn-amd-amdhsa--gfx950"\n.text')

LOG2E = 0x3fb8aa3b
SCALE = 0x3db504f3
WY, WQP, WPX, WST = 0, 0x80000, 0x100000, 0x200000
WFQ, WFP, WFF = 0x140000, 0x150000, 0x160000

class Fifo:
    def __init__(self): self.q = []; self.total = 0
    def issue(self, tag): self.q.append(tag); self.total += 1
    def wait(self, tag):
        if tag not in self.q: return
        idx = self.q.index(tag)
        n = len(self.q) - 1 - idx
        assert n <= 63
        A(f"  s_waitcnt vmcnt({n})")
        self.q = self.q[idx + 1:]
    def copy(self):
        f = Fifo(); f.q = list(self.q); f.total = self.total; return f
F = Fifo()

vLANE, vKOFF, vLOFF, vWQOFF, vWOOFF = 1, 2, 3, 4, 5
vMASK = 6
vN, vG = 10, 11
vLOG2E, vSCALE = 12, 13
vT = 14
vGATE, vOMG = 15, 0
vQA, vQB = 16, 32
vD = 48
vS = 64
vP = 69
vAOP = 76
vACC = 84
vACC2 = 88
vTMP = 92
RING = 140
NSLOT = 16 * NH
NVGPR = RING + 4 * NSLOT
def slot(i): return f"v[{RING+4*i}:{RING+4*i+3}]"
def vr(b, n=4): return f"v[{b}:{b+n-1}]"

sW = 3
sX, sAK, sAV, sAWQ, sAWO = 8, 10, 12, 14, 16
sGW, sOUT = 4, 6
sBK, sBV, sBWQ, sBWO = 20, 22, 24, 26
sDBG, sWS = 28, 30
sKA, sVA, sKB, sVB, sWQ, sWO = 32, 34, 36, 38, 40, 42
sM1, sM2, sM3 = 44, 46, 48
sC0 = 50
sU = 58
sH, sB, sHALF, sBH = 60, 61, 62, 63
sT0, sT1, sT2, sT3 = 64, 65, 66, 67
sMX, sL = 68, 69
sEX = 70
sST = 72
sCNT = 78
sTAG = 79

DPPM = "row_mask:0xf bank_mask:0xf"
uid = [0]
def lab(p):
    uid[0] += 1
    return f"L_{p}{uid[0]}"

def qs(k):
    if QST: A(f"  s_memrealtime s[{80+2*k}:{81+2*k}]")
def qs_flush(n):
    if not QST: return
    A("  s_waitcnt lgkmcnt(0)")
    A(f"  s_mov_b64 exec, 1")
    A(f"  s_lshl_b32 s{sST+1}, s2, 5\n  s_add_u32 s{sST+1}, s{sST+1}, {WST}")
    A(f"  v_mov_b32 v{vTMP+47}, s{sST+1}")
    A(f"  v_mov_b32 v{vTMP+46}, s{sST+4}\n  global_store_dword v{vTMP+47}, v{vTMP+46}, s[{sWS}:{sWS+1}]")
    for k in range(n):
        A(f"  v_mov_b32 v{vTMP+46}, s{80+2*k}\n  global_store_dword v{vTMP+47}, v{vTMP+46}, s[{sWS}:{sWS+1}] offset:{4*(k+1)}")
    A(f"  s_mov_b64 exec, -1")
def stamp(k, drain=False):
    if not STAMP or QST: return
    l = lab("st")
    A(f"  s_cmp_lg_u32 s{sW}, 0\n  s_cbranch_scc1 {l}")
    if drain: A("  s_waitcnt vmcnt(0)")
    A(f"  s_memrealtime s[{sST}:{sST+1}]\n  s_waitcnt lgkmcnt(0)")
    if k == 0: A(f"  s_mov_b32 s{sST}, s{sST+4}")
    A(f"  s_mov_b64 s[{sST+2}:{sST+3}], exec\n  s_mov_b64 exec, 1")
    A(f"  s_lshl_b32 s{sST+1}, s2, 5\n  s_add_u32 s{sST+1}, s{sST+1}, {WST + 4*k}")
    A(f"  v_mov_b32 v{vTMP+46}, s{sST}\n  v_mov_b32 v{vTMP+47}, s{sST+1}")
    A(f"  global_store_dword v{vTMP+47}, v{vTMP+46}, s[{sWS}:{sWS+1}]")
    if k == 0:
        for kk in range(1, 8):
            A(f"  global_store_dword v{vTMP+47}, v{vTMP+46}, s[{sWS}:{sWS+1}] offset:{4*kk}")
    A(f"  s_mov_b64 exec, s[{sST+2}:{sST+3}]")
    A(f"{l}:")

A(f".globl {KN}\n.p2align 8\n.type {KN},@function\n{KN}:")
A("  s_cmp_ge_u32 s2, 256\n  s_cbranch_scc1 L_end")
if STAMP: A(f"  s_memrealtime s[{sST+4}:{sST+5}]")
A("  s_load_dwordx8 s[8:15], s[0:1], 0")
A("  s_load_dwordx2 s[16:17], s[0:1], 32")
A("  s_load_dwordx8 s[20:27], s[0:1], 48")
A("  s_load_dwordx4 s[4:7], s[0:1], 80")
A("  s_load_dwordx4 s[28:31], s[0:1], 96")
A(f"  v_lshrrev_b32 v{vT}, 6, v0")
A(f"  v_and_b32 v{vLANE}, 63, v0")
A(f"  v_readfirstlane_b32 s{sW}, v{vT}")
A(f"  v_and_b32 v{vN}, 15, v{vLANE}")
A(f"  v_lshrrev_b32 v{vG}, 4, v{vLANE}")
A(f"  v_bfe_u32 v{vT}, v{vLANE}, 2, 2")
A(f"  v_lshlrev_b32 v{vKOFF}, 8, v{vT}")
A(f"  v_lshl_add_u32 v{vKOFF}, v{vG}, 6, v{vKOFF}")
A(f"  v_and_b32 v{vT}, 3, v{vLANE}")
A(f"  v_lshl_add_u32 v{vKOFF}, v{vT}, 4, v{vKOFF}")
A(f"  v_lshlrev_b32 v{vLOFF}, 4, v{vLANE}")
A(f"  v_lshlrev_b32 v{vWQOFF}, 13, v{vG}")
A(f"  v_lshl_add_u32 v{vWQOFF}, v{vN}, 4, v{vWQOFF}")
A(f"  v_lshrrev_b32 v{vT}, 3, v{vN}")
A(f"  v_lshl_add_u32 v{vT}, v{vT}, 2, v{vG}")
A(f"  v_lshlrev_b32 v{vWOOFF}, 10, v{vT}")
A(f"  v_and_b32 v{vT}, 7, v{vN}")
A(f"  v_lshl_add_u32 v{vWOOFF}, v{vT}, 4, v{vWOOFF}")
A(f"  s_and_b32 s{sH}, s2, 7\n  s_lshl_b32 s{sH}, s{sH}, 2\n  s_bfe_u32 s{sT0}, s2, 0x20003\n  s_add_u32 s{sH}, s{sH}, s{sT0}")
A(f"  s_bfe_u32 s{sB}, s2, 0x20005")
A(f"  s_lshr_b32 s{sHALF}, s2, 7")
A(f"  s_lshl_b32 s{sBH}, s{sB}, 5\n  s_add_u32 s{sBH}, s{sBH}, s{sH}")
A(f"  s_lshl_b32 s{sT0}, s{sBH}, 20\n  s_lshl_b32 s{sT1}, s{sW}, 13\n  s_add_u32 s{sT0}, s{sT0}, s{sT1}\n  s_add_u32 s{sT0}, s{sT0}, 4096")
A(f"  s_mul_i32 s{sT1}, s{sHALF}, {2560*256}\n  s_add_u32 s{sT1}, s{sT1}, s{sT0}      ; A off")
A(f"  s_add_u32 s{sT2}, s{sT0}, {3072*256}    ; B off")
A(f"  s_lshl_b32 s{sT3}, s{sB}, 8\n  s_lshl_b32 s{sT0}, s{sW}, 5\n  s_add_u32 s{sT3}, s{sT3}, s{sT0}")
A(f"  v_lshrrev_b32 v{vT}, 3, v{vN}\n  v_lshlrev_b32 v{vT}, 10, v{vT}\n  v_lshl_add_u32 v{vT}, v{vG}, 1, v{vT}\n  v_add_u32 v{vT}, s{sT3}, v{vT}")
A("  s_waitcnt lgkmcnt(0)")
ltag = lab("tag")
A(f"  s_or_b32 s92, s{sB}, s{sHALF}\n  s_or_b32 s92, s92, s{sW}\n  s_cmp_lg_u32 s92, 0\n  s_cbranch_scc1 {ltag}")
A(f"  s_memrealtime s[92:93]\n  s_waitcnt lgkmcnt(0)\n  s_or_b32 s92, s92, 1")
A(f"  s_lshl_b32 s93, s{sH}, 2\n  v_mov_b32 v{vD}, s93\n  v_mov_b32 v{vD+1}, s92")
A(f"  s_mov_b64 exec, 1\n  global_store_dword v{vD}, v{vD+1}, s[{sDBG}:{sDBG+1}] sc1\n  s_mov_b64 exec, -1")
A(f"{ltag}:")
vXW = vTMP + 32
for p in range(2):
    for i in range(4):
        A(f"  global_load_ushort v{vXW+4*p+i}, v{vT}, s[{sX}:{sX+1}] offset:{2048*p + 8*i}")
        F.issue(("xw", p, i))
def add64(d, base, off):
    A(f"  s_add_u32 s{d}, s{base}, s{off}\n  s_addc_u32 s{d+1}, s{base+1}, 0")
A(f"  s_cmp_eq_u32 s{sHALF}, 0")
A(f"  s_cselect_b32 s{sWQ}, s{sAWQ}, s{sBWQ}\n  s_cselect_b32 s{sWQ+1}, s{sAWQ+1}, s{sBWQ+1}")
A(f"  s_cselect_b32 s{sWO}, s{sAWO}, s{sBWO}\n  s_cselect_b32 s{sWO+1}, s{sAWO+1}, s{sBWO+1}")
A(f"  s_lshl_b32 s{sT0}, s{sT3}, 12\n  s_lshl_b32 s{sT3}, s{sH}, 8\n  s_add_u32 s{sT0}, s{sT0}, s{sT3}")
add64(sWQ, sWQ, sT0)
vWQ = vTMP
for i in range(4):
    A(f"  global_load_dwordx4 {vr(vWQ+4*i)}, v{vWQOFF}, s[{sWQ}:{sWQ+1}] nt")
    F.issue(("wq", i))
    if i < 3: A(f"  s_add_u32 s{sWQ}, s{sWQ}, 0x8000\n  s_addc_u32 s{sWQ+1}, s{sWQ+1}, 0")
add64(sKA, sAK, sT1); add64(sVA, sAV, sT1); add64(sKB, sBK, sT2); add64(sVB, sBV, sT2)
A(f"  s_lshl_b32 s{sT0}, s{sH}, 17\n  s_lshl_b32 s{sT1}, s{sW}, 7\n  s_add_u32 s{sT0}, s{sT0}, s{sT1}")
add64(sWO, sWO, sT0)

class Seg:
    def __init__(self, name, sbase, kind):
        self.name, self.sbase, self.kind, self.n = name, sbase, kind, 0
    def load(self, sl):
        j = self.n; self.n += 1
        tag = (self.name, j)
        voff = vKOFF if self.kind == "k" else vLOFF
        i = j % 8
        A(f"  global_load_dwordx4 {slot(sl)}, v{voff}, s[{self.sbase}:{self.sbase+1}] offset:{-4096+1024*i} {KPOL}")
        if i == 7:
            A(f"  s_add_u32 s{self.sbase}, s{self.sbase}, 0x10000\n  s_addc_u32 s{self.sbase+1}, s{self.sbase+1}, 0")
        F.issue(tag)
        return tag

NODMA = "nodma" in opts
DMAPOL = "nt"
for o in opts:
    if o.startswith("dmapol="): DMAPOL = o[7:].replace("none", "").replace("+", " ")
DMAFIRST = "dmafirst" in opts
DMALATE = "dmaearly" not in opts
DWIN = WIN
for o in opts:
    if o.startswith("dwin"): DWIN = int(o[4:])
def prefetch_rest():
    A(f"  s_lshl_b32 s{sT0}, s{sW}, 14")
    def ring():
        for t in range(PRE, NSLOT):
            if WIN < 32: A(f"  s_waitcnt vmcnt({WIN-1})")
            tags[t] = KA.load(t)
    def dma():
        if NODMA: return
        for i in range(16):
            A(f"  s_add_u32 m0, s{sT0}, {LWO + 1024*i}")
            if DWIN < 32: A(f"  s_waitcnt vmcnt({DWIN-1})")
            else: A("  s_nop 0")
            A(f"  global_load_lds_dwordx4 v{vWOOFF}, s[{sWO}:{sWO+1}] {DMAPOL}")
            F.issue(("dma", i))
            if i < 15: A(f"  s_add_u32 s{sWO}, s{sWO}, 0x2000\n  s_addc_u32 s{sWO+1}, s{sWO+1}, 0")
    if DMALATE: ring()
    elif DMAFIRST: dma(); ring()
    else: ring(); dma()
def dma_one(i):
    A(f"  s_lshl_b32 s{sT0}, s{sW}, 14\n  s_add_u32 m0, s{sT0}, {LWO + 1024*i}")
    A("  s_nop 0")
    A(f"  global_load_lds_dwordx4 v{vWOOFF}, s[{sWO}:{sWO+1}] {DMAPOL}")
    F.issue(("dma", i))
    if i < 15: A(f"  s_add_u32 s{sWO}, s{sWO}, 0x2000\n  s_addc_u32 s{sWO+1}, s{sWO+1}, 0")

KA, VA, KB, VB = Seg("KA", sKA, "k"), Seg("VA", sVA, "v"), Seg("KB", sKB, "k"), Seg("VB", sVB, "v")
tags = {}
for t in range(PRE):
    tags[t] = KA.load(t)
A(f"  v_mov_b32 v{vLOG2E}, {LOG2E:#x}\n  v_mov_b32 v{vSCALE}, {SCALE:#x}")
A(f"  v_and_b32 v{vT}, 1, v{vN}\n  v_lshlrev_b32 v{vT}, 4, v{vT}")
A(f"  v_mov_b32 v{vD}, 0xffff\n  v_lshlrev_b32 v{vD}, v{vT}, v{vD}")
A(f"  v_bfe_u32 v{vT}, v{vN}, 1, 2")
for w in range(4):
    A(f"  v_cmp_eq_u32 vcc, {w}, v{vT}\n  s_nop 1\n  v_cndmask_b32 v{vMASK+w}, 0, v{vD}, vcc")
for t, s in ((1, sM1), (2, sM2), (3, sM3)):
    m = 0x11111111 << t
    A(f"  s_mov_b32 s{s}, {m:#x}\n  s_mov_b32 s{s+1}, {m:#x}")
for i in range(4):
    m = 0x000f000f << (4 * i)
    A(f"  s_mov_b32 s{sC0+2*i}, {m:#x}\n  s_mov_b32 s{sC0+2*i+1}, {m:#x}")
A(f"  s_mov_b32 s{sU}, 0xff00ff00\n  s_mov_b32 s{sU+1}, 0xff00ff00")
F.wait(("wq", 3))
qs(0)
for k in range(8):
    A(f"  v_lshl_or_b32 v{vXW+k}, v{vXW+k}, 16, v{vXW+k}")
for p in range(2):
    acc = vACC if p == 0 else vACC2
    for i in range(4):
        ao = vAOP + 4 * (i & 1)
        for w in range(4):
            A(f"  v_and_b32 v{ao+w}, v{vXW+4*p+i}, v{vMASK+w}")
        A("  s_nop 1")
        c = "0" if i == 0 else vr(acc)
        A(f"  v_mfma_f32_16x16x32_bf16 {vr(acc)}, {vr(ao)}, {vr(vWQ+4*i)}, {c}")
A(f"  v_lshrrev_b32 v{vT}, 1, v{vG}\n  v_lshlrev_b32 v{vT}, 9, v{vT}\n  v_lshl_add_u32 v{vT}, v{vN}, 5, v{vT}")
A(f"  v_and_b32 v{vD}, 1, v{vG}\n  v_lshl_add_u32 v{vT}, v{vD}, 4, v{vT}")
A(f"  s_lshl_b32 s{sT0}, s{sW}, 11\n  s_add_u32 s{sT0}, s{sT0}, {LQP}\n  v_add_u32 v{vT}, s{sT0}, v{vT}")
A("  s_nop 4")
A(f"  ds_write_b128 v{vT}, {vr(vACC)}\n  ds_write_b128 v{vT}, {vr(vACC2)} offset:1024")
A("  s_waitcnt lgkmcnt(0)\n  s_barrier")
lq = lab("qdone")
lpf = lab("pf")
A(f"  s_cmp_lg_u32 s{sW}, 0\n  s_cbranch_scc1 {lpf}")
qs(1)
A(f"  v_add_u32 v{vT}, {LQP}, v{vLOFF}")
for hh in range(2):
    for w in range(8):
        A(f"  ds_read_b128 {vr(vTMP+4*w)}, v{vT} offset:{w*2048 + hh*1024}")
    A("  s_waitcnt lgkmcnt(0)")
    d = vACC if hh == 0 else vACC2
    for e in range(4):
        A(f"  v_add_f32 v{d+e}, v{vTMP+e}, v{vTMP+4+e}")
        for w in range(2, 8):
            A(f"  v_add_f32 v{d+e}, v{d+e}, v{vTMP+4*w+e}")
A(f"  s_lshl_b32 s{sT0}, s{sB}, 1\n  s_add_u32 s{sT0}, s{sT0}, s{sHALF}\n  s_lshl_b32 s{sT0}, s{sT0}, 5\n  s_add_u32 s{sT0}, s{sT0}, s{sH}\n  s_lshl_b32 s{sT0}, s{sT0}, 11")
A(f"  v_add_u32 v{vT}, s{sT0}, v{vLOFF}")
for e in range(4): A(f"  v_mov_b32 v{vD+8+e}, -1")
A(f"  global_store_dwordx4 v{vT}, {vr(vD+8)}, s[{sWS}:{sWS+1}] sc1")
A(f"  global_store_dwordx4 v{vT}, {vr(vD+8)}, s[{sWS}:{sWS+1}] offset:1024 sc1")
A(f"  s_lshl_b32 s{sT0}, s{sH}, 1\n  s_add_u32 s{sT0}, s{sT0}, s{sHALF}\n  s_lshl_b32 s{sT0}, s{sT0}, 2\n  s_add_u32 s{sT0}, s{sT0}, s{sB}\n  s_lshl_b32 s{sT0}, s{sT0}, 11\n  s_add_u32 s{sT0}, s{sT0}, {WQP}")
A(f"  v_add_u32 v{vT}, s{sT0}, v{vLOFF}")
A(f"  global_store_dwordx4 v{vT}, {vr(vACC)}, s[{sWS}:{sWS+1}] sc1")
A(f"  global_store_dwordx4 v{vT}, {vr(vACC2)}, s[{sWS}:{sWS+1}] offset:1024 sc1")
A(f"  s_lshl_b32 s{sT1}, s{sH}, 2\n  v_mov_b32 v{vD}, s{sT1}")
lt = lab("tpoll")
A(f"  s_mov_b32 s{sCNT}, 0")
A(f"{lt}:")
A(f"  s_mov_b64 exec, 1\n  global_load_dword v{vD+1}, v{vD}, s[{sDBG}:{sDBG+1}] sc1\n  s_mov_b64 exec, -1")
A("  s_waitcnt vmcnt(0)")
A(f"  v_readfirstlane_b32 s{sTAG}, v{vD+1}")
A(f"  s_add_u32 s{sCNT}, s{sCNT}, 1\n  s_cmp_gt_u32 s{sCNT}, 0x200000\n  s_cbranch_scc1 {lt}x")
A(f"  s_cmp_eq_u32 s{sTAG}, 0\n  s_cbranch_scc1 {lt}")
A(f"{lt}x:")
qs(2)
A(f"  s_lshl_b32 s{sT0}, s{sHALF}, 2\n  s_add_u32 s{sT0}, s{sT0}, s{sB}\n  s_lshl_b32 s{sT0}, s{sT0}, 3\n  s_lshl_b32 s{sT1}, s{sH}, 8\n  s_add_u32 s{sT1}, s{sT1}, {WFQ}\n  s_add_u32 s{sT0}, s{sT0}, s{sT1}")
A(f"  v_mov_b32 v{vD+4}, s{sTAG}\n  v_not_b32 v{vD+5}, v{vD+4}\n  v_mov_b32 v{vD}, s{sT0}")
A(f"  s_mov_b64 exec, 1\n  global_store_dwordx2 v{vD}, v[{vD+4}:{vD+5}], s[{sWS}:{sWS+1}] sc1\n  s_mov_b64 exec, -1")
A(f"  v_lshlrev_b32 v{vD}, 3, v{vLANE}\n  v_add_u32 v{vD}, s{sT1}, v{vD}")
A(f"  v_lshrrev_b32 v{vT}, 5, v{vLANE}\n  v_lshlrev_b32 v{vT}, 13, v{vT}\n  v_and_b32 v{vD+2}, 31, v{vLANE}\n  v_lshl_add_u32 v{vT}, v{vD+2}, 4, v{vT}")
A(f"  s_lshl_b32 s{sT0}, s{sH}, 14\n  s_lshl_b32 s{sT2}, s{sB}, 9\n  s_add_u32 s{sT0}, s{sT0}, s{sT2}\n  s_add_u32 s{sT0}, s{sT0}, {WQP}")
A(f"  v_add_u32 v{vT}, s{sT0}, v{vT}")
A(f"  v_add_u32 v{vD+3}, 0x1000, v{vT}")
lp = lab("qpoll")
A(f"  s_mov_b32 s{sCNT}, 0")
A(f"  s_cmp_eq_u32 s{sHALF}, 0\n  s_cselect_b32 s{sT2}, 0xf, 0xff")
A(f"{lp}:")
A(f"  s_mov_b64 exec, 0xff\n  global_load_dwordx2 v[{vD+6}:{vD+7}], v{vD}, s[{sWS}:{sWS+1}] sc1")
A("  s_waitcnt vmcnt(0)")
A(f"  v_cmp_eq_u64 vcc, v[{vD+6}:{vD+7}], v[{vD+4}:{vD+5}]\n  s_mov_b64 exec, -1")
A(f"  s_and_b32 s{sT0}, vcc_lo, s{sT2}")
A(f"  s_add_u32 s{sCNT}, s{sCNT}, 1\n  s_cmp_gt_u32 s{sCNT}, 0x200000\n  s_cbranch_scc1 {lp}x")
if "noqwait" not in opts: A(f"  s_cmp_lg_u32 s{sT0}, s{sT2}\n  s_cbranch_scc1 {lp}")
A(f"{lp}x:")
qs(3)
for rq in range(4):
    if rq < 2: A(f"  global_load_dwordx4 {vr(vTMP+4*rq)}, v{vT}, s[{sWS}:{sWS+1}] offset:{2048*rq} sc1")
    else: A(f"  global_load_dwordx4 {vr(vTMP+4*rq)}, v{vD+3}, s[{sWS}:{sWS+1}] offset:{2048*(rq-2)} sc1")
A("  s_waitcnt vmcnt(0)")
qs(4)
for e in range(4):
    A(f"  v_add_f32 v{vTMP+e}, v{vTMP+e}, v{vTMP+4+e}\n  v_add_f32 v{vTMP+8+e}, v{vTMP+8+e}, v{vTMP+12+e}\n  v_add_f32 v{vTMP+e}, v{vTMP+e}, v{vTMP+8+e}")
A(f"  v_cvt_pk_bf16_f32 v{vTMP+4}, v{vTMP}, v{vTMP+1}\n  v_cvt_pk_bf16_f32 v{vTMP+5}, v{vTMP+2}, v{vTMP+3}")
A(f"  v_lshlrev_b32 v{vT}, 3, v{vLANE}")
A(f"  ds_write_b64 v{vT}, v[{vTMP+4}:{vTMP+5}] offset:{LQ}" if LQ < 65536 else
  f"  v_add_u32 v{vT}, {LQ}, v{vT}\n  ds_write_b64 v{vT}, v[{vTMP+4}:{vTMP+5}]")
A("  s_waitcnt lgkmcnt(0)")
stamp(0)
stamp(1)
A("  s_barrier")
stamp(7)
qs(5)
qs_flush(6)
A(f"{lpf}:")
prefetch_rest()
A(f"  s_cmp_eq_u32 s{sW}, 0\n  s_cbranch_scc1 {lq}")
A("  s_barrier")
A(f"{lq}:")

def wave_reduce(op, v, sdst):
    for c in ("row_ror:8", "row_ror:4", "row_ror:2", "row_ror:1"):
        A(f"  s_nop 1\n  {op}_dpp v{v}, v{v}, v{v} {c} {DPPM}")
    A(f"  s_nop 1\n  {op}_dpp v{v}, v{v}, v{v} row_bcast:15 row_mask:0xa bank_mask:0xf")
    A(f"  s_nop 1\n  {op}_dpp v{v}, v{v}, v{v} row_bcast:31 row_mask:0xc bank_mask:0xf")
    A(f"  s_nop 0\n  v_readlane_b32 s{sdst}, v{v}, 63\n  s_nop 1")
def round_bf16(regs):
    for r in regs:
        A(f"  v_cvt_pk_bf16_f32 v{r}, v{r}, v{r}\n  v_and_b32 v{r}, 0xffff0000, v{r}")

A(f"  v_and_b32 v{vT}, 3, v{vN}\n  v_lshl_add_u32 v{vT}, v{vG}, 2, v{vT}\n  v_lshlrev_b32 v{vT}, 4, v{vT}\n  v_add_u32 v{vT}, {LQ}, v{vT}")
A(f"  ds_read_b128 {vr(vTMP)}, v{vT}\n  ds_read_b128 {vr(vTMP+4)}, v{vT} offset:256")
A("  s_waitcnt lgkmcnt(0)")
for br, q in ((0, vQA), (1, vQB)):
    for i in range(4):
        for e in range(4):
            A(f"  v_cndmask_b32 v{q+4*i+e}, 0, v{vTMP+4*br+e}, s[{sC0+2*i}:{sC0+2*i+1}]")

def build_aop(dst, wreg, bc, two=None):
    if two is None:
        for w in range(4):
            A(f"  v_and_b32_dpp v{dst+w}, v{wreg}, v{vMASK+w} row_newbcast:{bc} {DPPM}")
    else:
        A(f"  v_mov_b32_dpp v{vTMP+44}, v{wreg} row_newbcast:{bc} {DPPM}")
        A(f"  v_mov_b32_dpp v{vTMP+45}, v{two} row_newbcast:{bc} {DPPM}")
        A(f"  v_cndmask_b32 v{vTMP+44}, v{vTMP+44}, v{vTMP+45}, s[{sU}:{sU+1}]")
        for w in range(4):
            A(f"  v_and_b32 v{dst+w}, v{vTMP+44}, v{vMASK+w}")

LAG = 0
for o in opts:
    if o.startswith("lag"): LAG = int(o[3:])
pend = []
def do_refill(sl, refill):
    if refill is not None: pend.append((sl, refill))
    if pend and (len(pend) > LAG or refill is None):
        s2, r2 = pend.pop(0)
        tags[s2] = r2.load(s2)
        return True
    return False

class Stream:
    def __init__(self, seq):
        self.seq = seq; self.k = 0
    def next(self):
        k = self.k; self.k += 1
        half = k % NH
        refill = self.seq[k + NH] if k + NH < len(self.seq) else None
        return half, refill

def consume_pv(st, preg, first_zero, hook=None):
    half, refill = st.next()
    bc = lambda j: (j & 3) * 4 + (j >> 2)
    A("  s_nop 1")
    build_aop(vAOP, preg, bc(0))
    for i in range(16):
        sl = half * 16 + i
        if i < 15: build_aop(vAOP + 4 * ((i + 1) & 1), preg, bc(i + 1))
        else: A("  s_nop 0")
        F.wait(tags[sl])
        c = "0" if (first_zero and i == 0) else vr(vACC)
        A(f"  v_mfma_f32_16x16x32_bf16 {vr(vACC)}, {vr(vAOP + 4 * (i & 1))}, {slot(sl)}, {c}")
        assert not any(p[0] == (sl + 1) % 16 for p in pend[:0])
        do_refill(sl, refill)
        if refill is None and i > 0:
            if i == 1: A(f"  s_lshl_b32 s{sT0}, s{sW}, 14\n  v_add_u32 v{vT}, s{sT0}, v{vLOFF}")
            A(f"  ds_read_b128 {slot(sl-1)}, v{vT} offset:{LWO + 1024*(i-1)}")
        if hook and i == 0: hook()

def consume_qk(st, q, sdst, hook=None):
    first = st.k == 0
    half, refill = st.next()
    for j in range(16):
        sl = half * 16 + j
        t, i = j >> 2, j & 3
        F.wait(tags[sl])
        c = "0" if i == 0 else vr(vD + 4 * t)
        A(f"  v_mfma_f32_16x16x32_bf16 {vr(vD+4*t)}, {slot(sl)}, {vr(q+4*i)}, {c}")
        do_refill(sl, refill)
        if hook and j == 0: hook()
        if first and DMALATE: dma_one(j)
    A("  s_nop 7")
    for t in range(4):
        d = vTMP + t
        A(f"  v_mov_b32_dpp v{d}, v{vD+4*t} quad_perm:[0,0,0,0] {DPPM}")
        for s in range(1, 4):
            A(f"  v_add_f32_dpp v{d}, v{vD+4*t+s}, v{d} quad_perm:[{s},{s},{s},{s}] {DPPM}")
    A(f"  v_cndmask_b32 v{sdst}, v{vTMP}, v{vTMP+1}, s[{sM1}:{sM1+1}]")
    A(f"  v_cndmask_b32 v{sdst}, v{sdst}, v{vTMP+2}, s[{sM2}:{sM2+1}]")
    A(f"  v_cndmask_b32 v{sdst}, v{sdst}, v{vTMP+3}, s[{sM3}:{sM3+1}]")

def softmax(nb):
    S = [vS + k for k in range(nb)]
    round_bf16(S)
    for r in S: A(f"  v_mul_f32 v{r}, v{r}, v{vSCALE}")
    round_bf16(S)
    for r in S: A(f"  v_mul_f32 v{r}, v{r}, v{vLOG2E}")
    t = vTMP
    A(f"  v_mov_b32 v{t}, v{S[0]}")
    for r in S[1:]: A(f"  v_max_f32 v{t}, v{t}, v{r}")
    wave_reduce("v_max_f32", t, sMX)
    for r in S: A(f"  v_subrev_f32 v{r}, s{sMX}, v{r}")
    for r in S: A(f"  v_exp_f32 v{r}, v{r}")
    A("  s_nop 0")
    for k, r in enumerate(S): A(f"  v_cvt_pk_bf16_f32 v{vP+k}, v{r}, v{r}")
    A(f"  v_mov_b32 v{t}, v{S[0]}")
    for r in S[1:]: A(f"  v_add_f32 v{t}, v{t}, v{r}")
    wave_reduce("v_add_f32", t, sL)

def store_partial_lds(base, mlbase):
    A(f"  v_and_b32 v{vTMP}, 1, v{vG}\n  v_lshlrev_b32 v{vTMP}, 4, v{vTMP}\n  v_lshl_add_u32 v{vTMP}, v{vN}, 5, v{vTMP}")
    A(f"  s_lshl_b32 s{sT0}, s{sW}, 9\n  s_add_u32 s{sT0}, s{sT0}, {base}\n  v_add_u32 v{vTMP}, s{sT0}, v{vTMP}")
    A(f"  s_lshl_b32 s{sT0}, s{sW}, 3\n  s_add_u32 s{sT0}, s{sT0}, {mlbase}")
    A(f"  v_mov_b32 v{vTMP+1}, s{sT0}\n  v_mov_b32 v{vTMP+2}, s{sMX}\n  v_mov_b32 v{vTMP+3}, s{sL}")
    A(f"  ds_write_b64 v{vTMP+1}, v[{vTMP+2}:{vTMP+3}]")
    A("  s_nop 3")
    A(f"  ds_write_b128 v{vTMP}, {vr(vACC)}")

def combine(base, mlbase, nsl, normalise):
    ml = vTMP
    ov = vTMP + 20
    a = vTMP + 38
    A(f"  v_mov_b32 v{a}, {mlbase}")
    for k in range((nsl + 1) // 2):
        A(f"  ds_read_b128 {vr(ml+4*k)}, v{a} offset:{16*k}")
    A(f"  v_lshl_add_u32 v{a+1}, v{vN}, 3, v{vG}\n  v_lshlrev_b32 v{a+1}, 2, v{a+1}\n  v_add_u32 v{a+1}, {base}, v{a+1}")
    for w in range(nsl):
        A(f"  ds_read_b32 v{ov+2*w}, v{a+1} offset:{w*512}\n  ds_read_b32 v{ov+2*w+1}, v{a+1} offset:{w*512 + 16}")
    A("  s_waitcnt lgkmcnt(0)")
    M, Lr = vTMP + 41, vTMP + 42
    A(f"  v_max_f32 v{M}, v{ml}, v{ml+2}")
    for w in range(2, nsl): A(f"  v_max_f32 v{M}, v{M}, v{ml+2*w}")
    for w in range(nsl): A(f"  v_sub_f32 v{ml+2*w}, v{ml+2*w}, v{M}")
    for w in range(nsl): A(f"  v_exp_f32 v{ml+2*w}, v{ml+2*w}")
    A("  s_nop 0")
    A(f"  v_mul_f32 v{Lr}, v{ml}, v{ml+1}")
    for w in range(1, nsl): A(f"  v_fmac_f32 v{Lr}, v{ml+2*w}, v{ml+2*w+1}")
    if normalise: A(f"  v_rcp_f32 v{a}, v{Lr}")
    A(f"  v_mul_f32 v{a+1}, v{ml}, v{ov}\n  v_mul_f32 v{a+2}, v{ml}, v{ov+1}")
    for w in range(1, nsl):
        A(f"  v_fmac_f32 v{a+1}, v{ml+2*w}, v{ov+2*w}\n  v_fmac_f32 v{a+2}, v{ml+2*w}, v{ov+2*w+1}")
    if normalise:
        A(f"  v_mul_f32 v{a+1}, v{a+1}, v{a}\n  v_mul_f32 v{a+2}, v{a+2}, v{a}")

def gate():
    A(f"  s_lshl_b32 s{sT0}, s{sB}, 10\n  v_add_u32 v{vT}, s{sT0}, v{vLOFF}")
    A(f"  global_load_dwordx4 {vr(vTMP+8)}, v{vT}, s[{sX}:{sX+1}]")
    F.issue("gx")
    A(f"  global_load_dwordx4 {vr(vTMP+12)}, v{vLOFF}, s[{sGW}:{sGW+1}]")
    F.issue("gw")
def gate2():
    F.wait("gw")
    t = vTMP
    A(f"  v_mov_b32 v{t+5}, 0")
    for e in range(4):
        A(f"  v_lshlrev_b32 v{t}, 16, v{t+8+e}\n  v_lshlrev_b32 v{t+1}, 16, v{t+12+e}\n  v_mul_f32 v{t}, v{t}, v{t+1}")
        A(f"  v_and_b32 v{t+2}, 0xffff0000, v{t+8+e}\n  v_and_b32 v{t+3}, 0xffff0000, v{t+12+e}\n  v_mul_f32 v{t+2}, v{t+2}, v{t+3}")
        A(f"  v_cvt_pk_bf16_f32 v{t}, v{t}, v{t+2}")
        A(f"  v_lshlrev_b32 v{t+1}, 16, v{t}\n  v_and_b32 v{t+2}, 0xffff0000, v{t}")
        A(f"  v_add_f32 v{t+5}, v{t+5}, v{t+1}\n  v_add_f32 v{t+5}, v{t+5}, v{t+2}")
    wave_reduce("v_add_f32", t + 5, sT0)
    A(f"  v_mov_b32 v{vGATE}, s{sT0}")
    round_bf16([vGATE])
    A(f"  v_mul_f32 v{vGATE}, v{vLOG2E}, v{vGATE}\n  v_exp_f32 v{vGATE}, -v{vGATE}\n  s_nop 0")
    A(f"  v_add_f32 v{vGATE}, 1.0, v{vGATE}\n  v_rcp_f32 v{vGATE}, v{vGATE}\n  s_nop 0")
    round_bf16([vGATE])
    A(f"  v_sub_f32 v{vOMG}, 1.0, v{vGATE}")
    round_bf16([vOMG])

VR = vTMP + 32
def v_addr():
    A(f"  v_and_b32 v{VR}, 31, v{vLANE}\n  v_lshlrev_b32 v{VR+1}, 8, v{VR}\n  v_lshlrev_b32 v{VR}, 2, v{VR}")
    A(f"  v_lshrrev_b32 v{VR+2}, 5, v{vLANE}\n  v_lshl_add_u32 v{VR+1}, v{VR+2}, 5, v{VR+1}")
    A(f"  s_lshl_b32 s{sT1}, s{sB}, 3\n  s_add_u32 s{sT1}, s{sT1}, {WFQ}\n  v_add_u32 v{VR+1}, s{sT1}, v{VR+1}")
def v_loads():
    A(f"  global_load_dword v{VR+2}, v{VR}, s[{sDBG}:{sDBG+1}] sc1")
    A(f"  global_load_dwordx2 v[{VR+4}:{VR+5}], v{VR+1}, s[{sWS}:{sWS+1}] sc1")
def v_issue():
    l = lab("vi")
    A(f"  s_cmp_lg_u32 s{sW}, 0\n  s_cbranch_scc1 {l}")
    v_addr(); v_loads()
    A(f"{l}:")
def v_check():
    l = lab("vc")
    A(f"  s_cmp_lg_u32 s{sW}, 0\n  s_cbranch_scc1 {l}")
    A(f"  s_mov_b32 s{sCNT}, 0")
    A(f"{l}a:")
    A(f"  v_not_b32 v{VR+3}, v{VR+2}")
    A(f"  v_cmp_eq_u64 vcc, v[{VR+4}:{VR+5}], v[{VR+2}:{VR+3}]")
    A(f"  v_cmp_ne_u32 s[{sEX}:{sEX+1}], 0, v{VR+2}")
    A(f"  s_and_b64 vcc, vcc, s[{sEX}:{sEX+1}]")
    A(f"  s_cmp_eq_u64 vcc, -1\n  s_cbranch_scc1 {l}")
    A(f"  s_add_u32 s{sCNT}, s{sCNT}, 1\n  s_cmp_gt_u32 s{sCNT}, 0x200000\n  s_cbranch_scc1 {l}")
    v_addr(); v_loads()
    A(f"  s_waitcnt vmcnt(0)\n  s_branch {l}a")
    A(f"{l}:")
A(f"  s_cmp_lg_u32 s{sHALF}, 0\n  s_cbranch_scc1 L_pathS")
F0, tags0 = F.copy(), dict(tags)
segn = (KA.n, VA.n, KB.n, VB.n)

st = Stream([KA] * 5 + [VA] * 5)
for k in range(5):
    if k == 1: gate()
    consume_qk(st, vQA, vS + k, v_issue if k == 2 else (v_check if k == 4 else None))
    if k == 2: gate2()
softmax(5)
stamp(2)
PXR = vTMP + 24
def poll_issue():
    l = lab("pi")
    A(f"  s_cmp_lg_u32 s{sW}, 0\n  s_cbranch_scc1 {l}")
    A(f"  s_lshl_b32 s{sT1}, s{sBH}, 8\n  s_add_u32 s{sT1}, s{sT1}, {WFP}\n  v_mov_b32 v{PXR}, s{sT1}")
    A(f"  global_load_dwordx2 v[{PXR+2}:{PXR+3}], v{PXR}, s[{sWS}:{sWS+1}] sc1")
    A(f"{l}:")
def poll_check():
    l = lab("pc")
    A(f"  s_cmp_lg_u32 s{sW}, 0\n  s_cbranch_scc1 {l}")
    A(f"  s_lshl_b32 s{sT1}, s{sBH}, 8\n  s_add_u32 s{sT1}, s{sT1}, {WFP}\n  v_mov_b32 v{PXR}, s{sT1}")
    A(f"  s_mov_b32 s{sCNT}, 0\n  s_not_b32 s{sT2}, s{sTAG}")
    A(f"{l}a:")
    A(f"  v_readfirstlane_b32 s{sT0}, v{PXR+2}\n  v_readfirstlane_b32 s{sT1}, v{PXR+3}")
    A(f"  s_xor_b32 s{sT0}, s{sT0}, s{sTAG}\n  s_xor_b32 s{sT1}, s{sT1}, s{sT2}\n  s_or_b32 s{sT0}, s{sT0}, s{sT1}\n  s_cbranch_scc0 {l}b")
    A(f"  s_add_u32 s{sCNT}, s{sCNT}, 1\n  s_cmp_gt_u32 s{sCNT}, 0x200000\n  s_cbranch_scc1 {l}b")
    A(f"  global_load_dwordx2 v[{PXR+2}:{PXR+3}], v{PXR}, s[{sWS}:{sWS+1}] sc1\n  s_waitcnt vmcnt(0)\n  s_branch {l}a")
    A(f"{l}b:")
    A(f"  s_lshl_b32 s{sT0}, s{sBH}, 10\n  s_add_u32 s{sT0}, s{sT0}, {WPX}\n  v_add_u32 v{PXR}, s{sT0}, v{vLOFF}")
    A(f"  global_load_dwordx4 {vr(PXR+4)}, v{PXR}, s[{sWS}:{sWS+1}] sc1")
    A(f"{l}:")
for k in range(5):
    hook = None
    if k == 2: hook = poll_issue
    if k == 3 + (NH - 1) - (1 if NH == 2 else 0): hook = poll_check if k > 2 else None
    consume_pv(st, vP + k, k == 0, hook)
if NH == 2:
    pass
store_partial_lds(LO2, LML2)
l = lab("px")
A(f"  s_cmp_lg_u32 s{sW}, 0\n  s_cbranch_scc1 {l}")
A("  s_waitcnt vmcnt(0)")
A(f"  v_add_u32 v{PXR}, {LO2 + 8*512}, v{vLOFF}")
A(f"  s_mov_b32 exec_hi, 0\n  ds_write_b128 v{PXR}, {vr(PXR+4)}")
A(f"  s_mov_b32 exec_lo, 0\n  s_mov_b32 exec_hi, 1\n  v_mov_b32 v{PXR}, {LML2 + 64}\n  ds_write_b64 v{PXR}, v[{PXR+4}:{PXR+5}]")
A("  s_mov_b64 exec, -1")
A(f"{l}:")
stamp(4)
A("  s_waitcnt lgkmcnt(0)\n  s_barrier")
combine(LO2, LML2, 9, True)
A("  s_branch L_tail")

A("L_pathS:")
F = F0; tags = tags0
pend.clear()
KA.n, VA.n, KB.n, VB.n = segn
st = Stream([KA] * 3 + [VA] * 3 + [KB] * 2 + [VB] * 2)
for k in range(3):
    if k == 1: gate()
    consume_qk(st, vQA, vS + k)
    if k == 2: gate2()
softmax(3)
stamp(2)
for k in range(3):
    consume_pv(st, vP + k, k == 0, v_issue if k == 0 else (v_check if k == 2 else None))
store_partial_lds(LO1, LML1)
A("  s_waitcnt lgkmcnt(0)\n  s_barrier")
l = lab("pub")
A(f"  s_cmp_lg_u32 s{sW}, 0\n  s_cbranch_scc1 {l}")
combine(LO1, LML1, 8, False)
A(f"  s_lshl_b32 s{sT0}, s{sBH}, 10\n  s_add_u32 s{sT0}, s{sT0}, {WPX}")
A(f"  v_lshl_add_u32 v{vTMP}, v{vN}, 3, v{vG}\n  v_lshlrev_b32 v{vTMP}, 2, v{vTMP}\n  v_add_u32 v{vTMP}, s{sT0}, v{vTMP}")
A(f"  global_store_dword v{vTMP}, v{vTMP+39}, s[{sWS}:{sWS+1}] sc1")
A(f"  global_store_dword v{vTMP}, v{vTMP+40}, s[{sWS}:{sWS+1}] offset:16 sc1")
A(f"  v_mov_b32 v{vTMP+2}, v{vTMP+41}\n  v_mov_b32 v{vTMP+3}, v{vTMP+42}")
A(f"  s_mov_b64 exec, 1\n  global_store_dwordx2 v{vTMP}, v[{vTMP+2}:{vTMP+3}], s[{sWS}:{sWS+1}] offset:512 sc1\n  s_mov_b64 exec, -1")
A(f"{l}:")
stamp(3)
pubmark = F.total
consume_qk(st, vQB, vS + 0)
def signal():
    l = lab("sig")
    A(f"  s_cmp_lg_u32 s{sW}, 0\n  s_cbranch_scc1 {l}")
    A(f"  s_waitcnt vmcnt({F.total - pubmark})")
    A(f"  s_lshl_b32 s{sT1}, s{sBH}, 8\n  s_add_u32 s{sT1}, s{sT1}, {WFP}")
    A(f"  v_mov_b32 v{vTMP+8}, s{sT1}\n  v_mov_b32 v{vTMP+10}, s{sTAG}\n  v_not_b32 v{vTMP+11}, v{vTMP+10}")
    A(f"  s_mov_b64 exec, 1\n  global_store_dwordx2 v{vTMP+8}, v[{vTMP+10}:{vTMP+11}], s[{sWS}:{sWS+1}] sc1\n  s_mov_b64 exec, -1")
    A(f"{l}:")
signal()
consume_qk(st, vQB, vS + 1)
softmax(2)
for k in range(2):
    consume_pv(st, vP + k, k == 0)
store_partial_lds(LO2, LML2)
stamp(4)
A("  s_waitcnt lgkmcnt(0)\n  s_barrier")
combine(LO2, LML2, 8, True)

A("L_tail:")
if "notail" in opts: A("  s_branch L_end")
A(f"  v_cvt_pk_bf16_f32 v{vP}, v{vTMP+39}, v{vTMP+39}\n  v_cvt_pk_bf16_f32 v{vP+1}, v{vTMP+40}, v{vTMP+40}")
A(f"  ds_read_b128 {slot(15)}, v{vT} offset:{LWO + 1024*15}")
A("  s_nop 0")
build_aop(vAOP, vP, 0, vP + 1)
for i in range(16):
    if i < 15: build_aop(vAOP + 4 * ((i + 1) & 1), vP, i + 1, vP + 1)
    else: A("  s_waitcnt lgkmcnt(0)")
    c = "0" if i == 0 else vr(vACC)
    A(f"  v_mfma_f32_16x16x32_bf16 {vr(vACC)}, {vr(vAOP + 4 * (i & 1))}, {slot(i)}, {c}")
A(f"  s_lshl_b32 s{sT0}, s{sB}, 1\n  s_add_u32 s{sT0}, s{sT0}, s{sHALF}\n  s_lshl_b32 s{sT0}, s{sT0}, 5\n  s_add_u32 s{sT0}, s{sT0}, s{sH}\n  s_lshl_b32 s{sT0}, s{sT0}, 11")
A(f"  s_lshl_b32 s{sT1}, s{sW}, 8\n  s_add_u32 s{sT0}, s{sT0}, s{sT1}")
A(f"  v_lshlrev_b32 v{vTMP+8}, 5, v{vN}\n  v_lshl_add_u32 v{vTMP+8}, v{vG}, 4, v{vTMP+8}\n  v_add_u32 v{vTMP+8}, s{sT0}, v{vTMP+8}")
for b in range(4): A(f"  v_mov_b32 v{vTMP+b}, 0")
A("  s_nop 1")
for b in range(4): A(f"  v_permlane32_swap_b32 v{vACC+b}, v{vTMP+b}")
A("  s_nop 1")
for b in range(4): A(f"  v_add_f32_dpp v{vTMP+4+b}, v{vTMP+b}, v{vACC+b} row_shl:8 {DPPM}")
A(f"  v_mov_b32 v{vTMP+9}, 0x7fc00000")
for b in range(4):
    A(f"  v_cmp_eq_u32 vcc, -1, v{vTMP+4+b}\n  s_nop 1\n  v_cndmask_b32 v{vTMP+4+b}, v{vTMP+4+b}, v{vTMP+9}, vcc")
A("  s_mov_b32 exec_lo, 0x00ff00ff\n  s_mov_b32 exec_hi, 0")
A(f"  global_store_dwordx4 v{vTMP+8}, {vr(vTMP+4)}, s[{sWS}:{sWS+1}] sc1")
A("  s_mov_b64 exec, -1")
if "nofinal" in opts: A("  s_branch L_end")
A(f"  s_cmp_lg_u32 s{sW}, 0\n  s_cbranch_scc1 L_end")
stamp(5)
A(f"  s_lshl_b32 s{sT0}, s{sHALF}, 5\n  s_add_u32 s{sT0}, s{sT0}, s{sH}")
A(f"  s_lshl_b32 s{sT1}, s{sB}, 17\n  s_lshl_b32 s{sT2}, s{sT0}, 5\n  s_add_u32 s{sT1}, s{sT1}, s{sT2}")
A(f"  v_lshrrev_b32 v{vT}, 3, v{vLANE}\n  v_lshlrev_b32 v{vT}, 14, v{vT}\n  v_and_b32 v{vTMP+21}, 7, v{vLANE}\n  v_lshl_add_u32 v{vT}, v{vTMP+21}, 2, v{vT}\n  v_add_u32 v{vT}, s{sT1}, v{vT}")
for k in range(1, 4): A(f"  v_add_u32 v{vTMP+21+k}, {4096*k}, v{vT}")
lf = lab("fpoll")
A(f"  s_mov_b32 s{sCNT}, 0")
A(f"{lf}:")
for k in range(8):
    a = vT if k < 2 else vTMP + 21 + k // 2
    A(f"  global_load_dword v{vTMP+12+k}, v{a}, s[{sWS}:{sWS+1}] offset:{2048*(k&1)} sc1")
A("  s_waitcnt vmcnt(0)")
A(f"  v_max3_u32 v{vTMP+20}, v{vTMP+12}, v{vTMP+13}, v{vTMP+14}\n  v_max3_u32 v{vTMP+20}, v{vTMP+20}, v{vTMP+15}, v{vTMP+16}")
A(f"  v_max3_u32 v{vTMP+20}, v{vTMP+20}, v{vTMP+17}, v{vTMP+18}\n  v_max_u32 v{vTMP+20}, v{vTMP+20}, v{vTMP+19}")
A(f"  v_cmp_eq_u32 vcc, -1, v{vTMP+20}")
A(f"  s_add_u32 s{sCNT}, s{sCNT}, 1\n  s_cmp_gt_u32 s{sCNT}, 0x200000\n  s_cbranch_scc1 {lf}x")
A(f"  s_and_b64 exec, exec, vcc\n  s_cbranch_execnz {lf}")
A(f"{lf}x:")
A("  s_mov_b64 exec, -1")
t = vTMP
A(f"  v_add_f32 v{t}, v{t+12}, v{t+13}\n  v_add_f32 v{t+1}, v{t+14}, v{t+15}\n  v_add_f32 v{t+2}, v{t+16}, v{t+17}\n  v_add_f32 v{t+3}, v{t+18}, v{t+19}")
A(f"  v_add_f32 v{t}, v{t}, v{t+1}\n  v_add_f32 v{t+2}, v{t+2}, v{t+3}\n  v_add_f32 v{t}, v{t}, v{t+2}")
A(f"  s_mov_b32 s{sEX}, 0\n  s_mov_b32 s{sEX+1}, -1")
A(f"  v_add_f32_dpp v{t}, v{t}, v{t} row_ror:8 {DPPM}")
A(f"  v_cndmask_b32 v{t+4}, v{vGATE}, v{vOMG}, s[{sEX}:{sEX+1}]")
A(f"  v_mov_b32 v{t+1}, v{t}\n  s_nop 1\n  v_permlane16_swap_b32 v{t}, v{t+1}\n  s_nop 1\n  v_add_f32 v{t}, v{t}, v{t+1}")
round_bf16([t])
A(f"  v_mul_f32 v{t}, v{t+4}, v{t}")
round_bf16([t])
A(f"  v_mov_b32 v{t+1}, v{t}\n  s_nop 1\n  v_permlane32_swap_b32 v{t}, v{t+1}\n  s_nop 1\n  v_add_f32 v{t}, v{t}, v{t+1}")
A(f"  v_cvt_pk_bf16_f32 v{t}, v{t}, v{t}")
A(f"  s_lshl_b32 s{sT1}, s{sB}, 10\n  s_lshl_b32 s{sT0}, s{sT0}, 4\n  s_add_u32 s{sT0}, s{sT0}, s{sT1}")
A(f"  v_lshlrev_b32 v{vT}, 1, v{vLANE}\n  v_add_u32 v{vT}, s{sT0}, v{vT}")
A("  s_mov_b64 exec, 0xff")
A(f"  global_store_short v{vT}, v{t}, s[{sOUT}:{sOUT+1}]")
if STAMP:
    A("  s_mov_b64 exec, -1")
    stamp(6, True)
A("L_end:\n  s_endpgm")

kernels = [(KN, NVGPR, 96)]
if STAMP:
    A(".globl agg_kernel\n.p2align 8\n.type agg_kernel,@function\nagg_kernel:")
    A("  s_cmp_lg_u32 s2, 0\n  s_cbranch_scc1 L_end2")
    A("  s_load_dwordx4 s[20:23], s[0:1], 96")
    if "xcd" in opts:
        A(f"  v_lshlrev_b32 v1, 5, v0\n  v_add_u32 v1, {WST}, v1")
        A("  s_waitcnt lgkmcnt(0)")
        for k in range(4):
            A(f"  global_load_dword v{8+k}, v1, s[22:23] offset:{20 + 2048*(k&1)}")
            A(f"  global_load_dword v{12+k}, v1, s[22:23] offset:{2048*(k&1)}")
            if k == 1: A("  v_add_u32 v1, 0x1000, v1")
        A("  s_waitcnt vmcnt(0)")
        A("  v_min_u32 v40, v12, v13\n  v_min3_u32 v40, v40, v14, v15")
        wave_reduce("v_min_u32", 40, 24)
        A("  v_max_u32 v8, v8, v9\n  v_max_u32 v10, v10, v11")
        for r in (8, 10):
            A(f"  s_nop 1\n  v_max_u32_dpp v{r}, v{r}, v{r} row_ror:8 {DPPM}")
            for sw in ("v_permlane16_swap_b32", "v_permlane32_swap_b32"):
                A(f"  v_mov_b32 v20, v{r}\n  s_nop 1\n  {sw} v{r}, v20\n  s_nop 1\n  v_max_u32 v{r}, v{r}, v20")
            A(f"  v_subrev_u32 v{r}, s24, v{r}")
        A("  v_lshlrev_b32 v1, 2, v0\n  s_mov_b64 exec, 0xff")
        A("  global_store_dword v1, v8, s[20:21]\n  global_store_dword v1, v10, s[20:21] offset:32")
    else:
        A(f"  v_lshlrev_b32 v1, 7, v0\n  v_add_u32 v1, {WST}, v1")
        A("  s_waitcnt lgkmcnt(0)")
        for k in range(8):
            A(f"  global_load_dwordx4 v[{8+4*k}:{11+4*k}], v1, s[22:23] offset:{16*k}")
        A("  s_waitcnt vmcnt(0)")
        for k in range(8):
            A(f"  v_min_u32 v40, v{8+k}, v{16+k}\n  v_min3_u32 v40, v40, v{24+k}, v{32+k}")
            A(f"  v_max_u32 v41, v{8+k}, v{16+k}\n  v_max3_u32 v41, v41, v{24+k}, v{32+k}")
            wave_reduce("v_min_u32", 40, 24)
            wave_reduce("v_max_u32", 41, 25)
            A(f"  v_mov_b32 v42, s24\n  v_mov_b32 v43, s25\n  v_mov_b32 v44, {8*k}")
            A("  s_mov_b64 exec, 1\n  global_store_dwordx2 v44, v[42:43], s[20:21]\n  s_mov_b64 exec, -1")
    A("L_end2:\n  s_endpgm")
    kernels.append(("agg_kernel", 48, 32))
A('.section .rodata,"a"')
for name, nv, ns in kernels:
    A(f""".p2align 6
.amdhsa_kernel {name}
  .amdhsa_next_free_vgpr {nv}
  .amdhsa_next_free_sgpr {ns}
  .amdhsa_accum_offset {(nv+3)//4*4}
  .amdhsa_group_segment_fixed_size 0
  .amdhsa_kernarg_size 112
  .amdhsa_user_sgpr_count 2
  .amdhsa_user_sgpr_kernarg_segment_ptr 1
  .amdhsa_system_sgpr_workgroup_id_x 1
  .amdhsa_float_denorm_mode_32 3
.end_amdhsa_kernel""")
open(out, "w").write("\n".join(L) + "\n")
```

```python
import sys
out = sys.argv[1]
opts = sys.argv[2:]
STAMP = "stamp" in opts or "qstamp" in opts
QST = "qstamp" in opts
NH = 2 if 'nh2' in opts else 1
WIN = 4
for o in opts:
    if o.startswith("win"): WIN = int(o[3:])
PRE = 2
for o in opts:
    if o.startswith("pre"): PRE = int(o[3:])
KPOL = "nt"
L = []
def A(s): L.append(s)
KN = "gated_mix__mha_block_cached__sliding_block_cached__decode_kernel"

for line in open("gated_mix__mha_block_cached__sliding_block_cached__decode.s.ref").read().split("\n"):
    if line.startswith(";") and "@launch" not in line:
        A(line)
LWO = 0
LQP = 131072
LQ = LQP + 16384
LO1 = LQ + 512
LML1 = LO1 + 9 * 512
LO2 = LML1 + 128
LML2 = LO2 + 9 * 512
LFLAG = LML2 + 128
LDS_BYTES = LFLAG + 64
assert LDS_BYTES <= 163840
if STAMP:
    A(f"; @launch kernel={KN} grid=(256,1,1) block=(512,1,1) lds={LDS_BYTES}")
    A("; @launch kernel=agg_kernel grid=(1,1,1) block=(64,1,1) lds=0")
else:
    A(f"; @launch grid=(256,1,1) block=(512,1,1) lds={LDS_BYTES}")
A('.amdgcn_target "amdgcn-amd-amdhsa--gfx950"\n.text')

LOG2E = 0x3fb8aa3b
SCALE = 0x3db504f3
WY, WQP, WPX, WST = 0, 0x80000, 0x100000, 0x200000
WFQ, WFP, WFF = 0x140000, 0x150000, 0x160000

class Fifo:
    def __init__(self): self.q = []; self.total = 0
    def issue(self, tag): self.q.append(tag); self.total += 1
    def wait(self, tag):
        if tag not in self.q: return
        idx = self.q.index(tag)
        n = len(self.q) - 1 - idx
        assert n <= 63
        A(f"  s_waitcnt vmcnt({n})")
        self.q = self.q[idx + 1:]
    def copy(self):
        f = Fifo(); f.q = list(self.q); f.total = self.total; return f
F = Fifo()

vLANE, vKOFF, vLOFF, vWQOFF, vWOOFF = 1, 2, 3, 4, 5
vMASK = 6
vN, vG = 10, 11
vLOG2E, vSCALE = 12, 13
vT = 14
vGATE, vOMG = 15, 0
vQA = vQB = 16
vD = 32
vS = 48
vP = 53
vAOP = 60
vACC = 68
vACC2 = 72
vTMP = 76
RING = 124
NSLOT = 16 * NH
NVGPR = RING + 4 * NSLOT
def slot(i): return f"v[{RING+4*i}:{RING+4*i+3}]"
def vr(b, n=4): return f"v[{b}:{b+n-1}]"

sW = 3
sX, sAK, sAV, sAWQ, sAWO = 8, 10, 12, 14, 16
sGW, sOUT = 4, 6
sBK, sBV, sBWQ, sBWO = 20, 22, 24, 26
sDBG, sWS = 28, 30
sKA, sVA, sKB, sVB, sWQ, sWO = 32, 34, 36, 38, 40, 42
sM1, sM2, sM3 = 44, 46, 48
sC0 = 50
sU = 58
sH, sB, sHALF, sBH = 60, 61, 62, 63
sT0, sT1, sT2, sT3 = 64, 65, 66, 67
sMX, sL = 68, 69
sEX = 70
sST = 72
sCNT = 78
sTAG = 79

DPPM = "row_mask:0xf bank_mask:0xf"
uid = [0]
def lab(p):
    uid[0] += 1
    return f"L_{p}{uid[0]}"

def qs(k):
    if QST: A(f"  s_memrealtime s[{80+2*k}:{81+2*k}]")
def qs_flush(n):
    if not QST: return
    A("  s_waitcnt lgkmcnt(0)")
    A(f"  s_mov_b64 exec, 1")
    A(f"  s_lshl_b32 s{sST+1}, s2, 5\n  s_add_u32 s{sST+1}, s{sST+1}, {WST}")
    A(f"  v_mov_b32 v{vTMP+47}, s{sST+1}")
    A(f"  v_mov_b32 v{vTMP+46}, s{sST+4}\n  global_store_dword v{vTMP+47}, v{vTMP+46}, s[{sWS}:{sWS+1}]")
    for k in range(n):
        A(f"  v_mov_b32 v{vTMP+46}, s{80+2*k}\n  global_store_dword v{vTMP+47}, v{vTMP+46}, s[{sWS}:{sWS+1}] offset:{4*(k+1)}")
    A(f"  s_mov_b64 exec, -1")
def stamp(k, drain=False):
    if not STAMP or QST: return
    l = lab("st")
    A(f"  s_cmp_lg_u32 s{sW}, 0\n  s_cbranch_scc1 {l}")
    if drain: A("  s_waitcnt vmcnt(0)")
    A(f"  s_memrealtime s[{sST}:{sST+1}]\n  s_waitcnt lgkmcnt(0)")
    if k == 0: A(f"  s_mov_b32 s{sST}, s{sST+4}")
    A(f"  s_mov_b64 s[{sST+2}:{sST+3}], exec\n  s_mov_b64 exec, 1")
    A(f"  s_lshl_b32 s{sST+1}, s2, 5\n  s_add_u32 s{sST+1}, s{sST+1}, {WST + 4*k}")
    A(f"  v_mov_b32 v{vTMP+46}, s{sST}\n  v_mov_b32 v{vTMP+47}, s{sST+1}")
    A(f"  global_store_dword v{vTMP+47}, v{vTMP+46}, s[{sWS}:{sWS+1}]")
    if k == 0:
        for kk in range(1, 8):
            A(f"  global_store_dword v{vTMP+47}, v{vTMP+46}, s[{sWS}:{sWS+1}] offset:{4*kk}")
    A(f"  s_mov_b64 exec, s[{sST+2}:{sST+3}]")
    A(f"{l}:")

A(f".globl {KN}\n.p2align 8\n.type {KN},@function\n{KN}:")
A("  s_cmp_ge_u32 s2, 256\n  s_cbranch_scc1 L_end")
if STAMP: A(f"  s_memrealtime s[{sST+4}:{sST+5}]")
A("  s_load_dwordx8 s[8:15], s[0:1], 0")
A("  s_load_dwordx2 s[16:17], s[0:1], 32")
A("  s_load_dwordx8 s[20:27], s[0:1], 48")
A("  s_load_dwordx4 s[4:7], s[0:1], 80")
A("  s_load_dwordx4 s[28:31], s[0:1], 96")
A(f"  v_lshrrev_b32 v{vT}, 6, v0")
A(f"  v_and_b32 v{vLANE}, 63, v0")
A(f"  v_readfirstlane_b32 s{sW}, v{vT}")
A(f"  v_and_b32 v{vN}, 15, v{vLANE}")
A(f"  v_lshrrev_b32 v{vG}, 4, v{vLANE}")
A(f"  v_bfe_u32 v{vT}, v{vLANE}, 2, 2")
A(f"  v_lshlrev_b32 v{vKOFF}, 8, v{vT}")
A(f"  v_lshl_add_u32 v{vKOFF}, v{vG}, 6, v{vKOFF}")
A(f"  v_and_b32 v{vT}, 3, v{vLANE}")
A(f"  v_lshl_add_u32 v{vKOFF}, v{vT}, 4, v{vKOFF}")
A(f"  v_lshlrev_b32 v{vLOFF}, 4, v{vLANE}")
A(f"  v_lshlrev_b32 v{vWQOFF}, 13, v{vG}")
A(f"  v_lshl_add_u32 v{vWQOFF}, v{vN}, 4, v{vWQOFF}")
A(f"  v_lshrrev_b32 v{vT}, 3, v{vN}")
A(f"  v_lshl_add_u32 v{vT}, v{vT}, 2, v{vG}")
A(f"  v_lshlrev_b32 v{vWOOFF}, 10, v{vT}")
A(f"  v_and_b32 v{vT}, 7, v{vN}")
A(f"  v_lshl_add_u32 v{vWOOFF}, v{vT}, 4, v{vWOOFF}")
A(f"  s_and_b32 s{sH}, s2, 7\n  s_lshl_b32 s{sH}, s{sH}, 2\n  s_bfe_u32 s{sT0}, s2, 0x20003\n  s_add_u32 s{sH}, s{sH}, s{sT0}")
A(f"  s_bfe_u32 s{sB}, s2, 0x20005")
A(f"  s_lshr_b32 s{sHALF}, s2, 7")
A(f"  s_lshl_b32 s{sBH}, s{sB}, 5\n  s_add_u32 s{sBH}, s{sBH}, s{sH}")
A(f"  s_lshl_b32 s{sT0}, s{sBH}, 20\n  s_lshl_b32 s{sT1}, s{sW}, 13\n  s_add_u32 s{sT0}, s{sT0}, s{sT1}\n  s_add_u32 s{sT0}, s{sT0}, 4096")
A(f"  s_mul_i32 s{sT1}, s{sHALF}, {2560*256}\n  s_add_u32 s{sT1}, s{sT1}, s{sT0}      ; A off")
A(f"  s_add_u32 s{sT2}, s{sT0}, {3072*256}    ; B off")
A(f"  s_lshl_b32 s{sT3}, s{sB}, 8\n  s_lshl_b32 s{sT0}, s{sW}, 5\n  s_add_u32 s{sT3}, s{sT3}, s{sT0}")
A(f"  v_lshrrev_b32 v{vT}, 3, v{vN}\n  v_lshlrev_b32 v{vT}, 10, v{vT}\n  v_lshl_add_u32 v{vT}, v{vG}, 1, v{vT}\n  v_add_u32 v{vT}, s{sT3}, v{vT}")
A("  s_waitcnt lgkmcnt(0)")
ltag = lab("tag")
A(f"  s_or_b32 s92, s{sB}, s{sHALF}\n  s_or_b32 s92, s92, s{sW}\n  s_cmp_lg_u32 s92, 0\n  s_cbranch_scc1 {ltag}")
A(f"  s_memrealtime s[92:93]\n  s_waitcnt lgkmcnt(0)\n  s_or_b32 s92, s92, 1")
A(f"  s_lshl_b32 s93, s{sH}, 2\n  v_mov_b32 v{vD}, s93\n  v_mov_b32 v{vD+1}, s92")
A(f"  s_mov_b64 exec, 1\n  global_store_dword v{vD}, v{vD+1}, s[{sDBG}:{sDBG+1}] sc1\n  s_mov_b64 exec, -1")
A(f"{ltag}:")
vXW = vTMP + 32
for p in range(2):
    for i in range(4):
        A(f"  global_load_ushort v{vXW+4*p+i}, v{vT}, s[{sX}:{sX+1}] offset:{2048*p + 8*i}")
        F.issue(("xw", p, i))
def add64(d, base, off):
    A(f"  s_add_u32 s{d}, s{base}, s{off}\n  s_addc_u32 s{d+1}, s{base+1}, 0")
A(f"  s_cmp_eq_u32 s{sHALF}, 0")
A(f"  s_cselect_b32 s{sWQ}, s{sAWQ}, s{sBWQ}\n  s_cselect_b32 s{sWQ+1}, s{sAWQ+1}, s{sBWQ+1}")
A(f"  s_cselect_b32 s{sWO}, s{sAWO}, s{sBWO}\n  s_cselect_b32 s{sWO+1}, s{sAWO+1}, s{sBWO+1}")
A(f"  s_lshl_b32 s{sT0}, s{sT3}, 12\n  s_lshl_b32 s{sT3}, s{sH}, 8\n  s_add_u32 s{sT0}, s{sT0}, s{sT3}")
add64(sWQ, sWQ, sT0)
vWQ = vTMP
for i in range(4):
    A(f"  global_load_dwordx4 {vr(vWQ+4*i)}, v{vWQOFF}, s[{sWQ}:{sWQ+1}] nt")
    F.issue(("wq", i))
    if i < 3: A(f"  s_add_u32 s{sWQ}, s{sWQ}, 0x8000\n  s_addc_u32 s{sWQ+1}, s{sWQ+1}, 0")
add64(sKA, sAK, sT1); add64(sVA, sAV, sT1); add64(sKB, sBK, sT2); add64(sVB, sBV, sT2)
A(f"  s_lshl_b32 s{sT0}, s{sH}, 17\n  s_lshl_b32 s{sT1}, s{sW}, 7\n  s_add_u32 s{sT0}, s{sT0}, s{sT1}")
add64(sWO, sWO, sT0)

class Seg:
    def __init__(self, name, sbase, kind):
        self.name, self.sbase, self.kind, self.n = name, sbase, kind, 0
    def load(self, sl):
        j = self.n; self.n += 1
        tag = (self.name, j)
        voff = vKOFF if self.kind == "k" else vLOFF
        i = j % 8
        A(f"  global_load_dwordx4 {slot(sl)}, v{voff}, s[{self.sbase}:{self.sbase+1}] offset:{-4096+1024*i} {KPOL}")
        if i == 7:
            A(f"  s_add_u32 s{self.sbase}, s{self.sbase}, 0x10000\n  s_addc_u32 s{self.sbase+1}, s{self.sbase+1}, 0")
        F.issue(tag)
        return tag

NODMA = "nodma" in opts
DMAPOL = "nt"
for o in opts:
    if o.startswith("dmapol="): DMAPOL = o[7:].replace("none", "").replace("+", " ")
DMAFIRST = "dmafirst" in opts
DMALATE = "dmaearly" not in opts
DWIN = WIN
for o in opts:
    if o.startswith("dwin"): DWIN = int(o[4:])
def prefetch_rest():
    A(f"  s_lshl_b32 s{sT0}, s{sW}, 14")
    def ring():
        for t in range(PRE, NSLOT):
            if WIN < 32: A(f"  s_waitcnt vmcnt({WIN-1})")
            tags[t] = KA.load(t)
    def dma():
        if NODMA: return
        for i in range(16):
            A(f"  s_add_u32 m0, s{sT0}, {LWO + 1024*i}")
            if DWIN < 32: A(f"  s_waitcnt vmcnt({DWIN-1})")
            else: A("  s_nop 0")
            A(f"  global_load_lds_dwordx4 v{vWOOFF}, s[{sWO}:{sWO+1}] {DMAPOL}")
            F.issue(("dma", i))
            if i < 15: A(f"  s_add_u32 s{sWO}, s{sWO}, 0x2000\n  s_addc_u32 s{sWO+1}, s{sWO+1}, 0")
    if DMALATE: ring()
    elif DMAFIRST: dma(); ring()
    else: ring(); dma()
def dma_one(i):
    A(f"  s_lshl_b32 s{sT0}, s{sW}, 14\n  s_add_u32 m0, s{sT0}, {LWO + 1024*i}")
    A("  s_nop 0")
    A(f"  global_load_lds_dwordx4 v{vWOOFF}, s[{sWO}:{sWO+1}] {DMAPOL}")
    F.issue(("dma", i))
    if i < 15: A(f"  s_add_u32 s{sWO}, s{sWO}, 0x2000\n  s_addc_u32 s{sWO+1}, s{sWO+1}, 0")

KA, VA, KB, VB = Seg("KA", sKA, "k"), Seg("VA", sVA, "v"), Seg("KB", sKB, "k"), Seg("VB", sVB, "v")
tags = {}
for t in range(PRE):
    tags[t] = KA.load(t)
A(f"  v_mov_b32 v{vLOG2E}, {LOG2E:#x}\n  v_mov_b32 v{vSCALE}, {SCALE:#x}")
A(f"  v_and_b32 v{vT}, 1, v{vN}\n  v_lshlrev_b32 v{vT}, 4, v{vT}")
A(f"  v_mov_b32 v{vD}, 0xffff\n  v_lshlrev_b32 v{vD}, v{vT}, v{vD}")
A(f"  v_bfe_u32 v{vT}, v{vN}, 1, 2")
for w in range(4):
    A(f"  v_cmp_eq_u32 vcc, {w}, v{vT}\n  s_nop 1\n  v_cndmask_b32 v{vMASK+w}, 0, v{vD}, vcc")
for t, s in ((1, sM1), (2, sM2), (3, sM3)):
    m = 0x11111111 << t
    A(f"  s_mov_b32 s{s}, {m:#x}\n  s_mov_b32 s{s+1}, {m:#x}")
for i in range(4):
    m = 0x000f000f << (4 * i)
    A(f"  s_mov_b32 s{sC0+2*i}, {m:#x}\n  s_mov_b32 s{sC0+2*i+1}, {m:#x}")
A(f"  s_mov_b32 s{sU}, 0xff00ff00\n  s_mov_b32 s{sU+1}, 0xff00ff00")
F.wait(("wq", 3))
qs(0)
for k in range(8):
    A(f"  v_lshl_or_b32 v{vXW+k}, v{vXW+k}, 16, v{vXW+k}")
for p in range(2):
    acc = vACC if p == 0 else vACC2
    for i in range(4):
        ao = vAOP + 4 * (i & 1)
        for w in range(4):
            A(f"  v_and_b32 v{ao+w}, v{vXW+4*p+i}, v{vMASK+w}")
        A("  s_nop 1")
        c = "0" if i == 0 else vr(acc)
        A(f"  v_mfma_f32_16x16x32_bf16 {vr(acc)}, {vr(ao)}, {vr(vWQ+4*i)}, {c}")
A(f"  v_lshrrev_b32 v{vT}, 1, v{vG}\n  v_lshlrev_b32 v{vT}, 9, v{vT}\n  v_lshl_add_u32 v{vT}, v{vN}, 5, v{vT}")
A(f"  v_and_b32 v{vD}, 1, v{vG}\n  v_lshl_add_u32 v{vT}, v{vD}, 4, v{vT}")
A(f"  s_lshl_b32 s{sT0}, s{sW}, 11\n  s_add_u32 s{sT0}, s{sT0}, {LQP}\n  v_add_u32 v{vT}, s{sT0}, v{vT}")
A("  s_nop 4")
A(f"  ds_write_b128 v{vT}, {vr(vACC)}\n  ds_write_b128 v{vT}, {vr(vACC2)} offset:1024")
A("  s_waitcnt lgkmcnt(0)\n  s_barrier")
lq = lab("qdone")
lpf = lab("pf")
A(f"  s_cmp_lg_u32 s{sW}, 0\n  s_cbranch_scc1 {lpf}")
qs(1)
A(f"  v_add_u32 v{vT}, {LQP}, v{vLOFF}")
for hh in range(2):
    for w in range(8):
        A(f"  ds_read_b128 {vr(vTMP+4*w)}, v{vT} offset:{w*2048 + hh*1024}")
    A("  s_waitcnt lgkmcnt(0)")
    d = vACC if hh == 0 else vACC2
    for e in range(4):
        A(f"  v_add_f32 v{d+e}, v{vTMP+e}, v{vTMP+4+e}")
        for w in range(2, 8):
            A(f"  v_add_f32 v{d+e}, v{d+e}, v{vTMP+4*w+e}")
A(f"  s_lshl_b32 s{sT0}, s{sB}, 1\n  s_add_u32 s{sT0}, s{sT0}, s{sHALF}\n  s_lshl_b32 s{sT0}, s{sT0}, 5\n  s_add_u32 s{sT0}, s{sT0}, s{sH}\n  s_lshl_b32 s{sT0}, s{sT0}, 11")
A(f"  v_add_u32 v{vT}, s{sT0}, v{vLOFF}")
for e in range(4): A(f"  v_mov_b32 v{vD+8+e}, -1")
A(f"  global_store_dwordx4 v{vT}, {vr(vD+8)}, s[{sWS}:{sWS+1}] sc1")
A(f"  global_store_dwordx4 v{vT}, {vr(vD+8)}, s[{sWS}:{sWS+1}] offset:1024 sc1")
A(f"  s_lshl_b32 s{sT0}, s{sH}, 1\n  s_add_u32 s{sT0}, s{sT0}, s{sHALF}\n  s_lshl_b32 s{sT0}, s{sT0}, 2\n  s_add_u32 s{sT0}, s{sT0}, s{sB}\n  s_lshl_b32 s{sT0}, s{sT0}, 11\n  s_add_u32 s{sT0}, s{sT0}, {WQP}")
A(f"  v_add_u32 v{vT}, s{sT0}, v{vLOFF}")
A(f"  global_store_dwordx4 v{vT}, {vr(vACC)}, s[{sWS}:{sWS+1}] sc1")
A(f"  global_store_dwordx4 v{vT}, {vr(vACC2)}, s[{sWS}:{sWS+1}] offset:1024 sc1")
A(f"  s_lshl_b32 s{sT1}, s{sH}, 2\n  v_mov_b32 v{vD}, s{sT1}")
lt = lab("tpoll")
A(f"  s_mov_b32 s{sCNT}, 0")
A(f"{lt}:")
A(f"  s_mov_b64 exec, 1\n  global_load_dword v{vD+1}, v{vD}, s[{sDBG}:{sDBG+1}] sc1\n  s_mov_b64 exec, -1")
A("  s_waitcnt vmcnt(0)")
A(f"  v_readfirstlane_b32 s{sTAG}, v{vD+1}")
A(f"  s_add_u32 s{sCNT}, s{sCNT}, 1\n  s_cmp_gt_u32 s{sCNT}, 0x200000\n  s_cbranch_scc1 {lt}x")
A(f"  s_cmp_eq_u32 s{sTAG}, 0\n  s_cbranch_scc1 {lt}")
A(f"{lt}x:")
qs(2)
A(f"  s_lshl_b32 s{sT0}, s{sHALF}, 2\n  s_add_u32 s{sT0}, s{sT0}, s{sB}\n  s_lshl_b32 s{sT0}, s{sT0}, 3\n  s_lshl_b32 s{sT1}, s{sH}, 8\n  s_add_u32 s{sT1}, s{sT1}, {WFQ}\n  s_add_u32 s{sT0}, s{sT0}, s{sT1}")
A(f"  v_mov_b32 v{vD+4}, s{sTAG}\n  v_not_b32 v{vD+5}, v{vD+4}\n  v_mov_b32 v{vD}, s{sT0}")
A(f"  s_mov_b64 exec, 1\n  global_store_dwordx2 v{vD}, v[{vD+4}:{vD+5}], s[{sWS}:{sWS+1}] sc1\n  s_mov_b64 exec, -1")
A(f"  v_lshlrev_b32 v{vD}, 3, v{vLANE}\n  v_add_u32 v{vD}, s{sT1}, v{vD}")
A(f"  v_lshrrev_b32 v{vT}, 5, v{vLANE}\n  v_lshlrev_b32 v{vT}, 13, v{vT}\n  v_and_b32 v{vD+2}, 31, v{vLANE}\n  v_lshl_add_u32 v{vT}, v{vD+2}, 4, v{vT}")
A(f"  s_lshl_b32 s{sT0}, s{sH}, 14\n  s_lshl_b32 s{sT2}, s{sB}, 9\n  s_add_u32 s{sT0}, s{sT0}, s{sT2}\n  s_add_u32 s{sT0}, s{sT0}, {WQP}")
A(f"  v_add_u32 v{vT}, s{sT0}, v{vT}")
A(f"  v_add_u32 v{vD+3}, 0x1000, v{vT}")
lp = lab("qpoll")
A(f"  s_mov_b32 s{sCNT}, 0")
A(f"  s_cmp_eq_u32 s{sHALF}, 0\n  s_cselect_b32 s{sT2}, 0xf, 0xff")
A(f"{lp}:")
A(f"  s_mov_b64 exec, 0xff\n  global_load_dwordx2 v[{vD+6}:{vD+7}], v{vD}, s[{sWS}:{sWS+1}] sc1")
A("  s_waitcnt vmcnt(0)")
A(f"  v_cmp_eq_u64 vcc, v[{vD+6}:{vD+7}], v[{vD+4}:{vD+5}]\n  s_mov_b64 exec, -1")
A(f"  s_and_b32 s{sT0}, vcc_lo, s{sT2}")
A(f"  s_add_u32 s{sCNT}, s{sCNT}, 1\n  s_cmp_gt_u32 s{sCNT}, 0x200000\n  s_cbranch_scc1 {lp}x")
if "noqwait" not in opts: A(f"  s_cmp_lg_u32 s{sT0}, s{sT2}\n  s_cbranch_scc1 {lp}")
A(f"{lp}x:")
qs(3)
for rq in range(4):
    if rq < 2: A(f"  global_load_dwordx4 {vr(vTMP+4*rq)}, v{vT}, s[{sWS}:{sWS+1}] offset:{2048*rq} sc1")
    else: A(f"  global_load_dwordx4 {vr(vTMP+4*rq)}, v{vD+3}, s[{sWS}:{sWS+1}] offset:{2048*(rq-2)} sc1")
A("  s_waitcnt vmcnt(0)")
qs(4)
for e in range(4):
    A(f"  v_add_f32 v{vTMP+e}, v{vTMP+e}, v{vTMP+4+e}\n  v_add_f32 v{vTMP+8+e}, v{vTMP+8+e}, v{vTMP+12+e}\n  v_add_f32 v{vTMP+e}, v{vTMP+e}, v{vTMP+8+e}")
A(f"  v_cvt_pk_bf16_f32 v{vTMP+4}, v{vTMP}, v{vTMP+1}\n  v_cvt_pk_bf16_f32 v{vTMP+5}, v{vTMP+2}, v{vTMP+3}")
A(f"  v_lshlrev_b32 v{vT}, 3, v{vLANE}")
A(f"  ds_write_b64 v{vT}, v[{vTMP+4}:{vTMP+5}] offset:{LQ}" if LQ < 65536 else
  f"  v_add_u32 v{vT}, {LQ}, v{vT}\n  ds_write_b64 v{vT}, v[{vTMP+4}:{vTMP+5}]")
A("  s_waitcnt lgkmcnt(0)")
stamp(0)
stamp(1)
A("  s_barrier")
stamp(7)
qs(5)
qs_flush(6)
A(f"{lpf}:")
prefetch_rest()
A(f"  s_cmp_eq_u32 s{sW}, 0\n  s_cbranch_scc1 {lq}")
A("  s_barrier")
A(f"{lq}:")

def wave_reduce(op, v, sdst):
    for c in ("row_ror:8", "row_ror:4", "row_ror:2", "row_ror:1"):
        A(f"  s_nop 1\n  {op}_dpp v{v}, v{v}, v{v} {c} {DPPM}")
    A(f"  s_nop 1\n  {op}_dpp v{v}, v{v}, v{v} row_bcast:15 row_mask:0xa bank_mask:0xf")
    A(f"  s_nop 1\n  {op}_dpp v{v}, v{v}, v{v} row_bcast:31 row_mask:0xc bank_mask:0xf")
    A(f"  s_nop 0\n  v_readlane_b32 s{sdst}, v{v}, 63\n  s_nop 1")
def round_bf16(regs):
    for r in regs:
        A(f"  v_cvt_pk_bf16_f32 v{r}, v{r}, v{r}\n  v_and_b32 v{r}, 0xffff0000, v{r}")

def build_q(br):
    A(f"  v_and_b32 v{vT}, 3, v{vN}\n  v_lshl_add_u32 v{vT}, v{vG}, 2, v{vT}\n  v_lshlrev_b32 v{vT}, 4, v{vT}\n  v_add_u32 v{vT}, {LQ}, v{vT}")
    A(f"  ds_read_b128 {vr(vTMP)}, v{vT} offset:{256*br}")
    A("  s_waitcnt lgkmcnt(0)")
    for i in range(4):
        for e in range(4):
            A(f"  v_cndmask_b32 v{vQA+4*i+e}, 0, v{vTMP+e}, s[{sC0+2*i}:{sC0+2*i+1}]")
    A("  s_nop 1")
build_q(0)

def build_aop(dst, wreg, bc, two=None):
    if two is None:
        for w in range(4):
            A(f"  v_and_b32_dpp v{dst+w}, v{wreg}, v{vMASK+w} row_newbcast:{bc} {DPPM}")
    else:
        A(f"  v_mov_b32_dpp v{vTMP+44}, v{wreg} row_newbcast:{bc} {DPPM}")
        A(f"  v_mov_b32_dpp v{vTMP+45}, v{two} row_newbcast:{bc} {DPPM}")
        A(f"  v_cndmask_b32 v{vTMP+44}, v{vTMP+44}, v{vTMP+45}, s[{sU}:{sU+1}]")
        for w in range(4):
            A(f"  v_and_b32 v{dst+w}, v{vTMP+44}, v{vMASK+w}")

LAG = 0
for o in opts:
    if o.startswith("lag"): LAG = int(o[3:])
pend = []
def do_refill(sl, refill):
    if refill is not None: pend.append((sl, refill))
    if pend and (len(pend) > LAG or refill is None):
        s2, r2 = pend.pop(0)
        tags[s2] = r2.load(s2)
        return True
    return False

class Stream:
    def __init__(self, seq):
        self.seq = seq; self.k = 0
    def next(self):
        k = self.k; self.k += 1
        half = k % NH
        refill = self.seq[k + NH] if k + NH < len(self.seq) else None
        return half, refill

lasthalf = [0]
def consume_pv(st, preg, first_zero, hook=None):
    half, refill = st.next()
    islast = st.k == len(st.seq)
    if islast: lasthalf[0] = half
    bc = lambda j: (j & 3) * 4 + (j >> 2)
    A("  s_nop 1")
    build_aop(vAOP, preg, bc(0))
    for i in range(16):
        sl = half * 16 + i
        if i < 15: build_aop(vAOP + 4 * ((i + 1) & 1), preg, bc(i + 1))
        else: A("  s_nop 0")
        F.wait(tags[sl])
        c = "0" if (first_zero and i == 0) else vr(vACC)
        A(f"  v_mfma_f32_16x16x32_bf16 {vr(vACC)}, {vr(vAOP + 4 * (i & 1))}, {slot(sl)}, {c}")
        assert not any(p[0] == (sl + 1) % 16 for p in pend[:0])
        do_refill(sl, refill)
        if islast and i > 0:
            if i == 1: A(f"  s_lshl_b32 s{sT0}, s{sW}, 14\n  v_add_u32 v{vT}, s{sT0}, v{vLOFF}")
            A(f"  ds_read_b128 {slot(sl-1)}, v{vT} offset:{LWO + 1024*(i-1)}")
        if hook and i == 0: hook()

def consume_qk(st, q, sdst, hook=None):
    first = st.k == 0
    half, refill = st.next()
    for j in range(16):
        sl = half * 16 + j
        t, i = j >> 2, j & 3
        F.wait(tags[sl])
        c = "0" if i == 0 else vr(vD + 4 * t)
        A(f"  v_mfma_f32_16x16x32_bf16 {vr(vD+4*t)}, {slot(sl)}, {vr(q+4*i)}, {c}")
        do_refill(sl, refill)
        if hook and j == 0: hook()
        if first and DMALATE: dma_one(j)
    A("  s_nop 7")
    for t in range(4):
        d = vTMP + t
        A(f"  v_mov_b32_dpp v{d}, v{vD+4*t} quad_perm:[0,0,0,0] {DPPM}")
        for s in range(1, 4):
            A(f"  v_add_f32_dpp v{d}, v{vD+4*t+s}, v{d} quad_perm:[{s},{s},{s},{s}] {DPPM}")
    A(f"  v_cndmask_b32 v{sdst}, v{vTMP}, v{vTMP+1}, s[{sM1}:{sM1+1}]")
    A(f"  v_cndmask_b32 v{sdst}, v{sdst}, v{vTMP+2}, s[{sM2}:{sM2+1}]")
    A(f"  v_cndmask_b32 v{sdst}, v{sdst}, v{vTMP+3}, s[{sM3}:{sM3+1}]")

def softmax(nb):
    S = [vS + k for k in range(nb)]
    round_bf16(S)
    for r in S: A(f"  v_mul_f32 v{r}, v{r}, v{vSCALE}")
    round_bf16(S)
    for r in S: A(f"  v_mul_f32 v{r}, v{r}, v{vLOG2E}")
    t = vTMP
    A(f"  v_mov_b32 v{t}, v{S[0]}")
    for r in S[1:]: A(f"  v_max_f32 v{t}, v{t}, v{r}")
    wave_reduce("v_max_f32", t, sMX)
    for r in S: A(f"  v_subrev_f32 v{r}, s{sMX}, v{r}")
    for r in S: A(f"  v_exp_f32 v{r}, v{r}")
    A("  s_nop 0")
    for k, r in enumerate(S): A(f"  v_cvt_pk_bf16_f32 v{vP+k}, v{r}, v{r}")
    A(f"  v_mov_b32 v{t}, v{S[0]}")
    for r in S[1:]: A(f"  v_add_f32 v{t}, v{t}, v{r}")
    wave_reduce("v_add_f32", t, sL)

def store_partial_lds(base, mlbase):
    A(f"  v_and_b32 v{vTMP}, 1, v{vG}\n  v_lshlrev_b32 v{vTMP}, 4, v{vTMP}\n  v_lshl_add_u32 v{vTMP}, v{vN}, 5, v{vTMP}")
    A(f"  s_lshl_b32 s{sT0}, s{sW}, 9\n  s_add_u32 s{sT0}, s{sT0}, {base}\n  v_add_u32 v{vTMP}, s{sT0}, v{vTMP}")
    A(f"  s_lshl_b32 s{sT0}, s{sW}, 3\n  s_add_u32 s{sT0}, s{sT0}, {mlbase}")
    A(f"  v_mov_b32 v{vTMP+1}, s{sT0}\n  v_mov_b32 v{vTMP+2}, s{sMX}\n  v_mov_b32 v{vTMP+3}, s{sL}")
    A(f"  ds_write_b64 v{vTMP+1}, v[{vTMP+2}:{vTMP+3}]")
    A("  s_nop 3")
    A(f"  ds_write_b128 v{vTMP}, {vr(vACC)}")

def combine(base, mlbase, nsl, normalise):
    ml = vTMP
    ov = vTMP + 20
    a = vTMP + 38
    A(f"  v_mov_b32 v{a}, {mlbase}")
    for k in range((nsl + 1) // 2):
        A(f"  ds_read_b128 {vr(ml+4*k)}, v{a} offset:{16*k}")
    A(f"  v_lshl_add_u32 v{a+1}, v{vN}, 3, v{vG}\n  v_lshlrev_b32 v{a+1}, 2, v{a+1}\n  v_add_u32 v{a+1}, {base}, v{a+1}")
    for w in range(nsl):
        A(f"  ds_read_b32 v{ov+2*w}, v{a+1} offset:{w*512}\n  ds_read_b32 v{ov+2*w+1}, v{a+1} offset:{w*512 + 16}")
    A("  s_waitcnt lgkmcnt(0)")
    M, Lr = vTMP + 41, vTMP + 42
    A(f"  v_max_f32 v{M}, v{ml}, v{ml+2}")
    for w in range(2, nsl): A(f"  v_max_f32 v{M}, v{M}, v{ml+2*w}")
    for w in range(nsl): A(f"  v_sub_f32 v{ml+2*w}, v{ml+2*w}, v{M}")
    for w in range(nsl): A(f"  v_exp_f32 v{ml+2*w}, v{ml+2*w}")
    A("  s_nop 0")
    A(f"  v_mul_f32 v{Lr}, v{ml}, v{ml+1}")
    for w in range(1, nsl): A(f"  v_fmac_f32 v{Lr}, v{ml+2*w}, v{ml+2*w+1}")
    if normalise: A(f"  v_rcp_f32 v{a}, v{Lr}")
    A(f"  v_mul_f32 v{a+1}, v{ml}, v{ov}\n  v_mul_f32 v{a+2}, v{ml}, v{ov+1}")
    for w in range(1, nsl):
        A(f"  v_fmac_f32 v{a+1}, v{ml+2*w}, v{ov+2*w}\n  v_fmac_f32 v{a+2}, v{ml+2*w}, v{ov+2*w+1}")
    if normalise:
        A(f"  v_mul_f32 v{a+1}, v{a+1}, v{a}\n  v_mul_f32 v{a+2}, v{a+2}, v{a}")

def gate():
    A(f"  s_lshl_b32 s{sT0}, s{sB}, 10\n  v_add_u32 v{vT}, s{sT0}, v{vLOFF}")
    A(f"  global_load_dwordx4 {vr(vTMP+8)}, v{vT}, s[{sX}:{sX+1}]")
    F.issue("gx")
    A(f"  global_load_dwordx4 {vr(vTMP+12)}, v{vLOFF}, s[{sGW}:{sGW+1}]")
    F.issue("gw")
def gate2():
    F.wait("gw")
    t = vTMP
    A(f"  v_mov_b32 v{t+5}, 0")
    for e in range(4):
        A(f"  v_lshlrev_b32 v{t}, 16, v{t+8+e}\n  v_lshlrev_b32 v{t+1}, 16, v{t+12+e}\n  v_mul_f32 v{t}, v{t}, v{t+1}")
        A(f"  v_and_b32 v{t+2}, 0xffff0000, v{t+8+e}\n  v_and_b32 v{t+3}, 0xffff0000, v{t+12+e}\n  v_mul_f32 v{t+2}, v{t+2}, v{t+3}")
        A(f"  v_cvt_pk_bf16_f32 v{t}, v{t}, v{t+2}")
        A(f"  v_lshlrev_b32 v{t+1}, 16, v{t}\n  v_and_b32 v{t+2}, 0xffff0000, v{t}")
        A(f"  v_add_f32 v{t+5}, v{t+5}, v{t+1}\n  v_add_f32 v{t+5}, v{t+5}, v{t+2}")
    wave_reduce("v_add_f32", t + 5, sT0)
    A(f"  v_mov_b32 v{vGATE}, s{sT0}")
    round_bf16([vGATE])
    A(f"  v_mul_f32 v{vGATE}, v{vLOG2E}, v{vGATE}\n  v_exp_f32 v{vGATE}, -v{vGATE}\n  s_nop 0")
    A(f"  v_add_f32 v{vGATE}, 1.0, v{vGATE}\n  v_rcp_f32 v{vGATE}, v{vGATE}\n  s_nop 0")
    round_bf16([vGATE])
    A(f"  v_sub_f32 v{vOMG}, 1.0, v{vGATE}")
    round_bf16([vOMG])

VR = vTMP + 32
def v_addr():
    A(f"  v_and_b32 v{VR}, 31, v{vLANE}\n  v_lshlrev_b32 v{VR+1}, 8, v{VR}\n  v_lshlrev_b32 v{VR}, 2, v{VR}")
    A(f"  v_lshrrev_b32 v{VR+2}, 5, v{vLANE}\n  v_lshl_add_u32 v{VR+1}, v{VR+2}, 5, v{VR+1}")
    A(f"  s_lshl_b32 s{sT1}, s{sB}, 3\n  s_add_u32 s{sT1}, s{sT1}, {WFQ}\n  v_add_u32 v{VR+1}, s{sT1}, v{VR+1}")
def v_loads():
    A(f"  global_load_dword v{VR+2}, v{VR}, s[{sDBG}:{sDBG+1}] sc1")
    A(f"  global_load_dwordx2 v[{VR+4}:{VR+5}], v{VR+1}, s[{sWS}:{sWS+1}] sc1")
def v_issue():
    l = lab("vi")
    A(f"  s_cmp_lg_u32 s{sW}, 0\n  s_cbranch_scc1 {l}")
    v_addr(); v_loads()
    A(f"{l}:")
def v_check():
    l = lab("vc")
    A(f"  s_cmp_lg_u32 s{sW}, 0\n  s_cbranch_scc1 {l}")
    A(f"  s_mov_b32 s{sCNT}, 0")
    A(f"{l}a:")
    A(f"  v_not_b32 v{VR+3}, v{VR+2}")
    A(f"  v_cmp_eq_u64 vcc, v[{VR+4}:{VR+5}], v[{VR+2}:{VR+3}]")
    A(f"  v_cmp_ne_u32 s[{sEX}:{sEX+1}], 0, v{VR+2}")
    A(f"  s_and_b64 vcc, vcc, s[{sEX}:{sEX+1}]")
    A(f"  s_cmp_eq_u64 vcc, -1\n  s_cbranch_scc1 {l}")
    A(f"  s_add_u32 s{sCNT}, s{sCNT}, 1\n  s_cmp_gt_u32 s{sCNT}, 0x200000\n  s_cbranch_scc1 {l}")
    v_addr(); v_loads()
    A(f"  s_waitcnt vmcnt(0)\n  s_branch {l}a")
    A(f"{l}:")
A(f"  s_cmp_lg_u32 s{sHALF}, 0\n  s_cbranch_scc1 L_pathS")
F0, tags0 = F.copy(), dict(tags)
segn = (KA.n, VA.n, KB.n, VB.n)

st = Stream([KA] * 5 + [VA] * 5)
for k in range(5):
    if k == 1: gate()
    consume_qk(st, vQA, vS + k, v_issue if k == 2 else (v_check if k == 4 else None))
    if k == 2: gate2()
softmax(5)
stamp(2)
PXR = vTMP + 24
def poll_issue():
    l = lab("pi")
    A(f"  s_cmp_lg_u32 s{sW}, 0\n  s_cbranch_scc1 {l}")
    A(f"  s_lshl_b32 s{sT1}, s{sBH}, 8\n  s_add_u32 s{sT1}, s{sT1}, {WFP}\n  v_mov_b32 v{PXR}, s{sT1}")
    A(f"  global_load_dwordx2 v[{PXR+2}:{PXR+3}], v{PXR}, s[{sWS}:{sWS+1}] sc1")
    A(f"{l}:")
def poll_check():
    l = lab("pc")
    A(f"  s_cmp_lg_u32 s{sW}, 0\n  s_cbranch_scc1 {l}")
    A(f"  s_lshl_b32 s{sT1}, s{sBH}, 8\n  s_add_u32 s{sT1}, s{sT1}, {WFP}\n  v_mov_b32 v{PXR}, s{sT1}")
    A(f"  s_mov_b32 s{sCNT}, 0\n  s_not_b32 s{sT2}, s{sTAG}")
    A(f"{l}a:")
    A(f"  v_readfirstlane_b32 s{sT0}, v{PXR+2}\n  v_readfirstlane_b32 s{sT1}, v{PXR+3}")
    A(f"  s_xor_b32 s{sT0}, s{sT0}, s{sTAG}\n  s_xor_b32 s{sT1}, s{sT1}, s{sT2}\n  s_or_b32 s{sT0}, s{sT0}, s{sT1}\n  s_cbranch_scc0 {l}b")
    A(f"  s_add_u32 s{sCNT}, s{sCNT}, 1\n  s_cmp_gt_u32 s{sCNT}, 0x200000\n  s_cbranch_scc1 {l}b")
    A(f"  global_load_dwordx2 v[{PXR+2}:{PXR+3}], v{PXR}, s[{sWS}:{sWS+1}] sc1\n  s_waitcnt vmcnt(0)\n  s_branch {l}a")
    A(f"{l}b:")
    A(f"  s_lshl_b32 s{sT0}, s{sBH}, 10\n  s_add_u32 s{sT0}, s{sT0}, {WPX}\n  v_add_u32 v{PXR}, s{sT0}, v{vLOFF}")
    A(f"  global_load_dwordx4 {vr(PXR+4)}, v{PXR}, s[{sWS}:{sWS+1}] sc1")
    A(f"{l}:")
for k in range(5):
    hook = None
    if k == 2: hook = poll_issue
    if k == 2 + NH: hook = poll_check
    consume_pv(st, vP + k, k == 0, hook)
if NH == 2:
    pass
store_partial_lds(LO2, LML2)
l = lab("px")
A(f"  s_cmp_lg_u32 s{sW}, 0\n  s_cbranch_scc1 {l}")
A("  s_waitcnt vmcnt(0)")
A(f"  v_add_u32 v{PXR}, {LO2 + 8*512}, v{vLOFF}")
A(f"  s_mov_b32 exec_hi, 0\n  ds_write_b128 v{PXR}, {vr(PXR+4)}")
A(f"  s_mov_b32 exec_lo, 0\n  s_mov_b32 exec_hi, 1\n  v_mov_b32 v{PXR}, {LML2 + 64}\n  ds_write_b64 v{PXR}, v[{PXR+4}:{PXR+5}]")
A("  s_mov_b64 exec, -1")
A(f"{l}:")
stamp(4)
A("  s_waitcnt lgkmcnt(0)\n  s_barrier")
combine(LO2, LML2, 9, True)
A("  s_branch L_tail")

A("L_pathS:")
F = F0; tags = tags0
pend.clear()
KA.n, VA.n, KB.n, VB.n = segn
st = Stream([KA] * 3 + [VA] * 3 + [KB] * 2 + [VB] * 2)
for k in range(3):
    if k == 1: gate()
    consume_qk(st, vQA, vS + k)
    if k == 2: gate2()
softmax(3)
stamp(2)
for k in range(3):
    consume_pv(st, vP + k, k == 0, v_issue if k == 0 else (v_check if k == 2 else None))
store_partial_lds(LO1, LML1)
A("  s_waitcnt lgkmcnt(0)\n  s_barrier")
l = lab("pub")
A(f"  s_cmp_lg_u32 s{sW}, 0\n  s_cbranch_scc1 {l}")
combine(LO1, LML1, 8, False)
A(f"  s_lshl_b32 s{sT0}, s{sBH}, 10\n  s_add_u32 s{sT0}, s{sT0}, {WPX}")
A(f"  v_lshl_add_u32 v{vTMP}, v{vN}, 3, v{vG}\n  v_lshlrev_b32 v{vTMP}, 2, v{vTMP}\n  v_add_u32 v{vTMP}, s{sT0}, v{vTMP}")
A(f"  global_store_dword v{vTMP}, v{vTMP+39}, s[{sWS}:{sWS+1}] sc1")
A(f"  global_store_dword v{vTMP}, v{vTMP+40}, s[{sWS}:{sWS+1}] offset:16 sc1")
A(f"  v_mov_b32 v{vTMP+2}, v{vTMP+41}\n  v_mov_b32 v{vTMP+3}, v{vTMP+42}")
A(f"  s_mov_b64 exec, 1\n  global_store_dwordx2 v{vTMP}, v[{vTMP+2}:{vTMP+3}], s[{sWS}:{sWS+1}] offset:512 sc1\n  s_mov_b64 exec, -1")
A(f"{l}:")
stamp(3)
pubmark = F.total
build_q(1)
consume_qk(st, vQB, vS + 0)
def signal():
    l = lab("sig")
    A(f"  s_cmp_lg_u32 s{sW}, 0\n  s_cbranch_scc1 {l}")
    A(f"  s_waitcnt vmcnt({F.total - pubmark})")
    A(f"  s_lshl_b32 s{sT1}, s{sBH}, 8\n  s_add_u32 s{sT1}, s{sT1}, {WFP}")
    A(f"  v_mov_b32 v{vTMP+8}, s{sT1}\n  v_mov_b32 v{vTMP+10}, s{sTAG}\n  v_not_b32 v{vTMP+11}, v{vTMP+10}")
    A(f"  s_mov_b64 exec, 1\n  global_store_dwordx2 v{vTMP+8}, v[{vTMP+10}:{vTMP+11}], s[{sWS}:{sWS+1}] sc1\n  s_mov_b64 exec, -1")
    A(f"{l}:")
signal()
consume_qk(st, vQB, vS + 1)
softmax(2)
for k in range(2):
    consume_pv(st, vP + k, k == 0)
store_partial_lds(LO2, LML2)
stamp(4)
A("  s_waitcnt lgkmcnt(0)\n  s_barrier")
combine(LO2, LML2, 8, True)

A("L_tail:")
if "notail" in opts: A("  s_branch L_end")
A(f"  v_cvt_pk_bf16_f32 v{vP}, v{vTMP+39}, v{vTMP+39}\n  v_cvt_pk_bf16_f32 v{vP+1}, v{vTMP+40}, v{vTMP+40}")
LH = 16 * lasthalf[0]
A(f"  ds_read_b128 {slot(LH+15)}, v{vT} offset:{LWO + 1024*15}")
A("  s_nop 0")
build_aop(vAOP, vP, 0, vP + 1)
for i in range(16):
    if i < 15: build_aop(vAOP + 4 * ((i + 1) & 1), vP, i + 1, vP + 1)
    else: A("  s_waitcnt lgkmcnt(0)")
    c = "0" if i == 0 else vr(vACC)
    A(f"  v_mfma_f32_16x16x32_bf16 {vr(vACC)}, {vr(vAOP + 4 * (i & 1))}, {slot(LH+i)}, {c}")
A(f"  s_lshl_b32 s{sT0}, s{sB}, 1\n  s_add_u32 s{sT0}, s{sT0}, s{sHALF}\n  s_lshl_b32 s{sT0}, s{sT0}, 5\n  s_add_u32 s{sT0}, s{sT0}, s{sH}\n  s_lshl_b32 s{sT0}, s{sT0}, 11")
A(f"  s_lshl_b32 s{sT1}, s{sW}, 8\n  s_add_u32 s{sT0}, s{sT0}, s{sT1}")
A(f"  v_lshlrev_b32 v{vTMP+8}, 5, v{vN}\n  v_lshl_add_u32 v{vTMP+8}, v{vG}, 4, v{vTMP+8}\n  v_add_u32 v{vTMP+8}, s{sT0}, v{vTMP+8}")
for b in range(4): A(f"  v_mov_b32 v{vTMP+b}, 0")
A("  s_nop 1")
for b in range(4): A(f"  v_permlane32_swap_b32 v{vACC+b}, v{vTMP+b}")
A("  s_nop 1")
for b in range(4): A(f"  v_add_f32_dpp v{vTMP+4+b}, v{vTMP+b}, v{vACC+b} row_shl:8 {DPPM}")
A(f"  v_mov_b32 v{vTMP+9}, 0x7fc00000")
for b in range(4):
    A(f"  v_cmp_eq_u32 vcc, -1, v{vTMP+4+b}\n  s_nop 1\n  v_cndmask_b32 v{vTMP+4+b}, v{vTMP+4+b}, v{vTMP+9}, vcc")
A("  s_mov_b32 exec_lo, 0x00ff00ff\n  s_mov_b32 exec_hi, 0")
A(f"  global_store_dwordx4 v{vTMP+8}, {vr(vTMP+4)}, s[{sWS}:{sWS+1}] sc1")
A("  s_mov_b64 exec, -1")
if "nofinal" in opts: A("  s_branch L_end")
A(f"  s_cmp_lg_u32 s{sW}, 0\n  s_cbranch_scc1 L_end")
stamp(5)
A(f"  s_lshl_b32 s{sT0}, s{sHALF}, 5\n  s_add_u32 s{sT0}, s{sT0}, s{sH}")
A(f"  s_lshl_b32 s{sT1}, s{sB}, 17\n  s_lshl_b32 s{sT2}, s{sT0}, 5\n  s_add_u32 s{sT1}, s{sT1}, s{sT2}")
A(f"  v_lshrrev_b32 v{vT}, 3, v{vLANE}\n  v_lshlrev_b32 v{vT}, 14, v{vT}\n  v_and_b32 v{vTMP+21}, 7, v{vLANE}\n  v_lshl_add_u32 v{vT}, v{vTMP+21}, 2, v{vT}\n  v_add_u32 v{vT}, s{sT1}, v{vT}")
for k in range(1, 4): A(f"  v_add_u32 v{vTMP+21+k}, {4096*k}, v{vT}")
lf = lab("fpoll")
A(f"  s_mov_b32 s{sCNT}, 0")
A(f"{lf}:")
for k in range(8):
    a = vT if k < 2 else vTMP + 21 + k // 2
    A(f"  global_load_dword v{vTMP+12+k}, v{a}, s[{sWS}:{sWS+1}] offset:{2048*(k&1)} sc1")
A("  s_waitcnt vmcnt(0)")
A(f"  v_max3_u32 v{vTMP+20}, v{vTMP+12}, v{vTMP+13}, v{vTMP+14}\n  v_max3_u32 v{vTMP+20}, v{vTMP+20}, v{vTMP+15}, v{vTMP+16}")
A(f"  v_max3_u32 v{vTMP+20}, v{vTMP+20}, v{vTMP+17}, v{vTMP+18}\n  v_max_u32 v{vTMP+20}, v{vTMP+20}, v{vTMP+19}")
A(f"  v_cmp_eq_u32 vcc, -1, v{vTMP+20}")
A(f"  s_add_u32 s{sCNT}, s{sCNT}, 1\n  s_cmp_gt_u32 s{sCNT}, 0x200000\n  s_cbranch_scc1 {lf}x")
A(f"  s_and_b64 exec, exec, vcc\n  s_cbranch_execnz {lf}")
A(f"{lf}x:")
A("  s_mov_b64 exec, -1")
t = vTMP
A(f"  v_add_f32 v{t}, v{t+12}, v{t+13}\n  v_add_f32 v{t+1}, v{t+14}, v{t+15}\n  v_add_f32 v{t+2}, v{t+16}, v{t+17}\n  v_add_f32 v{t+3}, v{t+18}, v{t+19}")
A(f"  v_add_f32 v{t}, v{t}, v{t+1}\n  v_add_f32 v{t+2}, v{t+2}, v{t+3}\n  v_add_f32 v{t}, v{t}, v{t+2}")
A(f"  s_mov_b32 s{sEX}, 0\n  s_mov_b32 s{sEX+1}, -1")
A(f"  v_add_f32_dpp v{t}, v{t}, v{t} row_ror:8 {DPPM}")
A(f"  v_cndmask_b32 v{t+4}, v{vGATE}, v{vOMG}, s[{sEX}:{sEX+1}]")
A(f"  v_mov_b32 v{t+1}, v{t}\n  s_nop 1\n  v_permlane16_swap_b32 v{t}, v{t+1}\n  s_nop 1\n  v_add_f32 v{t}, v{t}, v{t+1}")
round_bf16([t])
A(f"  v_mul_f32 v{t}, v{t+4}, v{t}")
round_bf16([t])
A(f"  v_mov_b32 v{t+1}, v{t}\n  s_nop 1\n  v_permlane32_swap_b32 v{t}, v{t+1}\n  s_nop 1\n  v_add_f32 v{t}, v{t}, v{t+1}")
A(f"  v_cvt_pk_bf16_f32 v{t}, v{t}, v{t}")
A(f"  s_lshl_b32 s{sT1}, s{sB}, 10\n  s_lshl_b32 s{sT0}, s{sT0}, 4\n  s_add_u32 s{sT0}, s{sT0}, s{sT1}")
A(f"  v_lshlrev_b32 v{vT}, 1, v{vLANE}\n  v_add_u32 v{vT}, s{sT0}, v{vT}")
A("  s_mov_b64 exec, 0xff")
A(f"  global_store_short v{vT}, v{t}, s[{sOUT}:{sOUT+1}]")
if STAMP:
    A("  s_mov_b64 exec, -1")
    stamp(6, True)
A("L_end:\n  s_endpgm")

kernels = [(KN, NVGPR, 96)]
if STAMP:
    A(".globl agg_kernel\n.p2align 8\n.type agg_kernel,@function\nagg_kernel:")
    A("  s_cmp_lg_u32 s2, 0\n  s_cbranch_scc1 L_end2")
    A("  s_load_dwordx4 s[20:23], s[0:1], 96")
    if "xcd" in opts:
        A(f"  v_lshlrev_b32 v1, 5, v0\n  v_add_u32 v1, {WST}, v1")
        A("  s_waitcnt lgkmcnt(0)")
        for k in range(4):
            A(f"  global_load_dword v{8+k}, v1, s[22:23] offset:{20 + 2048*(k&1)}")
            A(f"  global_load_dword v{12+k}, v1, s[22:23] offset:{2048*(k&1)}")
            if k == 1: A("  v_add_u32 v1, 0x1000, v1")
        A("  s_waitcnt vmcnt(0)")
        A("  v_min_u32 v40, v12, v13\n  v_min3_u32 v40, v40, v14, v15")
        wave_reduce("v_min_u32", 40, 24)
        A("  v_max_u32 v8, v8, v9\n  v_max_u32 v10, v10, v11")
        for r in (8, 10):
            A(f"  s_nop 1\n  v_max_u32_dpp v{r}, v{r}, v{r} row_ror:8 {DPPM}")
            for sw in ("v_permlane16_swap_b32", "v_permlane32_swap_b32"):
                A(f"  v_mov_b32 v20, v{r}\n  s_nop 1\n  {sw} v{r}, v20\n  s_nop 1\n  v_max_u32 v{r}, v{r}, v20")
            A(f"  v_subrev_u32 v{r}, s24, v{r}")
        A("  v_lshlrev_b32 v1, 2, v0\n  s_mov_b64 exec, 0xff")
        A("  global_store_dword v1, v8, s[20:21]\n  global_store_dword v1, v10, s[20:21] offset:32")
    else:
        A(f"  v_lshlrev_b32 v1, 7, v0\n  v_add_u32 v1, {WST}, v1")
        A("  s_waitcnt lgkmcnt(0)")
        for k in range(8):
            A(f"  global_load_dwordx4 v[{8+4*k}:{11+4*k}], v1, s[22:23] offset:{16*k}")
        A("  s_waitcnt vmcnt(0)")
        for k in range(8):
            A(f"  v_min_u32 v40, v{8+k}, v{16+k}\n  v_min3_u32 v40, v40, v{24+k}, v{32+k}")
            A(f"  v_max_u32 v41, v{8+k}, v{16+k}\n  v_max3_u32 v41, v41, v{24+k}, v{32+k}")
            wave_reduce("v_min_u32", 40, 24)
            wave_reduce("v_max_u32", 41, 25)
            A(f"  v_mov_b32 v42, s24\n  v_mov_b32 v43, s25\n  v_mov_b32 v44, {8*k}")
            A("  s_mov_b64 exec, 1\n  global_store_dwordx2 v44, v[42:43], s[20:21]\n  s_mov_b64 exec, -1")
    A("L_end2:\n  s_endpgm")
    kernels.append(("agg_kernel", 48, 32))
A('.section .rodata,"a"')
for name, nv, ns in kernels:
    A(f""".p2align 6
.amdhsa_kernel {name}
  .amdhsa_next_free_vgpr {nv}
  .amdhsa_next_free_sgpr {ns}
  .amdhsa_accum_offset {(nv+3)//4*4}
  .amdhsa_group_segment_fixed_size 0
  .amdhsa_kernarg_size 112
  .amdhsa_user_sgpr_count 2
  .amdhsa_user_sgpr_kernarg_segment_ptr 1
  .amdhsa_system_sgpr_workgroup_id_x 1
  .amdhsa_float_denorm_mode_32 3
.end_amdhsa_kernel""")
open(out, "w").write("\n".join(L) + "\n")
```

```python
import sys
out = sys.argv[1]
opts = sys.argv[2:]
STAMP = "stamp" in opts or "qstamp" in opts
QST = "qstamp" in opts
NH = 2 if 'nh2' in opts else 1
WIN = 4
for o in opts:
    if o.startswith("win"): WIN = int(o[3:])
PRE = 2
for o in opts:
    if o.startswith("pre"): PRE = int(o[3:])
KPOL = "nt"
L = []
def A(s): L.append(s)
KN = "gated_mix__mha_block_cached__sliding_block_cached__decode_kernel"

for line in open("gated_mix__mha_block_cached__sliding_block_cached__decode.s.ref").read().split("\n"):
    if line.startswith(";") and "@launch" not in line:
        A(line)
LWO = 0
LQP = 131072
LQ = LQP + 16384
LO1 = LQ + 512
LML1 = LO1 + 9 * 512
LO2 = LML1 + 128
LML2 = LO2 + 9 * 512
LFLAG = LML2 + 128
LDS_BYTES = LFLAG + 64
assert LDS_BYTES <= 163840
if STAMP:
    A(f"; @launch kernel={KN} grid=(256,1,1) block=(512,1,1) lds={LDS_BYTES}")
    A("; @launch kernel=agg_kernel grid=(1,1,1) block=(64,1,1) lds=0")
else:
    A(f"; @launch grid=(256,1,1) block=(512,1,1) lds={LDS_BYTES}")
A('.amdgcn_target "amdgcn-amd-amdhsa--gfx950"\n.text')

LOG2E = 0x3fb8aa3b
SCALE = 0x3db504f3
WY, WQP, WPX, WST = 0, 0x80000, 0x100000, 0x200000
WFQ, WFP, WFF = 0x140000, 0x150000, 0x160000

class Fifo:
    def __init__(self): self.q = []; self.total = 0
    def issue(self, tag): self.q.append(tag); self.total += 1
    def wait(self, tag):
        if tag not in self.q: return
        idx = self.q.index(tag)
        n = len(self.q) - 1 - idx
        assert n <= 63
        A(f"  s_waitcnt vmcnt({n})")
        self.q = self.q[idx + 1:]
    def copy(self):
        f = Fifo(); f.q = list(self.q); f.total = self.total; return f
F = Fifo()

vLANE, vKOFF, vLOFF, vWQOFF, vWOOFF = 1, 2, 3, 4, 5
vMASK = 6
vN, vG = 10, 11
vLOG2E, vSCALE = 12, 13
vT = 14
vGATE, vOMG = 15, 0
vQA = vQB = 16
vD = 32
vS = 48
vP = 53
vAOP = 60
vACC = 68
vACC2 = 72
vTMP = 76
RING = 124
NSLOT = 16 * NH
NVGPR = RING + 4 * NSLOT
def slot(i): return f"v[{RING+4*i}:{RING+4*i+3}]"
def vr(b, n=4): return f"v[{b}:{b+n-1}]"

sW = 3
sX, sAK, sAV, sAWQ, sAWO = 8, 10, 12, 14, 16
sGW, sOUT = 4, 6
sBK, sBV, sBWQ, sBWO = 20, 22, 24, 26
sDBG, sWS = 28, 30
sKA, sVA, sKB, sVB, sWQ, sWO = 32, 34, 36, 38, 40, 42
sM1, sM2, sM3 = 44, 46, 48
sC0 = 50
sU = 58
sH, sB, sHALF, sBH = 60, 61, 62, 63
sT0, sT1, sT2, sT3 = 64, 65, 66, 67
sMX, sL = 68, 69
sEX = 70
sST = 72
sCNT = 78
sTAG = 79

DPPM = "row_mask:0xf bank_mask:0xf"
uid = [0]
def lab(p):
    uid[0] += 1
    return f"L_{p}{uid[0]}"

def qs(k):
    if QST: A(f"  s_memrealtime s[{80+2*k}:{81+2*k}]")
def qs_flush(n):
    if not QST: return
    A("  s_waitcnt lgkmcnt(0)")
    A(f"  s_mov_b64 exec, 1")
    A(f"  s_lshl_b32 s{sST+1}, s2, 5\n  s_add_u32 s{sST+1}, s{sST+1}, {WST}")
    A(f"  v_mov_b32 v{vTMP+47}, s{sST+1}")
    A(f"  v_mov_b32 v{vTMP+46}, s{sST+4}\n  global_store_dword v{vTMP+47}, v{vTMP+46}, s[{sWS}:{sWS+1}]")
    for k in range(n):
        A(f"  v_mov_b32 v{vTMP+46}, s{80+2*k}\n  global_store_dword v{vTMP+47}, v{vTMP+46}, s[{sWS}:{sWS+1}] offset:{4*(k+1)}")
    A(f"  s_mov_b64 exec, -1")
def stamp(k, drain=False):
    if not STAMP or QST: return
    l = lab("st")
    A(f"  s_cmp_lg_u32 s{sW}, 0\n  s_cbranch_scc1 {l}")
    if drain: A("  s_waitcnt vmcnt(0)")
    A(f"  s_memrealtime s[{sST}:{sST+1}]\n  s_waitcnt lgkmcnt(0)")
    if k == 0: A(f"  s_mov_b32 s{sST}, s{sST+4}")
    A(f"  s_mov_b64 s[{sST+2}:{sST+3}], exec\n  s_mov_b64 exec, 1")
    A(f"  s_lshl_b32 s{sST+1}, s2, 5\n  s_add_u32 s{sST+1}, s{sST+1}, {WST + 4*k}")
    A(f"  v_mov_b32 v{vTMP+46}, s{sST}\n  v_mov_b32 v{vTMP+47}, s{sST+1}")
    A(f"  global_store_dword v{vTMP+47}, v{vTMP+46}, s[{sWS}:{sWS+1}]")
    if k == 0:
        for kk in range(1, 8):
            A(f"  global_store_dword v{vTMP+47}, v{vTMP+46}, s[{sWS}:{sWS+1}] offset:{4*kk}")
    A(f"  s_mov_b64 exec, s[{sST+2}:{sST+3}]")
    A(f"{l}:")

A(f".globl {KN}\n.p2align 8\n.type {KN},@function\n{KN}:")
A("  s_cmp_ge_u32 s2, 256\n  s_cbranch_scc1 L_end")
if STAMP: A(f"  s_memrealtime s[{sST+4}:{sST+5}]")
A("  s_load_dwordx8 s[8:15], s[0:1], 0")
A("  s_load_dwordx2 s[16:17], s[0:1], 32")
A("  s_load_dwordx8 s[20:27], s[0:1], 48")
A("  s_load_dwordx4 s[4:7], s[0:1], 80")
A("  s_load_dwordx4 s[28:31], s[0:1], 96")
A(f"  v_lshrrev_b32 v{vT}, 6, v0")
A(f"  v_and_b32 v{vLANE}, 63, v0")
A(f"  v_readfirstlane_b32 s{sW}, v{vT}")
A(f"  v_and_b32 v{vN}, 15, v{vLANE}")
A(f"  v_lshrrev_b32 v{vG}, 4, v{vLANE}")
A(f"  v_bfe_u32 v{vT}, v{vLANE}, 2, 2")
A(f"  v_lshlrev_b32 v{vKOFF}, 8, v{vT}")
A(f"  v_lshl_add_u32 v{vKOFF}, v{vG}, 6, v{vKOFF}")
A(f"  v_and_b32 v{vT}, 3, v{vLANE}")
A(f"  v_lshl_add_u32 v{vKOFF}, v{vT}, 4, v{vKOFF}")
A(f"  v_lshlrev_b32 v{vLOFF}, 4, v{vLANE}")
A(f"  v_lshlrev_b32 v{vWQOFF}, 13, v{vG}")
A(f"  v_lshl_add_u32 v{vWQOFF}, v{vN}, 4, v{vWQOFF}")
A(f"  v_lshrrev_b32 v{vT}, 3, v{vN}")
A(f"  v_lshl_add_u32 v{vT}, v{vT}, 2, v{vG}")
A(f"  v_lshlrev_b32 v{vWOOFF}, 10, v{vT}")
A(f"  v_and_b32 v{vT}, 7, v{vN}")
A(f"  v_lshl_add_u32 v{vWOOFF}, v{vT}, 4, v{vWOOFF}")
A(f"  s_and_b32 s{sH}, s2, 7\n  s_lshl_b32 s{sH}, s{sH}, 2\n  s_bfe_u32 s{sT0}, s2, 0x20003\n  s_add_u32 s{sH}, s{sH}, s{sT0}")
A(f"  s_bfe_u32 s{sB}, s2, 0x20005")
A(f"  s_lshr_b32 s{sHALF}, s2, 7")
A(f"  s_lshl_b32 s{sBH}, s{sB}, 5\n  s_add_u32 s{sBH}, s{sBH}, s{sH}")
A(f"  s_lshl_b32 s{sT0}, s{sBH}, 20\n  s_lshl_b32 s{sT1}, s{sW}, 13\n  s_add_u32 s{sT0}, s{sT0}, s{sT1}\n  s_add_u32 s{sT0}, s{sT0}, 4096")
A(f"  s_mul_i32 s{sT1}, s{sHALF}, {2560*256}\n  s_add_u32 s{sT1}, s{sT1}, s{sT0}      ; A off")
A(f"  s_add_u32 s{sT2}, s{sT0}, {3072*256}    ; B off")
A(f"  s_lshl_b32 s{sT3}, s{sB}, 8\n  s_lshl_b32 s{sT0}, s{sW}, 5\n  s_add_u32 s{sT3}, s{sT3}, s{sT0}")
A(f"  v_lshrrev_b32 v{vT}, 3, v{vN}\n  v_lshlrev_b32 v{vT}, 10, v{vT}\n  v_lshl_add_u32 v{vT}, v{vG}, 1, v{vT}\n  v_add_u32 v{vT}, s{sT3}, v{vT}")
A("  s_waitcnt lgkmcnt(0)")
ltag = lab("tag")
A(f"  s_or_b32 s92, s{sB}, s{sHALF}\n  s_or_b32 s92, s92, s{sW}\n  s_cmp_lg_u32 s92, 0\n  s_cbranch_scc1 {ltag}")
A(f"  s_memrealtime s[92:93]\n  s_waitcnt lgkmcnt(0)\n  s_or_b32 s92, s92, 1")
A(f"  s_lshl_b32 s93, s{sH}, 2\n  v_mov_b32 v{vD}, s93\n  v_mov_b32 v{vD+1}, s92")
A(f"  s_mov_b64 exec, 1\n  global_store_dword v{vD}, v{vD+1}, s[{sDBG}:{sDBG+1}] sc1\n  s_mov_b64 exec, -1")
A(f"{ltag}:")
vXW = vTMP + 32
for p in range(2):
    for i in range(4):
        A(f"  global_load_ushort v{vXW+4*p+i}, v{vT}, s[{sX}:{sX+1}] offset:{2048*p + 8*i}")
        F.issue(("xw", p, i))
def add64(d, base, off):
    A(f"  s_add_u32 s{d}, s{base}, s{off}\n  s_addc_u32 s{d+1}, s{base+1}, 0")
A(f"  s_cmp_eq_u32 s{sHALF}, 0")
A(f"  s_cselect_b32 s{sWQ}, s{sAWQ}, s{sBWQ}\n  s_cselect_b32 s{sWQ+1}, s{sAWQ+1}, s{sBWQ+1}")
A(f"  s_cselect_b32 s{sWO}, s{sAWO}, s{sBWO}\n  s_cselect_b32 s{sWO+1}, s{sAWO+1}, s{sBWO+1}")
A(f"  s_lshl_b32 s{sT0}, s{sT3}, 12\n  s_lshl_b32 s{sT3}, s{sH}, 8\n  s_add_u32 s{sT0}, s{sT0}, s{sT3}")
add64(sWQ, sWQ, sT0)
vWQ = vTMP
for i in range(4):
    A(f"  global_load_dwordx4 {vr(vWQ+4*i)}, v{vWQOFF}, s[{sWQ}:{sWQ+1}] nt")
    F.issue(("wq", i))
    if i < 3: A(f"  s_add_u32 s{sWQ}, s{sWQ}, 0x8000\n  s_addc_u32 s{sWQ+1}, s{sWQ+1}, 0")
add64(sKA, sAK, sT1); add64(sVA, sAV, sT1); add64(sKB, sBK, sT2); add64(sVB, sBV, sT2)
A(f"  s_lshl_b32 s{sT0}, s{sH}, 17\n  s_lshl_b32 s{sT1}, s{sW}, 7\n  s_add_u32 s{sT0}, s{sT0}, s{sT1}")
add64(sWO, sWO, sT0)

class Seg:
    def __init__(self, name, sbase, kind):
        self.name, self.sbase, self.kind, self.n = name, sbase, kind, 0
    def load(self, sl):
        j = self.n; self.n += 1
        tag = (self.name, j)
        voff = vKOFF if self.kind == "k" else vLOFF
        i = j % 8
        A(f"  global_load_dwordx4 {slot(sl)}, v{voff}, s[{self.sbase}:{self.sbase+1}] offset:{-4096+1024*i} {KPOL}")
        if i == 7:
            A(f"  s_add_u32 s{self.sbase}, s{self.sbase}, 0x10000\n  s_addc_u32 s{self.sbase+1}, s{self.sbase+1}, 0")
        F.issue(tag)
        return tag

NODMA = "nodma" in opts
DMAPOL = "nt"
for o in opts:
    if o.startswith("dmapol="): DMAPOL = o[7:].replace("none", "").replace("+", " ")
DMAFIRST = "dmafirst" in opts
DMALATE = "dmaearly" not in opts
DWIN = WIN
for o in opts:
    if o.startswith("dwin"): DWIN = int(o[4:])
def prefetch_rest():
    A(f"  s_lshl_b32 s{sT0}, s{sW}, 14")
    def ring():
        for t in range(PRE, NSLOT):
            if WIN < 32: A(f"  s_waitcnt vmcnt({WIN-1})")
            tags[t] = KA.load(t)
    def dma():
        if NODMA: return
        for i in range(16):
            A(f"  s_add_u32 m0, s{sT0}, {LWO + 1024*i}")
            if DWIN < 32: A(f"  s_waitcnt vmcnt({DWIN-1})")
            else: A("  s_nop 0")
            A(f"  global_load_lds_dwordx4 v{vWOOFF}, s[{sWO}:{sWO+1}] {DMAPOL}")
            F.issue(("dma", i))
            if i < 15: A(f"  s_add_u32 s{sWO}, s{sWO}, 0x2000\n  s_addc_u32 s{sWO+1}, s{sWO+1}, 0")
    if DMALATE: ring()
    elif DMAFIRST: dma(); ring()
    else: ring(); dma()
def dma_one(i):
    A(f"  s_lshl_b32 s{sT0}, s{sW}, 14\n  s_add_u32 m0, s{sT0}, {LWO + 1024*i}")
    A("  s_nop 0")
    A(f"  global_load_lds_dwordx4 v{vWOOFF}, s[{sWO}:{sWO+1}] {DMAPOL}")
    F.issue(("dma", i))
    if i < 15: A(f"  s_add_u32 s{sWO}, s{sWO}, 0x2000\n  s_addc_u32 s{sWO+1}, s{sWO+1}, 0")

KA, VA, KB, VB = Seg("KA", sKA, "k"), Seg("VA", sVA, "v"), Seg("KB", sKB, "k"), Seg("VB", sVB, "v")
tags = {}
for t in range(PRE):
    tags[t] = KA.load(t)
A(f"  v_mov_b32 v{vLOG2E}, {LOG2E:#x}\n  v_mov_b32 v{vSCALE}, {SCALE:#x}")
A(f"  v_and_b32 v{vT}, 1, v{vN}\n  v_lshlrev_b32 v{vT}, 4, v{vT}")
A(f"  v_mov_b32 v{vD}, 0xffff\n  v_lshlrev_b32 v{vD}, v{vT}, v{vD}")
A(f"  v_bfe_u32 v{vT}, v{vN}, 1, 2")
for w in range(4):
    A(f"  v_cmp_eq_u32 vcc, {w}, v{vT}\n  s_nop 1\n  v_cndmask_b32 v{vMASK+w}, 0, v{vD}, vcc")
for t, s in ((1, sM1), (2, sM2), (3, sM3)):
    m = 0x11111111 << t
    A(f"  s_mov_b32 s{s}, {m:#x}\n  s_mov_b32 s{s+1}, {m:#x}")
for i in range(4):
    m = 0x000f000f << (4 * i)
    A(f"  s_mov_b32 s{sC0+2*i}, {m:#x}\n  s_mov_b32 s{sC0+2*i+1}, {m:#x}")
A(f"  s_mov_b32 s{sU}, 0xff00ff00\n  s_mov_b32 s{sU+1}, 0xff00ff00")
F.wait(("wq", 3))
qs(0)
for k in range(8):
    A(f"  v_lshl_or_b32 v{vXW+k}, v{vXW+k}, 16, v{vXW+k}")
for p in range(2):
    acc = vACC if p == 0 else vACC2
    for i in range(4):
        ao = vAOP + 4 * (i & 1)
        for w in range(4):
            A(f"  v_and_b32 v{ao+w}, v{vXW+4*p+i}, v{vMASK+w}")
        A("  s_nop 1")
        c = "0" if i == 0 else vr(acc)
        A(f"  v_mfma_f32_16x16x32_bf16 {vr(acc)}, {vr(ao)}, {vr(vWQ+4*i)}, {c}")
A(f"  v_lshrrev_b32 v{vT}, 1, v{vG}\n  v_lshlrev_b32 v{vT}, 9, v{vT}\n  v_lshl_add_u32 v{vT}, v{vN}, 5, v{vT}")
A(f"  v_and_b32 v{vD}, 1, v{vG}\n  v_lshl_add_u32 v{vT}, v{vD}, 4, v{vT}")
A(f"  s_lshl_b32 s{sT0}, s{sW}, 11\n  s_add_u32 s{sT0}, s{sT0}, {LQP}\n  v_add_u32 v{vT}, s{sT0}, v{vT}")
A("  s_nop 4")
A(f"  ds_write_b128 v{vT}, {vr(vACC)}\n  ds_write_b128 v{vT}, {vr(vACC2)} offset:1024")
A("  s_waitcnt lgkmcnt(0)\n  s_barrier")
lq = lab("qdone")
lpf = lab("pf")
A(f"  s_cmp_lg_u32 s{sW}, 0\n  s_cbranch_scc1 {lpf}")
qs(1)
A(f"  v_add_u32 v{vT}, {LQP}, v{vLOFF}")
for hh in range(2):
    for w in range(8):
        A(f"  ds_read_b128 {vr(vTMP+4*w)}, v{vT} offset:{w*2048 + hh*1024}")
    A("  s_waitcnt lgkmcnt(0)")
    d = vACC if hh == 0 else vACC2
    for e in range(4):
        A(f"  v_add_f32 v{d+e}, v{vTMP+e}, v{vTMP+4+e}")
        for w in range(2, 8):
            A(f"  v_add_f32 v{d+e}, v{d+e}, v{vTMP+4*w+e}")
A(f"  s_lshl_b32 s{sT0}, s{sB}, 1\n  s_add_u32 s{sT0}, s{sT0}, s{sHALF}\n  s_lshl_b32 s{sT0}, s{sT0}, 5\n  s_add_u32 s{sT0}, s{sT0}, s{sH}\n  s_lshl_b32 s{sT0}, s{sT0}, 11")
A(f"  v_add_u32 v{vT}, s{sT0}, v{vLOFF}")
for e in range(4): A(f"  v_mov_b32 v{vD+8+e}, -1")
A(f"  global_store_dwordx4 v{vT}, {vr(vD+8)}, s[{sWS}:{sWS+1}] sc1")
A(f"  global_store_dwordx4 v{vT}, {vr(vD+8)}, s[{sWS}:{sWS+1}] offset:1024 sc1")
A(f"  s_lshl_b32 s{sT0}, s{sH}, 1\n  s_add_u32 s{sT0}, s{sT0}, s{sHALF}\n  s_lshl_b32 s{sT0}, s{sT0}, 2\n  s_add_u32 s{sT0}, s{sT0}, s{sB}\n  s_lshl_b32 s{sT0}, s{sT0}, 11\n  s_add_u32 s{sT0}, s{sT0}, {WQP}")
A(f"  v_add_u32 v{vT}, s{sT0}, v{vLOFF}")
A(f"  global_store_dwordx4 v{vT}, {vr(vACC)}, s[{sWS}:{sWS+1}] sc1")
A(f"  global_store_dwordx4 v{vT}, {vr(vACC2)}, s[{sWS}:{sWS+1}] offset:1024 sc1")
A(f"  s_lshl_b32 s{sT1}, s{sH}, 2\n  v_mov_b32 v{vD}, s{sT1}")
lt = lab("tpoll")
A(f"  s_mov_b32 s{sCNT}, 0")
A(f"{lt}:")
A(f"  s_mov_b64 exec, 1\n  global_load_dword v{vD+1}, v{vD}, s[{sDBG}:{sDBG+1}] sc1\n  s_mov_b64 exec, -1")
A("  s_waitcnt vmcnt(0)")
A(f"  v_readfirstlane_b32 s{sTAG}, v{vD+1}")
A(f"  s_add_u32 s{sCNT}, s{sCNT}, 1\n  s_cmp_gt_u32 s{sCNT}, 0x200000\n  s_cbranch_scc1 {lt}x")
A(f"  s_cmp_eq_u32 s{sTAG}, 0\n  s_cbranch_scc1 {lt}")
A(f"{lt}x:")
qs(2)
A(f"  s_lshl_b32 s{sT0}, s{sHALF}, 2\n  s_add_u32 s{sT0}, s{sT0}, s{sB}\n  s_lshl_b32 s{sT0}, s{sT0}, 3\n  s_lshl_b32 s{sT1}, s{sH}, 8\n  s_add_u32 s{sT1}, s{sT1}, {WFQ}\n  s_add_u32 s{sT0}, s{sT0}, s{sT1}")
A(f"  v_mov_b32 v{vD+4}, s{sTAG}\n  v_not_b32 v{vD+5}, v{vD+4}\n  v_mov_b32 v{vD}, s{sT0}")
A(f"  s_mov_b64 exec, 1\n  global_store_dwordx2 v{vD}, v[{vD+4}:{vD+5}], s[{sWS}:{sWS+1}] sc1\n  s_mov_b64 exec, -1")
A(f"  v_lshlrev_b32 v{vD}, 3, v{vLANE}\n  v_add_u32 v{vD}, s{sT1}, v{vD}")
A(f"  v_lshrrev_b32 v{vT}, 5, v{vLANE}\n  v_lshlrev_b32 v{vT}, 13, v{vT}\n  v_and_b32 v{vD+2}, 31, v{vLANE}\n  v_lshl_add_u32 v{vT}, v{vD+2}, 4, v{vT}")
A(f"  s_lshl_b32 s{sT0}, s{sH}, 14\n  s_lshl_b32 s{sT2}, s{sB}, 9\n  s_add_u32 s{sT0}, s{sT0}, s{sT2}\n  s_add_u32 s{sT0}, s{sT0}, {WQP}")
A(f"  v_add_u32 v{vT}, s{sT0}, v{vT}")
A(f"  v_add_u32 v{vD+3}, 0x1000, v{vT}")
lp = lab("qpoll")
A(f"  s_mov_b32 s{sCNT}, 0")
A(f"  s_cmp_eq_u32 s{sHALF}, 0\n  s_cselect_b32 s{sT2}, 0xf, 0xff")
A(f"{lp}:")
A(f"  s_mov_b64 exec, 0xff\n  global_load_dwordx2 v[{vD+6}:{vD+7}], v{vD}, s[{sWS}:{sWS+1}] sc1")
A("  s_waitcnt vmcnt(0)")
A(f"  v_cmp_eq_u64 vcc, v[{vD+6}:{vD+7}], v[{vD+4}:{vD+5}]\n  s_mov_b64 exec, -1")
A(f"  s_and_b32 s{sT0}, vcc_lo, s{sT2}")
A(f"  s_add_u32 s{sCNT}, s{sCNT}, 1\n  s_cmp_gt_u32 s{sCNT}, 0x200000\n  s_cbranch_scc1 {lp}x")
if "noqwait" not in opts: A(f"  s_cmp_lg_u32 s{sT0}, s{sT2}\n  s_cbranch_scc1 {lp}")
A(f"{lp}x:")
qs(3)
for rq in range(4):
    if rq < 2: A(f"  global_load_dwordx4 {vr(vTMP+4*rq)}, v{vT}, s[{sWS}:{sWS+1}] offset:{2048*rq} sc1")
    else: A(f"  global_load_dwordx4 {vr(vTMP+4*rq)}, v{vD+3}, s[{sWS}:{sWS+1}] offset:{2048*(rq-2)} sc1")
_F, _tags, _n, _WIN, _DWIN = F.copy(), dict(tags), KA.n, WIN, DWIN
WIN = DWIN = 64
t0_ = F.total
prefetch_rest()
nfill = F.total - t0_
F.q, F.total = _F.q, _F.total
tags.clear(); tags.update(_tags); KA.n = _n; WIN, DWIN = _WIN, _DWIN
A(f"  s_waitcnt vmcnt({nfill})")
qs(4)
for e in range(4):
    A(f"  v_add_f32 v{vTMP+e}, v{vTMP+e}, v{vTMP+4+e}\n  v_add_f32 v{vTMP+8+e}, v{vTMP+8+e}, v{vTMP+12+e}\n  v_add_f32 v{vTMP+e}, v{vTMP+e}, v{vTMP+8+e}")
A(f"  v_cvt_pk_bf16_f32 v{vTMP+4}, v{vTMP}, v{vTMP+1}\n  v_cvt_pk_bf16_f32 v{vTMP+5}, v{vTMP+2}, v{vTMP+3}")
A(f"  v_lshlrev_b32 v{vT}, 3, v{vLANE}")
A(f"  ds_write_b64 v{vT}, v[{vTMP+4}:{vTMP+5}] offset:{LQ}" if LQ < 65536 else
  f"  v_add_u32 v{vT}, {LQ}, v{vT}\n  ds_write_b64 v{vT}, v[{vTMP+4}:{vTMP+5}]")
A("  s_waitcnt lgkmcnt(0)")
stamp(0)
stamp(1)
A("  s_barrier")
stamp(7)
qs(5)
qs_flush(6)
A(f"  s_branch {lq}")
A(f"{lpf}:")
prefetch_rest()
A("  s_barrier")
A(f"{lq}:")

def wave_reduce(op, v, sdst):
    for c in ("row_ror:8", "row_ror:4", "row_ror:2", "row_ror:1"):
        A(f"  s_nop 1\n  {op}_dpp v{v}, v{v}, v{v} {c} {DPPM}")
    A(f"  s_nop 1\n  {op}_dpp v{v}, v{v}, v{v} row_bcast:15 row_mask:0xa bank_mask:0xf")
    A(f"  s_nop 1\n  {op}_dpp v{v}, v{v}, v{v} row_bcast:31 row_mask:0xc bank_mask:0xf")
    A(f"  s_nop 0\n  v_readlane_b32 s{sdst}, v{v}, 63\n  s_nop 1")
def round_bf16(regs):
    for r in regs:
        A(f"  v_cvt_pk_bf16_f32 v{r}, v{r}, v{r}\n  v_and_b32 v{r}, 0xffff0000, v{r}")

def build_q(br):
    A(f"  v_and_b32 v{vT}, 3, v{vN}\n  v_lshl_add_u32 v{vT}, v{vG}, 2, v{vT}\n  v_lshlrev_b32 v{vT}, 4, v{vT}\n  v_add_u32 v{vT}, {LQ}, v{vT}")
    A(f"  ds_read_b128 {vr(vTMP)}, v{vT} offset:{256*br}")
    A("  s_waitcnt lgkmcnt(0)")
    for i in range(4):
        for e in range(4):
            A(f"  v_cndmask_b32 v{vQA+4*i+e}, 0, v{vTMP+e}, s[{sC0+2*i}:{sC0+2*i+1}]")
    A("  s_nop 1")
build_q(0)

def build_aop(dst, wreg, bc, two=None):
    if two is None:
        for w in range(4):
            A(f"  v_and_b32_dpp v{dst+w}, v{wreg}, v{vMASK+w} row_newbcast:{bc} {DPPM}")
    else:
        A(f"  v_mov_b32_dpp v{vTMP+44}, v{wreg} row_newbcast:{bc} {DPPM}")
        A(f"  v_mov_b32_dpp v{vTMP+45}, v{two} row_newbcast:{bc} {DPPM}")
        A(f"  v_cndmask_b32 v{vTMP+44}, v{vTMP+44}, v{vTMP+45}, s[{sU}:{sU+1}]")
        for w in range(4):
            A(f"  v_and_b32 v{dst+w}, v{vTMP+44}, v{vMASK+w}")

LAG = 0
for o in opts:
    if o.startswith("lag"): LAG = int(o[3:])
pend = []
def do_refill(sl, refill):
    if refill is not None: pend.append((sl, refill))
    if pend and (len(pend) > LAG or refill is None):
        s2, r2 = pend.pop(0)
        tags[s2] = r2.load(s2)
        return True
    return False

class Stream:
    def __init__(self, seq):
        self.seq = seq; self.k = 0
    def next(self):
        k = self.k; self.k += 1
        half = k % NH
        refill = self.seq[k + NH] if k + NH < len(self.seq) else None
        return half, refill

lasthalf = [0]
def consume_pv(st, preg, first_zero, hook=None):
    half, refill = st.next()
    islast = st.k == len(st.seq)
    if islast: lasthalf[0] = half
    bc = lambda j: (j & 3) * 4 + (j >> 2)
    A("  s_nop 1")
    build_aop(vAOP, preg, bc(0))
    for i in range(16):
        sl = half * 16 + i
        if i < 15: build_aop(vAOP + 4 * ((i + 1) & 1), preg, bc(i + 1))
        else: A("  s_nop 0")
        F.wait(tags[sl])
        c = "0" if (first_zero and i == 0) else vr(vACC)
        A(f"  v_mfma_f32_16x16x32_bf16 {vr(vACC)}, {vr(vAOP + 4 * (i & 1))}, {slot(sl)}, {c}")
        assert not any(p[0] == (sl + 1) % 16 for p in pend[:0])
        do_refill(sl, refill)
        if islast and i > 0:
            if i == 1: A(f"  s_lshl_b32 s{sT0}, s{sW}, 14\n  v_add_u32 v{vT}, s{sT0}, v{vLOFF}")
            A(f"  ds_read_b128 {slot(sl-1)}, v{vT} offset:{LWO + 1024*(i-1)}")
        if hook and i == 0: hook()

def consume_qk(st, q, sdst, hook=None):
    first = st.k == 0
    half, refill = st.next()
    for j in range(16):
        sl = half * 16 + j
        t, i = j >> 2, j & 3
        F.wait(tags[sl])
        c = "0" if i == 0 else vr(vD + 4 * t)
        A(f"  v_mfma_f32_16x16x32_bf16 {vr(vD+4*t)}, {slot(sl)}, {vr(q+4*i)}, {c}")
        do_refill(sl, refill)
        if hook and j == 0: hook()
        if first and DMALATE: dma_one(j)
    A("  s_nop 7")
    for t in range(4):
        d = vTMP + t
        A(f"  v_mov_b32_dpp v{d}, v{vD+4*t} quad_perm:[0,0,0,0] {DPPM}")
        for s in range(1, 4):
            A(f"  v_add_f32_dpp v{d}, v{vD+4*t+s}, v{d} quad_perm:[{s},{s},{s},{s}] {DPPM}")
    A(f"  v_cndmask_b32 v{sdst}, v{vTMP}, v{vTMP+1}, s[{sM1}:{sM1+1}]")
    A(f"  v_cndmask_b32 v{sdst}, v{sdst}, v{vTMP+2}, s[{sM2}:{sM2+1}]")
    A(f"  v_cndmask_b32 v{sdst}, v{sdst}, v{vTMP+3}, s[{sM3}:{sM3+1}]")

def softmax(nb):
    S = [vS + k for k in range(nb)]
    round_bf16(S)
    for r in S: A(f"  v_mul_f32 v{r}, v{r}, v{vSCALE}")
    round_bf16(S)
    for r in S: A(f"  v_mul_f32 v{r}, v{r}, v{vLOG2E}")
    t = vTMP
    A(f"  v_mov_b32 v{t}, v{S[0]}")
    for r in S[1:]: A(f"  v_max_f32 v{t}, v{t}, v{r}")
    wave_reduce("v_max_f32", t, sMX)
    for r in S: A(f"  v_subrev_f32 v{r}, s{sMX}, v{r}")
    for r in S: A(f"  v_exp_f32 v{r}, v{r}")
    A("  s_nop 0")
    for k, r in enumerate(S): A(f"  v_cvt_pk_bf16_f32 v{vP+k}, v{r}, v{r}")
    A(f"  v_mov_b32 v{t}, v{S[0]}")
    for r in S[1:]: A(f"  v_add_f32 v{t}, v{t}, v{r}")
    wave_reduce("v_add_f32", t, sL)

def store_partial_lds(base, mlbase):
    A(f"  v_and_b32 v{vTMP}, 1, v{vG}\n  v_lshlrev_b32 v{vTMP}, 4, v{vTMP}\n  v_lshl_add_u32 v{vTMP}, v{vN}, 5, v{vTMP}")
    A(f"  s_lshl_b32 s{sT0}, s{sW}, 9\n  s_add_u32 s{sT0}, s{sT0}, {base}\n  v_add_u32 v{vTMP}, s{sT0}, v{vTMP}")
    A(f"  s_lshl_b32 s{sT0}, s{sW}, 3\n  s_add_u32 s{sT0}, s{sT0}, {mlbase}")
    A(f"  v_mov_b32 v{vTMP+1}, s{sT0}\n  v_mov_b32 v{vTMP+2}, s{sMX}\n  v_mov_b32 v{vTMP+3}, s{sL}")
    A(f"  ds_write_b64 v{vTMP+1}, v[{vTMP+2}:{vTMP+3}]")
    A("  s_nop 3")
    A(f"  ds_write_b128 v{vTMP}, {vr(vACC)}")

def combine(base, mlbase, nsl, normalise):
    ml = vTMP
    ov = vTMP + 20
    a = vTMP + 38
    A(f"  v_mov_b32 v{a}, {mlbase}")
    for k in range((nsl + 1) // 2):
        A(f"  ds_read_b128 {vr(ml+4*k)}, v{a} offset:{16*k}")
    A(f"  v_lshl_add_u32 v{a+1}, v{vN}, 3, v{vG}\n  v_lshlrev_b32 v{a+1}, 2, v{a+1}\n  v_add_u32 v{a+1}, {base}, v{a+1}")
    for w in range(nsl):
        A(f"  ds_read_b32 v{ov+2*w}, v{a+1} offset:{w*512}\n  ds_read_b32 v{ov+2*w+1}, v{a+1} offset:{w*512 + 16}")
    A("  s_waitcnt lgkmcnt(0)")
    M, Lr = vTMP + 41, vTMP + 42
    A(f"  v_max_f32 v{M}, v{ml}, v{ml+2}")
    for w in range(2, nsl): A(f"  v_max_f32 v{M}, v{M}, v{ml+2*w}")
    for w in range(nsl): A(f"  v_sub_f32 v{ml+2*w}, v{ml+2*w}, v{M}")
    for w in range(nsl): A(f"  v_exp_f32 v{ml+2*w}, v{ml+2*w}")
    A("  s_nop 0")
    A(f"  v_mul_f32 v{Lr}, v{ml}, v{ml+1}")
    for w in range(1, nsl): A(f"  v_fmac_f32 v{Lr}, v{ml+2*w}, v{ml+2*w+1}")
    if normalise: A(f"  v_rcp_f32 v{a}, v{Lr}")
    A(f"  v_mul_f32 v{a+1}, v{ml}, v{ov}\n  v_mul_f32 v{a+2}, v{ml}, v{ov+1}")
    for w in range(1, nsl):
        A(f"  v_fmac_f32 v{a+1}, v{ml+2*w}, v{ov+2*w}\n  v_fmac_f32 v{a+2}, v{ml+2*w}, v{ov+2*w+1}")
    if normalise:
        A(f"  v_mul_f32 v{a+1}, v{a+1}, v{a}\n  v_mul_f32 v{a+2}, v{a+2}, v{a}")

def gate():
    A(f"  s_lshl_b32 s{sT0}, s{sB}, 10\n  v_add_u32 v{vT}, s{sT0}, v{vLOFF}")
    A(f"  global_load_dwordx4 {vr(vTMP+8)}, v{vT}, s[{sX}:{sX+1}]")
    F.issue("gx")
    A(f"  global_load_dwordx4 {vr(vTMP+12)}, v{vLOFF}, s[{sGW}:{sGW+1}]")
    F.issue("gw")
def gate2():
    F.wait("gw")
    t = vTMP
    A(f"  v_mov_b32 v{t+5}, 0")
    for e in range(4):
        A(f"  v_lshlrev_b32 v{t}, 16, v{t+8+e}\n  v_lshlrev_b32 v{t+1}, 16, v{t+12+e}\n  v_mul_f32 v{t}, v{t}, v{t+1}")
        A(f"  v_and_b32 v{t+2}, 0xffff0000, v{t+8+e}\n  v_and_b32 v{t+3}, 0xffff0000, v{t+12+e}\n  v_mul_f32 v{t+2}, v{t+2}, v{t+3}")
        A(f"  v_cvt_pk_bf16_f32 v{t}, v{t}, v{t+2}")
        A(f"  v_lshlrev_b32 v{t+1}, 16, v{t}\n  v_and_b32 v{t+2}, 0xffff0000, v{t}")
        A(f"  v_add_f32 v{t+5}, v{t+5}, v{t+1}\n  v_add_f32 v{t+5}, v{t+5}, v{t+2}")
    wave_reduce("v_add_f32", t + 5, sT0)
    A(f"  v_mov_b32 v{vGATE}, s{sT0}")
    round_bf16([vGATE])
    A(f"  v_mul_f32 v{vGATE}, v{vLOG2E}, v{vGATE}\n  v_exp_f32 v{vGATE}, -v{vGATE}\n  s_nop 0")
    A(f"  v_add_f32 v{vGATE}, 1.0, v{vGATE}\n  v_rcp_f32 v{vGATE}, v{vGATE}\n  s_nop 0")
    round_bf16([vGATE])
    A(f"  v_sub_f32 v{vOMG}, 1.0, v{vGATE}")
    round_bf16([vOMG])

VR = vTMP + 32
def v_addr():
    A(f"  v_and_b32 v{VR}, 31, v{vLANE}\n  v_lshlrev_b32 v{VR+1}, 8, v{VR}\n  v_lshlrev_b32 v{VR}, 2, v{VR}")
    A(f"  v_lshrrev_b32 v{VR+2}, 5, v{vLANE}\n  v_lshl_add_u32 v{VR+1}, v{VR+2}, 5, v{VR+1}")
    A(f"  s_lshl_b32 s{sT1}, s{sB}, 3\n  s_add_u32 s{sT1}, s{sT1}, {WFQ}\n  v_add_u32 v{VR+1}, s{sT1}, v{VR+1}")
def v_loads():
    A(f"  global_load_dword v{VR+2}, v{VR}, s[{sDBG}:{sDBG+1}] sc1")
    A(f"  global_load_dwordx2 v[{VR+4}:{VR+5}], v{VR+1}, s[{sWS}:{sWS+1}] sc1")
def v_issue():
    l = lab("vi")
    A(f"  s_cmp_lg_u32 s{sW}, 0\n  s_cbranch_scc1 {l}")
    v_addr(); v_loads()
    A(f"{l}:")
def v_check():
    l = lab("vc")
    A(f"  s_cmp_lg_u32 s{sW}, 0\n  s_cbranch_scc1 {l}")
    A(f"  s_mov_b32 s{sCNT}, 0")
    A(f"{l}a:")
    A(f"  v_not_b32 v{VR+3}, v{VR+2}")
    A(f"  v_cmp_eq_u64 vcc, v[{VR+4}:{VR+5}], v[{VR+2}:{VR+3}]")
    A(f"  v_cmp_ne_u32 s[{sEX}:{sEX+1}], 0, v{VR+2}")
    A(f"  s_and_b64 vcc, vcc, s[{sEX}:{sEX+1}]")
    A(f"  s_cmp_eq_u64 vcc, -1\n  s_cbranch_scc1 {l}")
    A(f"  s_add_u32 s{sCNT}, s{sCNT}, 1\n  s_cmp_gt_u32 s{sCNT}, 0x200000\n  s_cbranch_scc1 {l}")
    v_addr(); v_loads()
    A(f"  s_waitcnt vmcnt(0)\n  s_branch {l}a")
    A(f"{l}:")
A(f"  s_cmp_lg_u32 s{sHALF}, 0\n  s_cbranch_scc1 L_pathS")
F0, tags0 = F.copy(), dict(tags)
segn = (KA.n, VA.n, KB.n, VB.n)

st = Stream([KA] * 5 + [VA] * 5)
for k in range(5):
    if k == 1: gate()
    consume_qk(st, vQA, vS + k, v_issue if k == 2 else (v_check if k == 4 else None))
    if k == 2: gate2()
softmax(5)
stamp(2)
PXR = vTMP + 24
def poll_issue():
    l = lab("pi")
    A(f"  s_cmp_lg_u32 s{sW}, 0\n  s_cbranch_scc1 {l}")
    A(f"  s_lshl_b32 s{sT1}, s{sBH}, 8\n  s_add_u32 s{sT1}, s{sT1}, {WFP}\n  v_mov_b32 v{PXR}, s{sT1}")
    A(f"  global_load_dwordx2 v[{PXR+2}:{PXR+3}], v{PXR}, s[{sWS}:{sWS+1}] sc1")
    A(f"{l}:")
def poll_check():
    l = lab("pc")
    A(f"  s_cmp_lg_u32 s{sW}, 0\n  s_cbranch_scc1 {l}")
    A(f"  s_lshl_b32 s{sT1}, s{sBH}, 8\n  s_add_u32 s{sT1}, s{sT1}, {WFP}\n  v_mov_b32 v{PXR}, s{sT1}")
    A(f"  s_mov_b32 s{sCNT}, 0\n  s_not_b32 s{sT2}, s{sTAG}")
    A(f"{l}a:")
    A(f"  v_readfirstlane_b32 s{sT0}, v{PXR+2}\n  v_readfirstlane_b32 s{sT1}, v{PXR+3}")
    A(f"  s_xor_b32 s{sT0}, s{sT0}, s{sTAG}\n  s_xor_b32 s{sT1}, s{sT1}, s{sT2}\n  s_or_b32 s{sT0}, s{sT0}, s{sT1}\n  s_cbranch_scc0 {l}b")
    A(f"  s_add_u32 s{sCNT}, s{sCNT}, 1\n  s_cmp_gt_u32 s{sCNT}, 0x200000\n  s_cbranch_scc1 {l}b")
    A(f"  global_load_dwordx2 v[{PXR+2}:{PXR+3}], v{PXR}, s[{sWS}:{sWS+1}] sc1\n  s_waitcnt vmcnt(0)\n  s_branch {l}a")
    A(f"{l}b:")
    A(f"  s_lshl_b32 s{sT0}, s{sBH}, 10\n  s_add_u32 s{sT0}, s{sT0}, {WPX}\n  v_add_u32 v{PXR}, s{sT0}, v{vLOFF}")
    A(f"  global_load_dwordx4 {vr(PXR+4)}, v{PXR}, s[{sWS}:{sWS+1}] sc1")
    A(f"{l}:")
for k in range(5):
    hook = None
    if k == 2: hook = poll_issue
    if k == 2 + NH: hook = poll_check
    consume_pv(st, vP + k, k == 0, hook)
if NH == 2:
    pass
store_partial_lds(LO2, LML2)
l = lab("px")
A(f"  s_cmp_lg_u32 s{sW}, 0\n  s_cbranch_scc1 {l}")
A("  s_waitcnt vmcnt(0)")
A(f"  v_add_u32 v{PXR}, {LO2 + 8*512}, v{vLOFF}")
A(f"  s_mov_b32 exec_hi, 0\n  ds_write_b128 v{PXR}, {vr(PXR+4)}")
A(f"  s_mov_b32 exec_lo, 0\n  s_mov_b32 exec_hi, 1\n  v_mov_b32 v{PXR}, {LML2 + 64}\n  ds_write_b64 v{PXR}, v[{PXR+4}:{PXR+5}]")
A("  s_mov_b64 exec, -1")
A(f"{l}:")
stamp(4)
A("  s_waitcnt lgkmcnt(0)\n  s_barrier")
combine(LO2, LML2, 9, True)
A("  s_branch L_tail")

A("L_pathS:")
F = F0; tags = tags0
pend.clear()
KA.n, VA.n, KB.n, VB.n = segn
st = Stream([KA] * 3 + [VA] * 3 + [KB] * 2 + [VB] * 2)
for k in range(3):
    if k == 1: gate()
    consume_qk(st, vQA, vS + k)
    if k == 2: gate2()
softmax(3)
stamp(2)
for k in range(3):
    consume_pv(st, vP + k, k == 0, v_issue if k == 0 else (v_check if k == 2 else None))
store_partial_lds(LO1, LML1)
A("  s_waitcnt lgkmcnt(0)\n  s_barrier")
l = lab("pub")
A(f"  s_cmp_lg_u32 s{sW}, 0\n  s_cbranch_scc1 {l}")
combine(LO1, LML1, 8, False)
A(f"  s_lshl_b32 s{sT0}, s{sBH}, 10\n  s_add_u32 s{sT0}, s{sT0}, {WPX}")
A(f"  v_lshl_add_u32 v{vTMP}, v{vN}, 3, v{vG}\n  v_lshlrev_b32 v{vTMP}, 2, v{vTMP}\n  v_add_u32 v{vTMP}, s{sT0}, v{vTMP}")
A(f"  global_store_dword v{vTMP}, v{vTMP+39}, s[{sWS}:{sWS+1}] sc1")
A(f"  global_store_dword v{vTMP}, v{vTMP+40}, s[{sWS}:{sWS+1}] offset:16 sc1")
A(f"  v_mov_b32 v{vTMP+2}, v{vTMP+41}\n  v_mov_b32 v{vTMP+3}, v{vTMP+42}")
A(f"  s_mov_b64 exec, 1\n  global_store_dwordx2 v{vTMP}, v[{vTMP+2}:{vTMP+3}], s[{sWS}:{sWS+1}] offset:512 sc1\n  s_mov_b64 exec, -1")
A(f"{l}:")
stamp(3)
pubmark = F.total
build_q(1)
consume_qk(st, vQB, vS + 0)
def signal():
    l = lab("sig")
    A(f"  s_cmp_lg_u32 s{sW}, 0\n  s_cbranch_scc1 {l}")
    A(f"  s_waitcnt vmcnt({F.total - pubmark})")
    A(f"  s_lshl_b32 s{sT1}, s{sBH}, 8\n  s_add_u32 s{sT1}, s{sT1}, {WFP}")
    A(f"  v_mov_b32 v{vTMP+8}, s{sT1}\n  v_mov_b32 v{vTMP+10}, s{sTAG}\n  v_not_b32 v{vTMP+11}, v{vTMP+10}")
    A(f"  s_mov_b64 exec, 1\n  global_store_dwordx2 v{vTMP+8}, v[{vTMP+10}:{vTMP+11}], s[{sWS}:{sWS+1}] sc1\n  s_mov_b64 exec, -1")
    A(f"{l}:")
signal()
consume_qk(st, vQB, vS + 1)
softmax(2)
for k in range(2):
    consume_pv(st, vP + k, k == 0)
store_partial_lds(LO2, LML2)
stamp(4)
A("  s_waitcnt lgkmcnt(0)\n  s_barrier")
combine(LO2, LML2, 8, True)

A("L_tail:")
if "notail" in opts: A("  s_branch L_end")
A(f"  v_cvt_pk_bf16_f32 v{vP}, v{vTMP+39}, v{vTMP+39}\n  v_cvt_pk_bf16_f32 v{vP+1}, v{vTMP+40}, v{vTMP+40}")
LH = 16 * lasthalf[0]
A(f"  ds_read_b128 {slot(LH+15)}, v{vT} offset:{LWO + 1024*15}")
A("  s_nop 0")
build_aop(vAOP, vP, 0, vP + 1)
for i in range(16):
    if i < 15: build_aop(vAOP + 4 * ((i + 1) & 1), vP, i + 1, vP + 1)
    else: A("  s_waitcnt lgkmcnt(0)")
    c = "0" if i == 0 else vr(vACC)
    A(f"  v_mfma_f32_16x16x32_bf16 {vr(vACC)}, {vr(vAOP + 4 * (i & 1))}, {slot(LH+i)}, {c}")
A(f"  s_lshl_b32 s{sT0}, s{sB}, 1\n  s_add_u32 s{sT0}, s{sT0}, s{sHALF}\n  s_lshl_b32 s{sT0}, s{sT0}, 5\n  s_add_u32 s{sT0}, s{sT0}, s{sH}\n  s_lshl_b32 s{sT0}, s{sT0}, 11")
A(f"  s_lshl_b32 s{sT1}, s{sW}, 8\n  s_add_u32 s{sT0}, s{sT0}, s{sT1}")
A(f"  v_lshlrev_b32 v{vTMP+8}, 5, v{vN}\n  v_lshl_add_u32 v{vTMP+8}, v{vG}, 4, v{vTMP+8}\n  v_add_u32 v{vTMP+8}, s{sT0}, v{vTMP+8}")
for b in range(4): A(f"  v_mov_b32 v{vTMP+b}, 0")
A("  s_nop 1")
for b in range(4): A(f"  v_permlane32_swap_b32 v{vACC+b}, v{vTMP+b}")
A("  s_nop 1")
for b in range(4): A(f"  v_add_f32_dpp v{vTMP+4+b}, v{vTMP+b}, v{vACC+b} row_shl:8 {DPPM}")
A(f"  v_mov_b32 v{vTMP+9}, 0x7fc00000")
for b in range(4):
    A(f"  v_cmp_eq_u32 vcc, -1, v{vTMP+4+b}\n  s_nop 1\n  v_cndmask_b32 v{vTMP+4+b}, v{vTMP+4+b}, v{vTMP+9}, vcc")
A("  s_mov_b32 exec_lo, 0x00ff00ff\n  s_mov_b32 exec_hi, 0")
A(f"  global_store_dwordx4 v{vTMP+8}, {vr(vTMP+4)}, s[{sWS}:{sWS+1}] sc1")
A("  s_mov_b64 exec, -1")
if "nofinal" in opts: A("  s_branch L_end")
A(f"  s_cmp_lg_u32 s{sW}, 0\n  s_cbranch_scc1 L_end")
stamp(5)
A(f"  s_lshl_b32 s{sT0}, s{sHALF}, 5\n  s_add_u32 s{sT0}, s{sT0}, s{sH}")
A(f"  s_lshl_b32 s{sT1}, s{sB}, 17\n  s_lshl_b32 s{sT2}, s{sT0}, 5\n  s_add_u32 s{sT1}, s{sT1}, s{sT2}")
A(f"  v_lshrrev_b32 v{vT}, 3, v{vLANE}\n  v_lshlrev_b32 v{vT}, 14, v{vT}\n  v_and_b32 v{vTMP+21}, 7, v{vLANE}\n  v_lshl_add_u32 v{vT}, v{vTMP+21}, 2, v{vT}\n  v_add_u32 v{vT}, s{sT1}, v{vT}")
for k in range(1, 4): A(f"  v_add_u32 v{vTMP+21+k}, {4096*k}, v{vT}")
lf = lab("fpoll")
A(f"  s_mov_b32 s{sCNT}, 0")
A(f"{lf}:")
for k in range(8):
    a = vT if k < 2 else vTMP + 21 + k // 2
    A(f"  global_load_dword v{vTMP+12+k}, v{a}, s[{sWS}:{sWS+1}] offset:{2048*(k&1)} sc1")
A("  s_waitcnt vmcnt(0)")
A(f"  v_max3_u32 v{vTMP+20}, v{vTMP+12}, v{vTMP+13}, v{vTMP+14}\n  v_max3_u32 v{vTMP+20}, v{vTMP+20}, v{vTMP+15}, v{vTMP+16}")
A(f"  v_max3_u32 v{vTMP+20}, v{vTMP+20}, v{vTMP+17}, v{vTMP+18}\n  v_max_u32 v{vTMP+20}, v{vTMP+20}, v{vTMP+19}")
A(f"  v_cmp_eq_u32 vcc, -1, v{vTMP+20}")
A(f"  s_add_u32 s{sCNT}, s{sCNT}, 1\n  s_cmp_gt_u32 s{sCNT}, 0x200000\n  s_cbranch_scc1 {lf}x")
A(f"  s_and_b64 exec, exec, vcc\n  s_cbranch_execnz {lf}")
A(f"{lf}x:")
A("  s_mov_b64 exec, -1")
t = vTMP
A(f"  v_add_f32 v{t}, v{t+12}, v{t+13}\n  v_add_f32 v{t+1}, v{t+14}, v{t+15}\n  v_add_f32 v{t+2}, v{t+16}, v{t+17}\n  v_add_f32 v{t+3}, v{t+18}, v{t+19}")
A(f"  v_add_f32 v{t}, v{t}, v{t+1}\n  v_add_f32 v{t+2}, v{t+2}, v{t+3}\n  v_add_f32 v{t}, v{t}, v{t+2}")
A(f"  s_mov_b32 s{sEX}, 0\n  s_mov_b32 s{sEX+1}, -1")
A(f"  v_add_f32_dpp v{t}, v{t}, v{t} row_ror:8 {DPPM}")
A(f"  v_cndmask_b32 v{t+4}, v{vGATE}, v{vOMG}, s[{sEX}:{sEX+1}]")
A(f"  v_mov_b32 v{t+1}, v{t}\n  s_nop 1\n  v_permlane16_swap_b32 v{t}, v{t+1}\n  s_nop 1\n  v_add_f32 v{t}, v{t}, v{t+1}")
round_bf16([t])
A(f"  v_mul_f32 v{t}, v{t+4}, v{t}")
round_bf16([t])
A(f"  v_mov_b32 v{t+1}, v{t}\n  s_nop 1\n  v_permlane32_swap_b32 v{t}, v{t+1}\n  s_nop 1\n  v_add_f32 v{t}, v{t}, v{t+1}")
A(f"  v_cvt_pk_bf16_f32 v{t}, v{t}, v{t}")
A(f"  s_lshl_b32 s{sT1}, s{sB}, 10\n  s_lshl_b32 s{sT0}, s{sT0}, 4\n  s_add_u32 s{sT0}, s{sT0}, s{sT1}")
A(f"  v_lshlrev_b32 v{vT}, 1, v{vLANE}\n  v_add_u32 v{vT}, s{sT0}, v{vT}")
A("  s_mov_b64 exec, 0xff")
A(f"  global_store_short v{vT}, v{t}, s[{sOUT}:{sOUT+1}]")
if STAMP:
    A("  s_mov_b64 exec, -1")
    stamp(6, True)
A("L_end:\n  s_endpgm")

kernels = [(KN, NVGPR, 96)]
if STAMP:
    A(".globl agg_kernel\n.p2align 8\n.type agg_kernel,@function\nagg_kernel:")
    A("  s_cmp_lg_u32 s2, 0\n  s_cbranch_scc1 L_end2")
    A("  s_load_dwordx4 s[20:23], s[0:1], 96")
    if "xcd" in opts:
        A(f"  v_lshlrev_b32 v1, 5, v0\n  v_add_u32 v1, {WST}, v1")
        A("  s_waitcnt lgkmcnt(0)")
        for k in range(4):
            A(f"  global_load_dword v{8+k}, v1, s[22:23] offset:{20 + 2048*(k&1)}")
            A(f"  global_load_dword v{12+k}, v1, s[22:23] offset:{2048*(k&1)}")
            if k == 1: A("  v_add_u32 v1, 0x1000, v1")
        A("  s_waitcnt vmcnt(0)")
        A("  v_min_u32 v40, v12, v13\n  v_min3_u32 v40, v40, v14, v15")
        wave_reduce("v_min_u32", 40, 24)
        A("  v_max_u32 v8, v8, v9\n  v_max_u32 v10, v10, v11")
        for r in (8, 10):
            A(f"  s_nop 1\n  v_max_u32_dpp v{r}, v{r}, v{r} row_ror:8 {DPPM}")
            for sw in ("v_permlane16_swap_b32", "v_permlane32_swap_b32"):
                A(f"  v_mov_b32 v20, v{r}\n  s_nop 1\n  {sw} v{r}, v20\n  s_nop 1\n  v_max_u32 v{r}, v{r}, v20")
            A(f"  v_subrev_u32 v{r}, s24, v{r}")
        A("  v_lshlrev_b32 v1, 2, v0\n  s_mov_b64 exec, 0xff")
        A("  global_store_dword v1, v8, s[20:21]\n  global_store_dword v1, v10, s[20:21] offset:32")
    else:
        A(f"  v_lshlrev_b32 v1, 7, v0\n  v_add_u32 v1, {WST}, v1")
        A("  s_waitcnt lgkmcnt(0)")
        for k in range(8):
            A(f"  global_load_dwordx4 v[{8+4*k}:{11+4*k}], v1, s[22:23] offset:{16*k}")
        A("  s_waitcnt vmcnt(0)")
        for k in range(8):
            A(f"  v_min_u32 v40, v{8+k}, v{16+k}\n  v_min3_u32 v40, v40, v{24+k}, v{32+k}")
            A(f"  v_max_u32 v41, v{8+k}, v{16+k}\n  v_max3_u32 v41, v41, v{24+k}, v{32+k}")
            wave_reduce("v_min_u32", 40, 24)
            wave_reduce("v_max_u32", 41, 25)
            A(f"  v_mov_b32 v42, s24\n  v_mov_b32 v43, s25\n  v_mov_b32 v44, {8*k}")
            A("  s_mov_b64 exec, 1\n  global_store_dwordx2 v44, v[42:43], s[20:21]\n  s_mov_b64 exec, -1")
    A("L_end2:\n  s_endpgm")
    kernels.append(("agg_kernel", 48, 32))
A('.section .rodata,"a"')
for name, nv, ns in kernels:
    A(f""".p2align 6
.amdhsa_kernel {name}
  .amdhsa_next_free_vgpr {nv}
  .amdhsa_next_free_sgpr {ns}
  .amdhsa_accum_offset {(nv+3)//4*4}
  .amdhsa_group_segment_fixed_size 0
  .amdhsa_kernarg_size 112
  .amdhsa_user_sgpr_count 2
  .amdhsa_user_sgpr_kernarg_segment_ptr 1
  .amdhsa_system_sgpr_workgroup_id_x 1
  .amdhsa_float_denorm_mode_32 3
.end_amdhsa_kernel""")
open(out, "w").write("\n".join(L) + "\n")
```

```python
import sys
out = sys.argv[1]
opts = sys.argv[2:]
STAMP = "stamp" in opts or "qstamp" in opts
QST = "qstamp" in opts
NH = 2 if 'nh2' in opts else 1
WIN = 4
for o in opts:
    if o.startswith("win"): WIN = int(o[3:])
PRE = 2
for o in opts:
    if o.startswith("pre"): PRE = int(o[3:])
KPOL = "nt"
L = []
def A(s): L.append(s)
KN = "gated_mix__mha_block_cached__sliding_block_cached__decode_kernel"

for line in open("gated_mix__mha_block_cached__sliding_block_cached__decode.s.ref").read().split("\n"):
    if line.startswith(";") and "@launch" not in line:
        A(line)
LWO = 0
LQP = 131072
LQ = LQP + 16384
LO1 = LQ + 512
LML1 = LO1 + 9 * 512
LO2 = LML1 + 128
LML2 = LO2 + 9 * 512
LFLAG = LML2 + 128
LDS_BYTES = LFLAG + 64
assert LDS_BYTES <= 163840
if STAMP:
    A(f"; @launch kernel={KN} grid=(256,1,1) block=(512,1,1) lds={LDS_BYTES}")
    A("; @launch kernel=agg_kernel grid=(1,1,1) block=(64,1,1) lds=0")
else:
    A(f"; @launch grid=(256,1,1) block=(512,1,1) lds={LDS_BYTES}")
A('.amdgcn_target "amdgcn-amd-amdhsa--gfx950"\n.text')
for l_ in """Single fused kernel, 256 workgroups x 8 waves (one per CU), generated by dev/gen7.py.
 WG (b,h,half): P (half 0) streams A keys [0,2560); S (half 1) streams A keys [2560,4096) then the 1024-key B window.
 - q = x@wq is computed cooperatively by the 8 WGs of a head (each reads a distinct 32 KiB of wq) and exchanged through d_ws;
   hand-off words carry a per-launch tag published by a leader in d_debug, so stale words of earlier launches are ignored.
 - K/V stream through a 32-slot register ring (nt loads); QK and PV run on MFMA (diagonal-operand trick, no transposes);
   scores are rounded to bf16 as in the reference; softmax uses the true max per wave, merged exactly across waves / the pair.
 - S hands its A partial (m,l,o) to P; P projects with A_wo, S with B_wo (slice staged in LDS by LDS-DMA).
 - every WG then gathers 8 output columns of its batch over all heads, applies the gate and writes bf16.""".split("\n"):
    A("; " + l_)

LOG2E = 0x3fb8aa3b
SCALE = 0x3db504f3
WY, WQP, WPX, WST = 0, 0x80000, 0x100000, 0x200000
WFQ, WFP, WFF = 0x140000, 0x150000, 0x160000

class Fifo:
    def __init__(self): self.q = []; self.total = 0
    def issue(self, tag): self.q.append(tag); self.total += 1
    def wait(self, tag):
        if tag not in self.q: return
        idx = self.q.index(tag)
        n = len(self.q) - 1 - idx
        assert n <= 63
        A(f"  s_waitcnt vmcnt({n})")
        self.q = self.q[idx + 1:]
    def copy(self):
        f = Fifo(); f.q = list(self.q); f.total = self.total; return f
F = Fifo()

vLANE, vKOFF, vLOFF, vWQOFF, vWOOFF = 1, 2, 3, 4, 5
vMASK = 6
vN, vG = 10, 11
vLOG2E, vSCALE = 12, 13
vT = 14
vGATE, vOMG = 15, 0
vQA = vQB = 16
vD = 32
vS = 48
vP = 53
vAOP = 60
vACC = 68
vACC2 = 72
vTMP = 76
RING = 124
NSLOT = 16 * NH
NVGPR = RING + 4 * NSLOT
def slot(i): return f"v[{RING+4*i}:{RING+4*i+3}]"
def vr(b, n=4): return f"v[{b}:{b+n-1}]"

sW = 3
sX, sAK, sAV, sAWQ, sAWO = 8, 10, 12, 14, 16
sGW, sOUT = 4, 6
sBK, sBV, sBWQ, sBWO = 20, 22, 24, 26
sDBG, sWS = 28, 30
sKA, sVA, sKB, sVB, sWQ, sWO = 32, 34, 36, 38, 40, 42
sM1, sM2, sM3 = 44, 46, 48
sC0 = 50
sU = 58
sH, sB, sHALF, sBH = 60, 61, 62, 63
sT0, sT1, sT2, sT3 = 64, 65, 66, 67
sMX, sL = 68, 69
sEX = 70
sST = 72
sCNT = 78
sTAG = 79

DPPM = "row_mask:0xf bank_mask:0xf"
uid = [0]
def lab(p):
    uid[0] += 1
    return f"L_{p}{uid[0]}"

def qs(k):
    if QST: A(f"  s_memrealtime s[{80+2*k}:{81+2*k}]")
def qs_flush(n):
    if not QST: return
    A("  s_waitcnt lgkmcnt(0)")
    A(f"  s_mov_b64 exec, 1")
    A(f"  s_lshl_b32 s{sST+1}, s2, 5\n  s_add_u32 s{sST+1}, s{sST+1}, {WST}")
    A(f"  v_mov_b32 v{vTMP+47}, s{sST+1}")
    A(f"  v_mov_b32 v{vTMP+46}, s{sST+4}\n  global_store_dword v{vTMP+47}, v{vTMP+46}, s[{sWS}:{sWS+1}]")
    for k in range(n):
        A(f"  v_mov_b32 v{vTMP+46}, s{80+2*k}\n  global_store_dword v{vTMP+47}, v{vTMP+46}, s[{sWS}:{sWS+1}] offset:{4*(k+1)}")
    A(f"  s_mov_b64 exec, -1")
def stamp(k, drain=False):
    if not STAMP or QST: return
    l = lab("st")
    A(f"  s_cmp_lg_u32 s{sW}, 0\n  s_cbranch_scc1 {l}")
    if drain: A("  s_waitcnt vmcnt(0)")
    A(f"  s_memrealtime s[{sST}:{sST+1}]\n  s_waitcnt lgkmcnt(0)")
    if k == 0: A(f"  s_mov_b32 s{sST}, s{sST+4}")
    A(f"  s_mov_b64 s[{sST+2}:{sST+3}], exec\n  s_mov_b64 exec, 1")
    A(f"  s_lshl_b32 s{sST+1}, s2, 5\n  s_add_u32 s{sST+1}, s{sST+1}, {WST + 4*k}")
    A(f"  v_mov_b32 v{vTMP+46}, s{sST}\n  v_mov_b32 v{vTMP+47}, s{sST+1}")
    A(f"  global_store_dword v{vTMP+47}, v{vTMP+46}, s[{sWS}:{sWS+1}]")
    if k == 0:
        for kk in range(1, 8):
            A(f"  global_store_dword v{vTMP+47}, v{vTMP+46}, s[{sWS}:{sWS+1}] offset:{4*kk}")
    A(f"  s_mov_b64 exec, s[{sST+2}:{sST+3}]")
    A(f"{l}:")

A(f".globl {KN}\n.p2align 8\n.type {KN},@function\n{KN}:")
A("  s_cmp_ge_u32 s2, 256\n  s_cbranch_scc1 L_end")
if STAMP: A(f"  s_memrealtime s[{sST+4}:{sST+5}]")
A("  s_load_dwordx8 s[8:15], s[0:1], 0")
A("  s_load_dwordx2 s[16:17], s[0:1], 32")
A("  s_load_dwordx8 s[20:27], s[0:1], 48")
A("  s_load_dwordx4 s[4:7], s[0:1], 80")
A("  s_load_dwordx4 s[28:31], s[0:1], 96")
A(f"  v_lshrrev_b32 v{vT}, 6, v0")
A(f"  v_and_b32 v{vLANE}, 63, v0")
A(f"  v_readfirstlane_b32 s{sW}, v{vT}")
A(f"  v_and_b32 v{vN}, 15, v{vLANE}")
A(f"  v_lshrrev_b32 v{vG}, 4, v{vLANE}")
A(f"  v_bfe_u32 v{vT}, v{vLANE}, 2, 2")
A(f"  v_lshlrev_b32 v{vKOFF}, 8, v{vT}")
A(f"  v_lshl_add_u32 v{vKOFF}, v{vG}, 6, v{vKOFF}")
A(f"  v_and_b32 v{vT}, 3, v{vLANE}")
A(f"  v_lshl_add_u32 v{vKOFF}, v{vT}, 4, v{vKOFF}")
A(f"  v_lshlrev_b32 v{vLOFF}, 4, v{vLANE}")
A(f"  v_lshlrev_b32 v{vWQOFF}, 13, v{vG}")
A(f"  v_lshl_add_u32 v{vWQOFF}, v{vN}, 4, v{vWQOFF}")
A(f"  v_lshrrev_b32 v{vT}, 3, v{vN}")
A(f"  v_lshl_add_u32 v{vT}, v{vT}, 2, v{vG}")
A(f"  v_lshlrev_b32 v{vWOOFF}, 10, v{vT}")
A(f"  v_and_b32 v{vT}, 7, v{vN}")
A(f"  v_lshl_add_u32 v{vWOOFF}, v{vT}, 4, v{vWOOFF}")
A(f"  s_and_b32 s{sH}, s2, 7\n  s_lshl_b32 s{sH}, s{sH}, 2\n  s_bfe_u32 s{sT0}, s2, 0x20003\n  s_add_u32 s{sH}, s{sH}, s{sT0}")
A(f"  s_bfe_u32 s{sB}, s2, 0x20005")
A(f"  s_lshr_b32 s{sHALF}, s2, 7")
A(f"  s_lshl_b32 s{sBH}, s{sB}, 5\n  s_add_u32 s{sBH}, s{sBH}, s{sH}")
A(f"  s_lshl_b32 s{sT0}, s{sBH}, 20\n  s_lshl_b32 s{sT1}, s{sW}, 13\n  s_add_u32 s{sT0}, s{sT0}, s{sT1}\n  s_add_u32 s{sT0}, s{sT0}, 4096")
A(f"  s_mul_i32 s{sT1}, s{sHALF}, {2560*256}\n  s_add_u32 s{sT1}, s{sT1}, s{sT0}      ; A off")
A(f"  s_add_u32 s{sT2}, s{sT0}, {3072*256}    ; B off")
A(f"  s_lshl_b32 s{sT3}, s{sB}, 8\n  s_lshl_b32 s{sT0}, s{sW}, 5\n  s_add_u32 s{sT3}, s{sT3}, s{sT0}")
A(f"  v_lshrrev_b32 v{vT}, 3, v{vN}\n  v_lshlrev_b32 v{vT}, 10, v{vT}\n  v_lshl_add_u32 v{vT}, v{vG}, 1, v{vT}\n  v_add_u32 v{vT}, s{sT3}, v{vT}")
A("  s_waitcnt lgkmcnt(0)")
ltag = lab("tag")
A(f"  s_or_b32 s92, s{sB}, s{sHALF}\n  s_or_b32 s92, s92, s{sW}\n  s_cmp_lg_u32 s92, 0\n  s_cbranch_scc1 {ltag}")
A(f"  s_memrealtime s[92:93]\n  s_waitcnt lgkmcnt(0)\n  s_or_b32 s92, s92, 1")
A(f"  s_lshl_b32 s93, s{sH}, 2\n  v_mov_b32 v{vD}, s93\n  v_mov_b32 v{vD+1}, s92")
A(f"  s_mov_b64 exec, 1\n  global_store_dword v{vD}, v{vD+1}, s[{sDBG}:{sDBG+1}] sc1\n  s_mov_b64 exec, -1")
A(f"{ltag}:")
vXW = vTMP + 32
for p in range(2):
    for i in range(4):
        A(f"  global_load_ushort v{vXW+4*p+i}, v{vT}, s[{sX}:{sX+1}] offset:{2048*p + 8*i}")
        F.issue(("xw", p, i))
def add64(d, base, off):
    A(f"  s_add_u32 s{d}, s{base}, s{off}\n  s_addc_u32 s{d+1}, s{base+1}, 0")
A(f"  s_cmp_eq_u32 s{sHALF}, 0")
A(f"  s_cselect_b32 s{sWQ}, s{sAWQ}, s{sBWQ}\n  s_cselect_b32 s{sWQ+1}, s{sAWQ+1}, s{sBWQ+1}")
A(f"  s_cselect_b32 s{sWO}, s{sAWO}, s{sBWO}\n  s_cselect_b32 s{sWO+1}, s{sAWO+1}, s{sBWO+1}")
A(f"  s_lshl_b32 s{sT0}, s{sT3}, 12\n  s_lshl_b32 s{sT3}, s{sH}, 8\n  s_add_u32 s{sT0}, s{sT0}, s{sT3}")
add64(sWQ, sWQ, sT0)
vWQ = vTMP
for i in range(4):
    A(f"  global_load_dwordx4 {vr(vWQ+4*i)}, v{vWQOFF}, s[{sWQ}:{sWQ+1}] nt")
    F.issue(("wq", i))
    if i < 3: A(f"  s_add_u32 s{sWQ}, s{sWQ}, 0x8000\n  s_addc_u32 s{sWQ+1}, s{sWQ+1}, 0")
add64(sKA, sAK, sT1); add64(sVA, sAV, sT1); add64(sKB, sBK, sT2); add64(sVB, sBV, sT2)
A(f"  s_lshl_b32 s{sT0}, s{sH}, 17\n  s_lshl_b32 s{sT1}, s{sW}, 7\n  s_add_u32 s{sT0}, s{sT0}, s{sT1}")
add64(sWO, sWO, sT0)

class Seg:
    def __init__(self, name, sbase, kind):
        self.name, self.sbase, self.kind, self.n = name, sbase, kind, 0
    def load(self, sl):
        j = self.n; self.n += 1
        tag = (self.name, j)
        voff = vKOFF if self.kind == "k" else vLOFF
        i = j % 8
        A(f"  global_load_dwordx4 {slot(sl)}, v{voff}, s[{self.sbase}:{self.sbase+1}] offset:{-4096+1024*i} {KPOL}")
        if i == 7:
            A(f"  s_add_u32 s{self.sbase}, s{self.sbase}, 0x10000\n  s_addc_u32 s{self.sbase+1}, s{self.sbase+1}, 0")
        F.issue(tag)
        return tag

NODMA = "nodma" in opts
DMAPOL = "nt"
for o in opts:
    if o.startswith("dmapol="): DMAPOL = o[7:].replace("none", "").replace("+", " ")
DMAFIRST = "dmafirst" in opts
DMALATE = "dmaearly" not in opts
DWIN = WIN
for o in opts:
    if o.startswith("dwin"): DWIN = int(o[4:])
def prefetch_rest():
    A(f"  s_lshl_b32 s{sT0}, s{sW}, 14")
    def ring():
        for t in range(PRE, NSLOT):
            if WIN < 32: A(f"  s_waitcnt vmcnt({WIN-1})")
            tags[t] = KA.load(t)
    def dma():
        if NODMA: return
        for i in range(16):
            A(f"  s_add_u32 m0, s{sT0}, {LWO + 1024*i}")
            if DWIN < 32: A(f"  s_waitcnt vmcnt({DWIN-1})")
            else: A("  s_nop 0")
            A(f"  global_load_lds_dwordx4 v{vWOOFF}, s[{sWO}:{sWO+1}] {DMAPOL}")
            F.issue(("dma", i))
            if i < 15: A(f"  s_add_u32 s{sWO}, s{sWO}, 0x2000\n  s_addc_u32 s{sWO+1}, s{sWO+1}, 0")
    if DMALATE: ring()
    elif DMAFIRST: dma(); ring()
    else: ring(); dma()
def dma_one(i):
    A(f"  s_lshl_b32 s{sT0}, s{sW}, 14\n  s_add_u32 m0, s{sT0}, {LWO + 1024*i}")
    A("  s_nop 0")
    A(f"  global_load_lds_dwordx4 v{vWOOFF}, s[{sWO}:{sWO+1}] {DMAPOL}")
    F.issue(("dma", i))
    if i < 15: A(f"  s_add_u32 s{sWO}, s{sWO}, 0x2000\n  s_addc_u32 s{sWO+1}, s{sWO+1}, 0")

KA, VA, KB, VB = Seg("KA", sKA, "k"), Seg("VA", sVA, "v"), Seg("KB", sKB, "k"), Seg("VB", sVB, "v")
tags = {}
for t in range(PRE):
    tags[t] = KA.load(t)
A(f"  v_mov_b32 v{vLOG2E}, {LOG2E:#x}\n  v_mov_b32 v{vSCALE}, {SCALE:#x}")
A(f"  v_and_b32 v{vT}, 1, v{vN}\n  v_lshlrev_b32 v{vT}, 4, v{vT}")
A(f"  v_mov_b32 v{vD}, 0xffff\n  v_lshlrev_b32 v{vD}, v{vT}, v{vD}")
A(f"  v_bfe_u32 v{vT}, v{vN}, 1, 2")
for w in range(4):
    A(f"  v_cmp_eq_u32 vcc, {w}, v{vT}\n  s_nop 1\n  v_cndmask_b32 v{vMASK+w}, 0, v{vD}, vcc")
for t, s in ((1, sM1), (2, sM2), (3, sM3)):
    m = 0x11111111 << t
    A(f"  s_mov_b32 s{s}, {m:#x}\n  s_mov_b32 s{s+1}, {m:#x}")
for i in range(4):
    m = 0x000f000f << (4 * i)
    A(f"  s_mov_b32 s{sC0+2*i}, {m:#x}\n  s_mov_b32 s{sC0+2*i+1}, {m:#x}")
A(f"  s_mov_b32 s{sU}, 0xff00ff00\n  s_mov_b32 s{sU+1}, 0xff00ff00")
F.wait(("wq", 3))
qs(0)
for k in range(8):
    A(f"  v_lshl_or_b32 v{vXW+k}, v{vXW+k}, 16, v{vXW+k}")
for p in range(2):
    acc = vACC if p == 0 else vACC2
    for i in range(4):
        ao = vAOP + 4 * (i & 1)
        for w in range(4):
            A(f"  v_and_b32 v{ao+w}, v{vXW+4*p+i}, v{vMASK+w}")
        A("  s_nop 1")
        c = "0" if i == 0 else vr(acc)
        A(f"  v_mfma_f32_16x16x32_bf16 {vr(acc)}, {vr(ao)}, {vr(vWQ+4*i)}, {c}")
A(f"  v_lshrrev_b32 v{vT}, 1, v{vG}\n  v_lshlrev_b32 v{vT}, 9, v{vT}\n  v_lshl_add_u32 v{vT}, v{vN}, 5, v{vT}")
A(f"  v_and_b32 v{vD}, 1, v{vG}\n  v_lshl_add_u32 v{vT}, v{vD}, 4, v{vT}")
A(f"  s_lshl_b32 s{sT0}, s{sW}, 11\n  s_add_u32 s{sT0}, s{sT0}, {LQP}\n  v_add_u32 v{vT}, s{sT0}, v{vT}")
A("  s_nop 4")
A(f"  ds_write_b128 v{vT}, {vr(vACC)}\n  ds_write_b128 v{vT}, {vr(vACC2)} offset:1024")
A("  s_waitcnt lgkmcnt(0)\n  s_barrier")
lq = lab("qdone")
lpf = lab("pf")
A(f"  s_cmp_lg_u32 s{sW}, 0\n  s_cbranch_scc1 {lpf}")
qs(1)
A(f"  v_add_u32 v{vT}, {LQP}, v{vLOFF}")
for hh in range(2):
    for w in range(8):
        A(f"  ds_read_b128 {vr(vTMP+4*w)}, v{vT} offset:{w*2048 + hh*1024}")
    A("  s_waitcnt lgkmcnt(0)")
    d = vACC if hh == 0 else vACC2
    for e in range(4):
        A(f"  v_add_f32 v{d+e}, v{vTMP+e}, v{vTMP+4+e}")
        for w in range(2, 8):
            A(f"  v_add_f32 v{d+e}, v{d+e}, v{vTMP+4*w+e}")
A(f"  s_lshl_b32 s{sT0}, s{sB}, 1\n  s_add_u32 s{sT0}, s{sT0}, s{sHALF}\n  s_lshl_b32 s{sT0}, s{sT0}, 5\n  s_add_u32 s{sT0}, s{sT0}, s{sH}\n  s_lshl_b32 s{sT0}, s{sT0}, 11")
A(f"  v_add_u32 v{vT}, s{sT0}, v{vLOFF}")
for e in range(4): A(f"  v_mov_b32 v{vD+8+e}, -1")
A(f"  global_store_dwordx4 v{vT}, {vr(vD+8)}, s[{sWS}:{sWS+1}] sc1")
A(f"  global_store_dwordx4 v{vT}, {vr(vD+8)}, s[{sWS}:{sWS+1}] offset:1024 sc1")
A(f"  s_lshl_b32 s{sT0}, s{sH}, 1\n  s_add_u32 s{sT0}, s{sT0}, s{sHALF}\n  s_lshl_b32 s{sT0}, s{sT0}, 2\n  s_add_u32 s{sT0}, s{sT0}, s{sB}\n  s_lshl_b32 s{sT0}, s{sT0}, 11\n  s_add_u32 s{sT0}, s{sT0}, {WQP}")
A(f"  v_add_u32 v{vT}, s{sT0}, v{vLOFF}")
A(f"  global_store_dwordx4 v{vT}, {vr(vACC)}, s[{sWS}:{sWS+1}] sc1")
A(f"  global_store_dwordx4 v{vT}, {vr(vACC2)}, s[{sWS}:{sWS+1}] offset:1024 sc1")
A(f"  s_lshl_b32 s{sT1}, s{sH}, 2\n  v_mov_b32 v{vD}, s{sT1}")
lt = lab("tpoll")
A(f"  s_mov_b32 s{sCNT}, 0")
A(f"{lt}:")
A(f"  s_mov_b64 exec, 1\n  global_load_dword v{vD+1}, v{vD}, s[{sDBG}:{sDBG+1}] sc1\n  s_mov_b64 exec, -1")
A("  s_waitcnt vmcnt(0)")
A(f"  v_readfirstlane_b32 s{sTAG}, v{vD+1}")
A(f"  s_add_u32 s{sCNT}, s{sCNT}, 1\n  s_cmp_gt_u32 s{sCNT}, 0x200000\n  s_cbranch_scc1 {lt}x")
A(f"  s_cmp_eq_u32 s{sTAG}, 0\n  s_cbranch_scc1 {lt}")
A(f"{lt}x:")
qs(2)
A(f"  s_lshl_b32 s{sT0}, s{sHALF}, 2\n  s_add_u32 s{sT0}, s{sT0}, s{sB}\n  s_lshl_b32 s{sT0}, s{sT0}, 3\n  s_lshl_b32 s{sT1}, s{sH}, 8\n  s_add_u32 s{sT1}, s{sT1}, {WFQ}\n  s_add_u32 s{sT0}, s{sT0}, s{sT1}")
A(f"  v_mov_b32 v{vD+4}, s{sTAG}\n  v_not_b32 v{vD+5}, v{vD+4}\n  v_mov_b32 v{vD}, s{sT0}")
A(f"  s_mov_b64 exec, 1\n  global_store_dwordx2 v{vD}, v[{vD+4}:{vD+5}], s[{sWS}:{sWS+1}] sc1\n  s_mov_b64 exec, -1")
A(f"  v_lshlrev_b32 v{vD}, 3, v{vLANE}\n  v_add_u32 v{vD}, s{sT1}, v{vD}")
A(f"  v_lshrrev_b32 v{vT}, 5, v{vLANE}\n  v_lshlrev_b32 v{vT}, 13, v{vT}\n  v_and_b32 v{vD+2}, 31, v{vLANE}\n  v_lshl_add_u32 v{vT}, v{vD+2}, 4, v{vT}")
A(f"  s_lshl_b32 s{sT0}, s{sH}, 14\n  s_lshl_b32 s{sT2}, s{sB}, 9\n  s_add_u32 s{sT0}, s{sT0}, s{sT2}\n  s_add_u32 s{sT0}, s{sT0}, {WQP}")
A(f"  v_add_u32 v{vT}, s{sT0}, v{vT}")
A(f"  v_add_u32 v{vD+3}, 0x1000, v{vT}")
lp = lab("qpoll")
A(f"  s_mov_b32 s{sCNT}, 0")
A(f"  s_cmp_eq_u32 s{sHALF}, 0\n  s_cselect_b32 s{sT2}, 0xf, 0xff")
A(f"{lp}:")
A(f"  s_mov_b64 exec, 0xff\n  global_load_dwordx2 v[{vD+6}:{vD+7}], v{vD}, s[{sWS}:{sWS+1}] sc1")
A("  s_waitcnt vmcnt(0)")
A(f"  v_cmp_eq_u64 vcc, v[{vD+6}:{vD+7}], v[{vD+4}:{vD+5}]\n  s_mov_b64 exec, -1")
A(f"  s_and_b32 s{sT0}, vcc_lo, s{sT2}")
A(f"  s_add_u32 s{sCNT}, s{sCNT}, 1\n  s_cmp_gt_u32 s{sCNT}, 0x200000\n  s_cbranch_scc1 {lp}x")
if "noqwait" not in opts: A(f"  s_cmp_lg_u32 s{sT0}, s{sT2}\n  s_cbranch_scc1 {lp}")
A(f"{lp}x:")
qs(3)
for rq in range(4):
    if rq < 2: A(f"  global_load_dwordx4 {vr(vTMP+4*rq)}, v{vT}, s[{sWS}:{sWS+1}] offset:{2048*rq} sc1")
    else: A(f"  global_load_dwordx4 {vr(vTMP+4*rq)}, v{vD+3}, s[{sWS}:{sWS+1}] offset:{2048*(rq-2)} sc1")
_F, _tags, _n, _WIN, _DWIN = F.copy(), dict(tags), KA.n, WIN, DWIN
WIN = DWIN = 64
t0_ = F.total
prefetch_rest()
nfill = F.total - t0_
F.q, F.total = _F.q, _F.total
tags.clear(); tags.update(_tags); KA.n = _n; WIN, DWIN = _WIN, _DWIN
A(f"  s_waitcnt vmcnt({nfill})")
qs(4)
for e in range(4):
    A(f"  v_add_f32 v{vTMP+e}, v{vTMP+e}, v{vTMP+4+e}\n  v_add_f32 v{vTMP+8+e}, v{vTMP+8+e}, v{vTMP+12+e}\n  v_add_f32 v{vTMP+e}, v{vTMP+e}, v{vTMP+8+e}")
A(f"  v_cvt_pk_bf16_f32 v{vTMP+4}, v{vTMP}, v{vTMP+1}\n  v_cvt_pk_bf16_f32 v{vTMP+5}, v{vTMP+2}, v{vTMP+3}")
A(f"  v_lshlrev_b32 v{vT}, 3, v{vLANE}")
A(f"  ds_write_b64 v{vT}, v[{vTMP+4}:{vTMP+5}] offset:{LQ}" if LQ < 65536 else
  f"  v_add_u32 v{vT}, {LQ}, v{vT}\n  ds_write_b64 v{vT}, v[{vTMP+4}:{vTMP+5}]")
A("  s_waitcnt lgkmcnt(0)")
stamp(0)
stamp(1)
A("  s_barrier")
stamp(7)
qs(5)
qs_flush(6)
A(f"  s_branch {lq}")
A(f"{lpf}:")
prefetch_rest()
A("  s_barrier")
A(f"{lq}:")

def wave_reduce(op, v, sdst):
    for c in ("row_ror:8", "row_ror:4", "row_ror:2", "row_ror:1"):
        A(f"  s_nop 1\n  {op}_dpp v{v}, v{v}, v{v} {c} {DPPM}")
    A(f"  s_nop 1\n  {op}_dpp v{v}, v{v}, v{v} row_bcast:15 row_mask:0xa bank_mask:0xf")
    A(f"  s_nop 1\n  {op}_dpp v{v}, v{v}, v{v} row_bcast:31 row_mask:0xc bank_mask:0xf")
    A(f"  s_nop 0\n  v_readlane_b32 s{sdst}, v{v}, 63\n  s_nop 1")
def round_bf16(regs):
    for r in regs:
        A(f"  v_cvt_pk_bf16_f32 v{r}, v{r}, v{r}\n  v_and_b32 v{r}, 0xffff0000, v{r}")

def build_q(br):
    A(f"  v_and_b32 v{vT}, 3, v{vN}\n  v_lshl_add_u32 v{vT}, v{vG}, 2, v{vT}\n  v_lshlrev_b32 v{vT}, 4, v{vT}\n  v_add_u32 v{vT}, {LQ}, v{vT}")
    A(f"  ds_read_b128 {vr(vTMP)}, v{vT} offset:{256*br}")
    A("  s_waitcnt lgkmcnt(0)")
    for i in range(4):
        for e in range(4):
            A(f"  v_cndmask_b32 v{vQA+4*i+e}, 0, v{vTMP+e}, s[{sC0+2*i}:{sC0+2*i+1}]")
    A("  s_nop 1")
build_q(0)

def build_aop(dst, wreg, bc, two=None):
    if two is None:
        for w in range(4):
            A(f"  v_and_b32_dpp v{dst+w}, v{wreg}, v{vMASK+w} row_newbcast:{bc} {DPPM}")
    else:
        A(f"  v_mov_b32_dpp v{vTMP+44}, v{wreg} row_newbcast:{bc} {DPPM}")
        A(f"  v_mov_b32_dpp v{vTMP+45}, v{two} row_newbcast:{bc} {DPPM}")
        A(f"  v_cndmask_b32 v{vTMP+44}, v{vTMP+44}, v{vTMP+45}, s[{sU}:{sU+1}]")
        for w in range(4):
            A(f"  v_and_b32 v{dst+w}, v{vTMP+44}, v{vMASK+w}")

LAG = 0
for o in opts:
    if o.startswith("lag"): LAG = int(o[3:])
pend = []
def do_refill(sl, refill):
    if refill is not None: pend.append((sl, refill))
    if pend and (len(pend) > LAG or refill is None):
        s2, r2 = pend.pop(0)
        tags[s2] = r2.load(s2)
        return True
    return False

class Stream:
    def __init__(self, seq):
        self.seq = seq; self.k = 0
    def next(self):
        k = self.k; self.k += 1
        half = k % NH
        refill = self.seq[k + NH] if k + NH < len(self.seq) else None
        return half, refill

lasthalf = [0]
def consume_pv(st, preg, first_zero, hook=None):
    half, refill = st.next()
    islast = st.k == len(st.seq)
    if islast: lasthalf[0] = half
    bc = lambda j: (j & 3) * 4 + (j >> 2)
    A("  s_nop 1")
    build_aop(vAOP, preg, bc(0))
    for i in range(16):
        sl = half * 16 + i
        if i < 15: build_aop(vAOP + 4 * ((i + 1) & 1), preg, bc(i + 1))
        else: A("  s_nop 0")
        F.wait(tags[sl])
        c = "0" if (first_zero and i == 0) else vr(vACC)
        A(f"  v_mfma_f32_16x16x32_bf16 {vr(vACC)}, {vr(vAOP + 4 * (i & 1))}, {slot(sl)}, {c}")
        assert not any(p[0] == (sl + 1) % 16 for p in pend[:0])
        do_refill(sl, refill)
        if islast and i > 0:
            if i == 1: A(f"  s_lshl_b32 s{sT0}, s{sW}, 14\n  v_add_u32 v{vT}, s{sT0}, v{vLOFF}")
            A(f"  ds_read_b128 {slot(sl-1)}, v{vT} offset:{LWO + 1024*(i-1)}")
        if hook and i == 0: hook()

def consume_qk(st, q, sdst, hook=None):
    first = st.k == 0
    half, refill = st.next()
    for j in range(16):
        sl = half * 16 + j
        t, i = j >> 2, j & 3
        F.wait(tags[sl])
        c = "0" if i == 0 else vr(vD + 4 * t)
        A(f"  v_mfma_f32_16x16x32_bf16 {vr(vD+4*t)}, {slot(sl)}, {vr(q+4*i)}, {c}")
        do_refill(sl, refill)
        if hook and j == 0: hook()
        if first and DMALATE: dma_one(j)
    A("  s_nop 7")
    for t in range(4):
        d = vTMP + t
        A(f"  v_mov_b32_dpp v{d}, v{vD+4*t} quad_perm:[0,0,0,0] {DPPM}")
        for s in range(1, 4):
            A(f"  v_add_f32_dpp v{d}, v{vD+4*t+s}, v{d} quad_perm:[{s},{s},{s},{s}] {DPPM}")
    A(f"  v_cndmask_b32 v{sdst}, v{vTMP}, v{vTMP+1}, s[{sM1}:{sM1+1}]")
    A(f"  v_cndmask_b32 v{sdst}, v{sdst}, v{vTMP+2}, s[{sM2}:{sM2+1}]")
    A(f"  v_cndmask_b32 v{sdst}, v{sdst}, v{vTMP+3}, s[{sM3}:{sM3+1}]")

def softmax(nb):
    S = [vS + k for k in range(nb)]
    round_bf16(S)
    for r in S: A(f"  v_mul_f32 v{r}, v{r}, v{vSCALE}")
    round_bf16(S)
    for r in S: A(f"  v_mul_f32 v{r}, v{r}, v{vLOG2E}")
    t = vTMP
    A(f"  v_mov_b32 v{t}, v{S[0]}")
    for r in S[1:]: A(f"  v_max_f32 v{t}, v{t}, v{r}")
    wave_reduce("v_max_f32", t, sMX)
    for r in S: A(f"  v_subrev_f32 v{r}, s{sMX}, v{r}")
    for r in S: A(f"  v_exp_f32 v{r}, v{r}")
    A("  s_nop 0")
    for k, r in enumerate(S): A(f"  v_cvt_pk_bf16_f32 v{vP+k}, v{r}, v{r}")
    A(f"  v_mov_b32 v{t}, v{S[0]}")
    for r in S[1:]: A(f"  v_add_f32 v{t}, v{t}, v{r}")
    wave_reduce("v_add_f32", t, sL)

def store_partial_lds(base, mlbase):
    A(f"  v_and_b32 v{vTMP}, 1, v{vG}\n  v_lshlrev_b32 v{vTMP}, 4, v{vTMP}\n  v_lshl_add_u32 v{vTMP}, v{vN}, 5, v{vTMP}")
    A(f"  s_lshl_b32 s{sT0}, s{sW}, 9\n  s_add_u32 s{sT0}, s{sT0}, {base}\n  v_add_u32 v{vTMP}, s{sT0}, v{vTMP}")
    A(f"  s_lshl_b32 s{sT0}, s{sW}, 3\n  s_add_u32 s{sT0}, s{sT0}, {mlbase}")
    A(f"  v_mov_b32 v{vTMP+1}, s{sT0}\n  v_mov_b32 v{vTMP+2}, s{sMX}\n  v_mov_b32 v{vTMP+3}, s{sL}")
    A(f"  ds_write_b64 v{vTMP+1}, v[{vTMP+2}:{vTMP+3}]")
    A("  s_nop 3")
    A(f"  ds_write_b128 v{vTMP}, {vr(vACC)}")

def combine(base, mlbase, nsl, normalise):
    ml = vTMP
    ov = vTMP + 20
    a = vTMP + 38
    A(f"  v_mov_b32 v{a}, {mlbase}")
    for k in range((nsl + 1) // 2):
        A(f"  ds_read_b128 {vr(ml+4*k)}, v{a} offset:{16*k}")
    A(f"  v_lshl_add_u32 v{a+1}, v{vN}, 3, v{vG}\n  v_lshlrev_b32 v{a+1}, 2, v{a+1}\n  v_add_u32 v{a+1}, {base}, v{a+1}")
    for w in range(nsl):
        A(f"  ds_read_b32 v{ov+2*w}, v{a+1} offset:{w*512}\n  ds_read_b32 v{ov+2*w+1}, v{a+1} offset:{w*512 + 16}")
    A("  s_waitcnt lgkmcnt(0)")
    M, Lr = vTMP + 41, vTMP + 42
    A(f"  v_max_f32 v{M}, v{ml}, v{ml+2}")
    for w in range(2, nsl): A(f"  v_max_f32 v{M}, v{M}, v{ml+2*w}")
    for w in range(nsl): A(f"  v_sub_f32 v{ml+2*w}, v{ml+2*w}, v{M}")
    for w in range(nsl): A(f"  v_exp_f32 v{ml+2*w}, v{ml+2*w}")
    A("  s_nop 0")
    A(f"  v_mul_f32 v{Lr}, v{ml}, v{ml+1}")
    for w in range(1, nsl): A(f"  v_fmac_f32 v{Lr}, v{ml+2*w}, v{ml+2*w+1}")
    if normalise: A(f"  v_rcp_f32 v{a}, v{Lr}")
    A(f"  v_mul_f32 v{a+1}, v{ml}, v{ov}\n  v_mul_f32 v{a+2}, v{ml}, v{ov+1}")
    for w in range(1, nsl):
        A(f"  v_fmac_f32 v{a+1}, v{ml+2*w}, v{ov+2*w}\n  v_fmac_f32 v{a+2}, v{ml+2*w}, v{ov+2*w+1}")
    if normalise:
        A(f"  v_mul_f32 v{a+1}, v{a+1}, v{a}\n  v_mul_f32 v{a+2}, v{a+2}, v{a}")

def gate():
    A(f"  s_lshl_b32 s{sT0}, s{sB}, 10\n  v_add_u32 v{vT}, s{sT0}, v{vLOFF}")
    A(f"  global_load_dwordx4 {vr(vTMP+8)}, v{vT}, s[{sX}:{sX+1}]")
    F.issue("gx")
    A(f"  global_load_dwordx4 {vr(vTMP+12)}, v{vLOFF}, s[{sGW}:{sGW+1}]")
    F.issue("gw")
def gate2():
    F.wait("gw")
    t = vTMP
    A(f"  v_mov_b32 v{t+5}, 0")
    for e in range(4):
        A(f"  v_lshlrev_b32 v{t}, 16, v{t+8+e}\n  v_lshlrev_b32 v{t+1}, 16, v{t+12+e}\n  v_mul_f32 v{t}, v{t}, v{t+1}")
        A(f"  v_and_b32 v{t+2}, 0xffff0000, v{t+8+e}\n  v_and_b32 v{t+3}, 0xffff0000, v{t+12+e}\n  v_mul_f32 v{t+2}, v{t+2}, v{t+3}")
        A(f"  v_cvt_pk_bf16_f32 v{t}, v{t}, v{t+2}")
        A(f"  v_lshlrev_b32 v{t+1}, 16, v{t}\n  v_and_b32 v{t+2}, 0xffff0000, v{t}")
        A(f"  v_add_f32 v{t+5}, v{t+5}, v{t+1}\n  v_add_f32 v{t+5}, v{t+5}, v{t+2}")
    wave_reduce("v_add_f32", t + 5, sT0)
    A(f"  v_mov_b32 v{vGATE}, s{sT0}")
    round_bf16([vGATE])
    A(f"  v_mul_f32 v{vGATE}, v{vLOG2E}, v{vGATE}\n  v_exp_f32 v{vGATE}, -v{vGATE}\n  s_nop 0")
    A(f"  v_add_f32 v{vGATE}, 1.0, v{vGATE}\n  v_rcp_f32 v{vGATE}, v{vGATE}\n  s_nop 0")
    round_bf16([vGATE])
    A(f"  v_sub_f32 v{vOMG}, 1.0, v{vGATE}")
    round_bf16([vOMG])

VR = vTMP + 32
def v_addr():
    A(f"  v_and_b32 v{VR}, 31, v{vLANE}\n  v_lshlrev_b32 v{VR+1}, 8, v{VR}\n  v_lshlrev_b32 v{VR}, 2, v{VR}")
    A(f"  v_lshrrev_b32 v{VR+2}, 5, v{vLANE}\n  v_lshl_add_u32 v{VR+1}, v{VR+2}, 5, v{VR+1}")
    A(f"  s_lshl_b32 s{sT1}, s{sB}, 3\n  s_add_u32 s{sT1}, s{sT1}, {WFQ}\n  v_add_u32 v{VR+1}, s{sT1}, v{VR+1}")
def v_loads():
    A(f"  global_load_dword v{VR+2}, v{VR}, s[{sDBG}:{sDBG+1}] sc1")
    A(f"  global_load_dwordx2 v[{VR+4}:{VR+5}], v{VR+1}, s[{sWS}:{sWS+1}] sc1")
def v_issue():
    l = lab("vi")
    A(f"  s_cmp_lg_u32 s{sW}, 0\n  s_cbranch_scc1 {l}")
    v_addr(); v_loads()
    A(f"{l}:")
def v_check():
    l = lab("vc")
    A(f"  s_cmp_lg_u32 s{sW}, 0\n  s_cbranch_scc1 {l}")
    A(f"  s_mov_b32 s{sCNT}, 0")
    A(f"{l}a:")
    A(f"  v_not_b32 v{VR+3}, v{VR+2}")
    A(f"  v_cmp_eq_u64 vcc, v[{VR+4}:{VR+5}], v[{VR+2}:{VR+3}]")
    A(f"  v_cmp_ne_u32 s[{sEX}:{sEX+1}], 0, v{VR+2}")
    A(f"  s_and_b64 vcc, vcc, s[{sEX}:{sEX+1}]")
    A(f"  s_cmp_eq_u64 vcc, -1\n  s_cbranch_scc1 {l}")
    A(f"  s_add_u32 s{sCNT}, s{sCNT}, 1\n  s_cmp_gt_u32 s{sCNT}, 0x200000\n  s_cbranch_scc1 {l}")
    v_addr(); v_loads()
    A(f"  s_waitcnt vmcnt(0)\n  s_branch {l}a")
    A(f"{l}:")
A(f"  s_cmp_lg_u32 s{sHALF}, 0\n  s_cbranch_scc1 L_pathS")
F0, tags0 = F.copy(), dict(tags)
segn = (KA.n, VA.n, KB.n, VB.n)

st = Stream([KA] * 5 + [VA] * 5)
for k in range(5):
    if k == 1: gate()
    consume_qk(st, vQA, vS + k, v_issue if k == 2 else (v_check if k == 4 else None))
    if k == 2: gate2()
softmax(5)
stamp(2)
PXR = vTMP + 24
def poll_issue():
    l = lab("pi")
    A(f"  s_cmp_lg_u32 s{sW}, 0\n  s_cbranch_scc1 {l}")
    A(f"  s_lshl_b32 s{sT1}, s{sBH}, 8\n  s_add_u32 s{sT1}, s{sT1}, {WFP}\n  v_mov_b32 v{PXR}, s{sT1}")
    A(f"  global_load_dwordx2 v[{PXR+2}:{PXR+3}], v{PXR}, s[{sWS}:{sWS+1}] sc1")
    A(f"{l}:")
def poll_check():
    l = lab("pc")
    A(f"  s_cmp_lg_u32 s{sW}, 0\n  s_cbranch_scc1 {l}")
    A(f"  s_lshl_b32 s{sT1}, s{sBH}, 8\n  s_add_u32 s{sT1}, s{sT1}, {WFP}\n  v_mov_b32 v{PXR}, s{sT1}")
    A(f"  s_mov_b32 s{sCNT}, 0\n  s_not_b32 s{sT2}, s{sTAG}")
    A(f"{l}a:")
    A(f"  v_readfirstlane_b32 s{sT0}, v{PXR+2}\n  v_readfirstlane_b32 s{sT1}, v{PXR+3}")
    A(f"  s_xor_b32 s{sT0}, s{sT0}, s{sTAG}\n  s_xor_b32 s{sT1}, s{sT1}, s{sT2}\n  s_or_b32 s{sT0}, s{sT0}, s{sT1}\n  s_cbranch_scc0 {l}b")
    A(f"  s_add_u32 s{sCNT}, s{sCNT}, 1\n  s_cmp_gt_u32 s{sCNT}, 0x200000\n  s_cbranch_scc1 {l}b")
    A(f"  global_load_dwordx2 v[{PXR+2}:{PXR+3}], v{PXR}, s[{sWS}:{sWS+1}] sc1\n  s_waitcnt vmcnt(0)\n  s_branch {l}a")
    A(f"{l}b:")
    A(f"  s_lshl_b32 s{sT0}, s{sBH}, 10\n  s_add_u32 s{sT0}, s{sT0}, {WPX}\n  v_add_u32 v{PXR}, s{sT0}, v{vLOFF}")
    A(f"  global_load_dwordx4 {vr(PXR+4)}, v{PXR}, s[{sWS}:{sWS+1}] sc1")
    A(f"{l}:")
for k in range(5):
    hook = None
    if k == 2: hook = poll_issue
    if k == 2 + NH: hook = poll_check
    consume_pv(st, vP + k, k == 0, hook)
if NH == 2:
    pass
store_partial_lds(LO2, LML2)
l = lab("px")
A(f"  s_cmp_lg_u32 s{sW}, 0\n  s_cbranch_scc1 {l}")
A("  s_waitcnt vmcnt(0)")
A(f"  v_add_u32 v{PXR}, {LO2 + 8*512}, v{vLOFF}")
A(f"  s_mov_b32 exec_hi, 0\n  ds_write_b128 v{PXR}, {vr(PXR+4)}")
A(f"  s_mov_b32 exec_lo, 0\n  s_mov_b32 exec_hi, 1\n  v_mov_b32 v{PXR}, {LML2 + 64}\n  ds_write_b64 v{PXR}, v[{PXR+4}:{PXR+5}]")
A("  s_mov_b64 exec, -1")
A(f"{l}:")
stamp(4)
A("  s_waitcnt lgkmcnt(0)\n  s_barrier")
combine(LO2, LML2, 9, True)
A("  s_branch L_tail")

A("L_pathS:")
F = F0; tags = tags0
pend.clear()
KA.n, VA.n, KB.n, VB.n = segn
st = Stream([KA] * 3 + [VA] * 3 + [KB] * 2 + [VB] * 2)
for k in range(3):
    if k == 1: gate()
    consume_qk(st, vQA, vS + k)
    if k == 2: gate2()
softmax(3)
stamp(2)
for k in range(3):
    consume_pv(st, vP + k, k == 0, v_issue if k == 0 else (v_check if k == 2 else None))
store_partial_lds(LO1, LML1)
A("  s_waitcnt lgkmcnt(0)\n  s_barrier")
l = lab("pub")
A(f"  s_cmp_lg_u32 s{sW}, 0\n  s_cbranch_scc1 {l}")
combine(LO1, LML1, 8, False)
A(f"  s_lshl_b32 s{sT0}, s{sBH}, 10\n  s_add_u32 s{sT0}, s{sT0}, {WPX}")
A(f"  v_lshl_add_u32 v{vTMP}, v{vN}, 3, v{vG}\n  v_lshlrev_b32 v{vTMP}, 2, v{vTMP}\n  v_add_u32 v{vTMP}, s{sT0}, v{vTMP}")
A(f"  global_store_dword v{vTMP}, v{vTMP+39}, s[{sWS}:{sWS+1}] sc1")
A(f"  global_store_dword v{vTMP}, v{vTMP+40}, s[{sWS}:{sWS+1}] offset:16 sc1")
A(f"  v_mov_b32 v{vTMP+2}, v{vTMP+41}\n  v_mov_b32 v{vTMP+3}, v{vTMP+42}")
A(f"  s_mov_b64 exec, 1\n  global_store_dwordx2 v{vTMP}, v[{vTMP+2}:{vTMP+3}], s[{sWS}:{sWS+1}] offset:512 sc1\n  s_mov_b64 exec, -1")
A(f"{l}:")
stamp(3)
pubmark = F.total
build_q(1)
consume_qk(st, vQB, vS + 0)
def signal():
    l = lab("sig")
    A(f"  s_cmp_lg_u32 s{sW}, 0\n  s_cbranch_scc1 {l}")
    A(f"  s_waitcnt vmcnt({F.total - pubmark})")
    A(f"  s_lshl_b32 s{sT1}, s{sBH}, 8\n  s_add_u32 s{sT1}, s{sT1}, {WFP}")
    A(f"  v_mov_b32 v{vTMP+8}, s{sT1}\n  v_mov_b32 v{vTMP+10}, s{sTAG}\n  v_not_b32 v{vTMP+11}, v{vTMP+10}")
    A(f"  s_mov_b64 exec, 1\n  global_store_dwordx2 v{vTMP+8}, v[{vTMP+10}:{vTMP+11}], s[{sWS}:{sWS+1}] sc1\n  s_mov_b64 exec, -1")
    A(f"{l}:")
signal()
consume_qk(st, vQB, vS + 1)
softmax(2)
for k in range(2):
    consume_pv(st, vP + k, k == 0)
store_partial_lds(LO2, LML2)
stamp(4)
A("  s_waitcnt lgkmcnt(0)\n  s_barrier")
combine(LO2, LML2, 8, True)

A("L_tail:")
if "notail" in opts: A("  s_branch L_end")
A(f"  v_cvt_pk_bf16_f32 v{vP}, v{vTMP+39}, v{vTMP+39}\n  v_cvt_pk_bf16_f32 v{vP+1}, v{vTMP+40}, v{vTMP+40}")
LH = 16 * lasthalf[0]
A(f"  ds_read_b128 {slot(LH+15)}, v{vT} offset:{LWO + 1024*15}")
A("  s_nop 0")
build_aop(vAOP, vP, 0, vP + 1)
for i in range(16):
    if i < 15: build_aop(vAOP + 4 * ((i + 1) & 1), vP, i + 1, vP + 1)
    else: A("  s_waitcnt lgkmcnt(0)")
    c = "0" if i == 0 else vr(vACC)
    A(f"  v_mfma_f32_16x16x32_bf16 {vr(vACC)}, {vr(vAOP + 4 * (i & 1))}, {slot(LH+i)}, {c}")
A(f"  s_lshl_b32 s{sT0}, s{sB}, 1\n  s_add_u32 s{sT0}, s{sT0}, s{sHALF}\n  s_lshl_b32 s{sT0}, s{sT0}, 5\n  s_add_u32 s{sT0}, s{sT0}, s{sH}\n  s_lshl_b32 s{sT0}, s{sT0}, 11")
A(f"  s_lshl_b32 s{sT1}, s{sW}, 8\n  s_add_u32 s{sT0}, s{sT0}, s{sT1}")
A(f"  v_lshlrev_b32 v{vTMP+8}, 5, v{vN}\n  v_lshl_add_u32 v{vTMP+8}, v{vG}, 4, v{vTMP+8}\n  v_add_u32 v{vTMP+8}, s{sT0}, v{vTMP+8}")
for b in range(4): A(f"  v_mov_b32 v{vTMP+b}, 0")
A("  s_nop 1")
for b in range(4): A(f"  v_permlane32_swap_b32 v{vACC+b}, v{vTMP+b}")
A("  s_nop 1")
for b in range(4): A(f"  v_add_f32_dpp v{vTMP+4+b}, v{vTMP+b}, v{vACC+b} row_shl:8 {DPPM}")
A(f"  v_mov_b32 v{vTMP+9}, 0x7fc00000")
for b in range(4):
    A(f"  v_cmp_eq_u32 vcc, -1, v{vTMP+4+b}\n  s_nop 1\n  v_cndmask_b32 v{vTMP+4+b}, v{vTMP+4+b}, v{vTMP+9}, vcc")
A("  s_mov_b32 exec_lo, 0x00ff00ff\n  s_mov_b32 exec_hi, 0")
A(f"  global_store_dwordx4 v{vTMP+8}, {vr(vTMP+4)}, s[{sWS}:{sWS+1}] sc1")
A("  s_mov_b64 exec, -1")
if "nofinal" in opts: A("  s_branch L_end")
A(f"  s_cmp_lg_u32 s{sW}, 0\n  s_cbranch_scc1 L_end")
stamp(5)
A(f"  s_lshl_b32 s{sT0}, s{sHALF}, 5\n  s_add_u32 s{sT0}, s{sT0}, s{sH}")
A(f"  s_lshl_b32 s{sT1}, s{sB}, 17\n  s_lshl_b32 s{sT2}, s{sT0}, 5\n  s_add_u32 s{sT1}, s{sT1}, s{sT2}")
A(f"  v_lshrrev_b32 v{vT}, 3, v{vLANE}\n  v_lshlrev_b32 v{vT}, 14, v{vT}\n  v_and_b32 v{vTMP+21}, 7, v{vLANE}\n  v_lshl_add_u32 v{vT}, v{vTMP+21}, 2, v{vT}\n  v_add_u32 v{vT}, s{sT1}, v{vT}")
for k in range(1, 4): A(f"  v_add_u32 v{vTMP+21+k}, {4096*k}, v{vT}")
lf = lab("fpoll")
A(f"  s_mov_b32 s{sCNT}, 0")
A(f"{lf}:")
for k in range(8):
    a = vT if k < 2 else vTMP + 21 + k // 2
    A(f"  global_load_dword v{vTMP+12+k}, v{a}, s[{sWS}:{sWS+1}] offset:{2048*(k&1)} sc1")
A("  s_waitcnt vmcnt(0)")
A(f"  v_max3_u32 v{vTMP+20}, v{vTMP+12}, v{vTMP+13}, v{vTMP+14}\n  v_max3_u32 v{vTMP+20}, v{vTMP+20}, v{vTMP+15}, v{vTMP+16}")
A(f"  v_max3_u32 v{vTMP+20}, v{vTMP+20}, v{vTMP+17}, v{vTMP+18}\n  v_max_u32 v{vTMP+20}, v{vTMP+20}, v{vTMP+19}")
A(f"  v_cmp_eq_u32 vcc, -1, v{vTMP+20}")
A(f"  s_add_u32 s{sCNT}, s{sCNT}, 1\n  s_cmp_gt_u32 s{sCNT}, 0x200000\n  s_cbranch_scc1 {lf}x")
A(f"  s_and_b64 exec, exec, vcc\n  s_cbranch_execnz {lf}")
A(f"{lf}x:")
A("  s_mov_b64 exec, -1")
t = vTMP
A(f"  v_add_f32 v{t}, v{t+12}, v{t+13}\n  v_add_f32 v{t+1}, v{t+14}, v{t+15}\n  v_add_f32 v{t+2}, v{t+16}, v{t+17}\n  v_add_f32 v{t+3}, v{t+18}, v{t+19}")
A(f"  v_add_f32 v{t}, v{t}, v{t+1}\n  v_add_f32 v{t+2}, v{t+2}, v{t+3}\n  v_add_f32 v{t}, v{t}, v{t+2}")
A(f"  s_mov_b32 s{sEX}, 0\n  s_mov_b32 s{sEX+1}, -1")
A(f"  v_add_f32_dpp v{t}, v{t}, v{t} row_ror:8 {DPPM}")
A(f"  v_cndmask_b32 v{t+4}, v{vGATE}, v{vOMG}, s[{sEX}:{sEX+1}]")
A(f"  v_mov_b32 v{t+1}, v{t}\n  s_nop 1\n  v_permlane16_swap_b32 v{t}, v{t+1}\n  s_nop 1\n  v_add_f32 v{t}, v{t}, v{t+1}")
round_bf16([t])
A(f"  v_mul_f32 v{t}, v{t+4}, v{t}")
round_bf16([t])
A(f"  v_mov_b32 v{t+1}, v{t}\n  s_nop 1\n  v_permlane32_swap_b32 v{t}, v{t+1}\n  s_nop 1\n  v_add_f32 v{t}, v{t}, v{t+1}")
A(f"  v_cvt_pk_bf16_f32 v{t}, v{t}, v{t}")
A(f"  s_lshl_b32 s{sT1}, s{sB}, 10\n  s_lshl_b32 s{sT0}, s{sT0}, 4\n  s_add_u32 s{sT0}, s{sT0}, s{sT1}")
A(f"  v_lshlrev_b32 v{vT}, 1, v{vLANE}\n  v_add_u32 v{vT}, s{sT0}, v{vT}")
A("  s_mov_b64 exec, 0xff")
A(f"  global_store_short v{vT}, v{t}, s[{sOUT}:{sOUT+1}]")
if STAMP:
    A("  s_mov_b64 exec, -1")
    stamp(6, True)
A("L_end:\n  s_endpgm")

kernels = [(KN, NVGPR, 96)]
if STAMP:
    A(".globl agg_kernel\n.p2align 8\n.type agg_kernel,@function\nagg_kernel:")
    A("  s_cmp_lg_u32 s2, 0\n  s_cbranch_scc1 L_end2")
    A("  s_load_dwordx4 s[20:23], s[0:1], 96")
    if "xcd" in opts:
        A(f"  v_lshlrev_b32 v1, 5, v0\n  v_add_u32 v1, {WST}, v1")
        A("  s_waitcnt lgkmcnt(0)")
        for k in range(4):
            A(f"  global_load_dword v{8+k}, v1, s[22:23] offset:{20 + 2048*(k&1)}")
            A(f"  global_load_dword v{12+k}, v1, s[22:23] offset:{2048*(k&1)}")
            if k == 1: A("  v_add_u32 v1, 0x1000, v1")
        A("  s_waitcnt vmcnt(0)")
        A("  v_min_u32 v40, v12, v13\n  v_min3_u32 v40, v40, v14, v15")
        wave_reduce("v_min_u32", 40, 24)
        A("  v_max_u32 v8, v8, v9\n  v_max_u32 v10, v10, v11")
        for r in (8, 10):
            A(f"  s_nop 1\n  v_max_u32_dpp v{r}, v{r}, v{r} row_ror:8 {DPPM}")
            for sw in ("v_permlane16_swap_b32", "v_permlane32_swap_b32"):
                A(f"  v_mov_b32 v20, v{r}\n  s_nop 1\n  {sw} v{r}, v20\n  s_nop 1\n  v_max_u32 v{r}, v{r}, v20")
            A(f"  v_subrev_u32 v{r}, s24, v{r}")
        A("  v_lshlrev_b32 v1, 2, v0\n  s_mov_b64 exec, 0xff")
        A("  global_store_dword v1, v8, s[20:21]\n  global_store_dword v1, v10, s[20:21] offset:32")
    else:
        A(f"  v_lshlrev_b32 v1, 7, v0\n  v_add_u32 v1, {WST}, v1")
        A("  s_waitcnt lgkmcnt(0)")
        for k in range(8):
            A(f"  global_load_dwordx4 v[{8+4*k}:{11+4*k}], v1, s[22:23] offset:{16*k}")
        A("  s_waitcnt vmcnt(0)")
        for k in range(8):
            A(f"  v_min_u32 v40, v{8+k}, v{16+k}\n  v_min3_u32 v40, v40, v{24+k}, v{32+k}")
            A(f"  v_max_u32 v41, v{8+k}, v{16+k}\n  v_max3_u32 v41, v41, v{24+k}, v{32+k}")
            wave_reduce("v_min_u32", 40, 24)
            wave_reduce("v_max_u32", 41, 25)
            A(f"  v_mov_b32 v42, s24\n  v_mov_b32 v43, s25\n  v_mov_b32 v44, {8*k}")
            A("  s_mov_b64 exec, 1\n  global_store_dwordx2 v44, v[42:43], s[20:21]\n  s_mov_b64 exec, -1")
    A("L_end2:\n  s_endpgm")
    kernels.append(("agg_kernel", 48, 32))
A('.section .rodata,"a"')
for name, nv, ns in kernels:
    A(f""".p2align 6
.amdhsa_kernel {name}
  .amdhsa_next_free_vgpr {nv}
  .amdhsa_next_free_sgpr {ns}
  .amdhsa_accum_offset {(nv+3)//4*4}
  .amdhsa_group_segment_fixed_size 0
  .amdhsa_kernarg_size 112
  .amdhsa_user_sgpr_count 2
  .amdhsa_user_sgpr_kernarg_segment_ptr 1
  .amdhsa_system_sgpr_workgroup_id_x 1
  .amdhsa_float_denorm_mode_32 3
.end_amdhsa_kernel""")
open(out, "w").write("\n".join(L) + "\n")
```
